```python
import torch

def _softmax(x, axis=-1):
    return torch.softmax(x, dim=axis)
def _gelu(x):
    return torch.nn.functional.gelu(x, approximate="tanh")
def _silu(x):
    return torch.nn.functional.silu(x)
def _sigmoid(x):
    return torch.sigmoid(x)
def _layernorm(x, axis=-1, eps=1e-5):
    m = x.mean(dim=axis, keepdim=True)
    v = x.var(dim=axis, keepdim=True, unbiased=False)
    return (x - m) / torch.sqrt(v + eps)
def _scatter_add(tgt, idx, src, axis=0):
    return tgt.clone().index_add_(axis, idx, src)
def _segment_sum(src, seg, n):
    out = torch.zeros((n,) + src.shape[1:], dtype=src.dtype)
    return out.index_add_(0, seg, src)
def _pad(x, pw):
    flat = tuple(v for pair in reversed(pw) for v in pair)
    return torch.nn.functional.pad(x, flat)

kernel_name = 'standalone__convnext_block__vision'

def setup_inputs():

    _w = (lambda a: (lambda t: t.to(torch.bfloat16) if t.is_floating_point() else t)(torch.as_tensor(a)))
    H = W = 384
    C = 192
    return {
        "x": _w((lambda *s: torch.randn(*s, dtype=torch.bfloat16) * 0.05)(1, H, W, C)),
        "dw": _w((lambda *s: torch.randn(*s, dtype=torch.bfloat16) * 0.05)(7, 7, C)),
        "w1": _w((lambda *s: torch.randn(*s, dtype=torch.bfloat16) * 0.05)(C, 4 * C)),
        "w2": _w((lambda *s: torch.randn(*s, dtype=torch.bfloat16) * 0.05)(4 * C, C)),
    }

def reference(x, dw, w1, w2):
    B, H, W, C = x.shape
    pad = 3
    xp = _pad(x, ((0,0),(pad,pad),(pad,pad),(0,0)))
    out = torch.zeros_like(x)
    for i in range(7):
        for j in range(7):
            out = out + xp[:, i:i+H, j:j+W, :] * dw[i, j][None, None, None, :]
    h = _layernorm(out, axis=-1)
    return x + _gelu(h @ w1) @ w2
```

```python
def vr(n, c=1):
    return f"v{n}" if c == 1 else f"v[{n}:{n+c-1}]"
def sr(n, c=1):
    return f"s{n}" if c == 1 else f"s[{n}:{n+c-1}]"

class Em:
    def __init__(self):
        self.L = []
        self.nl = 0; self.dl = 0
        self.nv = 0; self.dv = 0
    def e(self, s):
        for ln in s.split("\n"):
            ln = ln.strip()
            if ln: self.L.append("  " + ln)
    def c(self, s): self.L.append("  ; " + s)
    def label(self, s): self.L.append(s + ":")
    def ds(self, s):
        self.e(s); self.nl += 1; return self.nl
    def vm(self, s):
        self.e(s); self.nv += 1; return self.nv
    def wait(self, l=None, v=None):
        parts = []
        if v is not None and v > self.dv:
            n = min(self.nv - v, 63); parts.append(f"vmcnt({n})"); self.dv = self.nv - n
        if l is not None and l > self.dl:
            n = min(self.nl - l, 15); parts.append(f"lgkmcnt({n})"); self.dl = self.nl - n
        if parts: self.e("s_waitcnt " + " ".join(parts))
    def wait_all_lds(self, force=False):
        if force or self.dl < self.nl:
            self.e("s_waitcnt lgkmcnt(0)"); self.dl = self.nl
    def wait_all_vm(self, force=False):
        if force or self.dv < self.nv:
            self.e("s_waitcnt vmcnt(0)"); self.dv = self.nv
    def text(self): return "\n".join(self.L) + "\n"

def srd(E, d, lo, hi, nbytes):
    E.e(f"s_mov_b32 s{d}, s{lo}")
    E.e(f"s_and_b32 s{d+1}, s{hi}, 0xffff")
    E.e(f"s_mov_b32 s{d+2}, {nbytes}")
    E.e(f"s_mov_b32 s{d+3}, 0x00020000")

def descriptor(name, vgpr, sgpr=102, accum=None):
    accum = accum or ((vgpr + 3)//4*4)
    return f""".section .rodata,"a"
.p2align 6
.amdhsa_kernel {name}
  .amdhsa_next_free_vgpr {vgpr}
  .amdhsa_next_free_sgpr {sgpr}
  .amdhsa_accum_offset {accum}
  .amdhsa_group_segment_fixed_size 0
  .amdhsa_kernarg_size 56
  .amdhsa_user_sgpr_count 2
  .amdhsa_user_sgpr_kernarg_segment_ptr 1
  .amdhsa_system_sgpr_workgroup_id_x 1
  .amdhsa_float_denorm_mode_32 3
.end_amdhsa_kernel
.text
"""
def header(name):
    return f""".globl {name}
.p2align 8
.type {name},@function
{name}:
"""
import struct
def f2u(x): return struct.unpack("<I", struct.pack("<f", x))[0]
```

```python
from em import *
import math
A_ = 2*math.sqrt(2/math.pi)*math.log2(math.e); B_ = A_*0.044715; S_ = B_**(1/3)
XBYTES = 384*384*384
WS_W = 0
WS_H = 1 << 20
TBL = 0
SLOT0 = 46080; SLOTSZ = 57344
K1_LDS = SLOT0 + 2*SLOTSZ

def gen_k1(name, dbg=None, nostore=False, nocompute=False, nodma=False, noln=False, stamp=False):
    E = Em()
    vL, vN, vG = 1, 2, 3
    vDS = 4
    vDT = 11
    vXa, vXa3, vXc, vXc3 = 13, 14, 15, 16
    vT = 17
    vOut, vL16 = 21, 22
    t0, t1, t2, t3, t4, t5, t6, t7 = 23, 24, 25, 26, 27, 28, 29, 30
    EO = 32
    Bf = 48
    Tr = 80
    ACC = 96
    ST = 192
    sW = 3
    sSelLo, sSelHi = 26, 27
    sBase, sTmp, sTmp2, sTmp3 = 24, 25, 28, 29
    sR0, sC = 30, 31
    sO0, sO1 = 32, 33
    sM0w = 34
    sLid = 35

    E.e("s_cmp_ge_u32 s2, 256")
    E.e(f"s_cbranch_scc1 {name}_end")
    stamps = []
    def st(tag):
        if not stamp: return
        i = len(stamps); stamps.append(tag)
        E.e(f"s_memtime s[{96}:{97}]")
        E.e("s_waitcnt lgkmcnt(0)")
        E.e(f"v_writelane_b32 v209, s96, {i}")
        E.dl = E.nl
    if stamp: E.e("v_mov_b32 v209, 0")
    st("start")
    E.e("s_load_dwordx4 s[36:39], s[0:1], 0")
    E.e("s_load_dwordx4 s[40:43], s[0:1], 16")
    E.e("s_load_dwordx2 s[44:45], s[0:1], 48")
    E.e(f"v_lshrrev_b32 v{t0}, 6, v0")
    E.e(f"v_and_b32 v{vL}, 63, v0")
    E.e(f"v_readfirstlane_b32 s{sW}, v{t0}")
    E.e(f"v_and_b32 v{vN}, 15, v{vL}")
    E.e(f"v_lshrrev_b32 v{vG}, 4, v{vL}")
    E.e(f"v_lshlrev_b32 v{vL16}, 4, v{vL}")
    E.e(f"s_mov_b32 s{sSelLo}, 0x05040100")
    E.e(f"s_mov_b32 s{sSelHi}, 0x07060302")
    E.e(f"s_and_b32 s{sTmp}, s2, 7")
    E.e(f"s_lshl_b32 s{sTmp}, s{sTmp}, 5")
    E.e(f"s_lshr_b32 s{sTmp2}, s2, 3")
    E.e(f"s_add_u32 s{sTmp}, s{sTmp}, s{sTmp2}")
    E.e(f"s_mov_b32 s{sLid}, s{sTmp}")
    E.e(f"s_lshr_b32 s{sR0}, s{sTmp}, 4")
    E.e(f"s_mul_i32 s{sR0}, s{sR0}, 24")
    E.e(f"s_and_b32 s{sC}, s{sTmp}, 15")
    E.e(f"s_mul_i32 s{sC}, s{sC}, 24")
    E.e(f"s_mul_i32 s{sM0w}, s{sW}, 7168")
    E.e("s_waitcnt lgkmcnt(0)")
    srd(E, 4, 36, 37, XBYTES)
    srd(E, 8, 38, 39, 7*7*192*2)
    E.e(f"s_add_u32 s46, s44, {WS_H}")
    E.e("s_addc_u32 s47, s45, 0")
    srd(E, 12, 46, 47, XBYTES)
    srd(E, 20, 44, 45, 24*24576)

    E.c("static DMA offsets")
    E.e(f"s_mul_i32 s{sTmp}, s{sW}, 448")
    E.e(f"s_sub_u32 s{sTmp2}, s{sC}, 3")
    for q in range(7):
        P, r, rem, sl, n_, dx = t0, t1, t2, t3, t4, t5
        E.e(f"v_add_u32 v{P}, s{sTmp}, v{vL}")
        if q: E.e(f"v_add_u32 v{P}, {64*q}, v{P}")
        E.e(f"v_mul_u32_u24 v{r}, 4370, v{P}")
        E.e(f"v_lshrrev_b32 v{r}, 20, v{r}")
        E.e(f"v_mul_u32_u24 v{rem}, 240, v{r}")
        E.e(f"v_sub_u32 v{rem}, v{P}, v{rem}")
        E.e(f"v_lshrrev_b32 v{sl}, 3, v{rem}")
        E.e(f"v_and_b32 v{rem}, 7, v{rem}")
        E.e(f"v_cmp_le_u32 vcc, 15, v{sl}")
        E.e(f"v_mov_b32 v{dx}, 0")
        E.e(f"s_nop 0")
        E.e(f"v_addc_co_u32 v{dx}, vcc, 0, v{dx}, vcc")
        E.e(f"v_mul_u32_u24 v{n_}, 15, v{dx}")
        E.e(f"v_sub_u32 v{n_}, v{sl}, v{n_}")
        E.e(f"v_lshrrev_b32 v{sl}, 1, v{n_}")
        E.e(f"v_sub_u32 v{rem}, v{rem}, v{sl}")
        E.e(f"v_and_b32 v{rem}, 7, v{rem}")
        E.e(f"v_lshl_add_u32 v{n_}, v{n_}, 1, v{dx}")
        d = vDS + q
        E.e(f"s_mov_b32 s{sTmp3}, 147456")
        E.e(f"v_mul_lo_u32 v{d}, v{r}, s{sTmp3}")
        E.e(f"v_mul_u32_u24 v{t6}, 384, v{n_}")
        E.e(f"v_add_u32 v{d}, v{d}, v{t6}")
        E.e(f"v_lshl_add_u32 v{d}, v{rem}, 4, v{d}")
        E.e(f"v_add_u32 v{t6}, s{sTmp2}, v{n_}")
        E.e(f"v_cmp_gt_u32 vcc, 384, v{t6}")
        E.e(f"s_movk_i32 s{sTmp3}, 3360")
        E.e(f"v_cmp_gt_u32 s[48:49], s{sTmp3}, v{P}")
        E.e(f"s_nop 1")
        E.e(f"s_and_b64 vcc, vcc, s[48:49]")
        E.e(f"v_mov_b32 v{t6}, 0x40000000")
        E.e(f"s_nop 0")
        E.e(f"v_cndmask_b32 v{d}, v{t6}, v{d}, vcc")

    dma_last = {}
    def issue_dma(k):
        t, s = divmod(k, 3)
        slot = SLOT0 + (k & 1)*SLOTSZ
        E.c(f"DMA step {k}")
        E.e(f"s_add_u32 s{sBase}, s{sR0}, {8*t-3 & 0xffffffff}")
        E.e(f"s_mul_i32 s{sBase}, s{sBase}, 384")
        E.e(f"s_add_u32 s{sBase}, s{sBase}, s{sC}")
        E.e(f"s_sub_u32 s{sBase}, s{sBase}, 3")
        E.e(f"s_mul_i32 s{sBase}, s{sBase}, 384")
        if s: E.e(f"s_add_u32 s{sBase}, s{sBase}, {128*s}")
        for q in range(7):
            tv = vDT + (q & 1)
            E.e(f"s_add_u32 m0, s{sM0w}, {slot + 1024*q}")
            E.e(f"v_add_u32 v{tv}, s{sBase}, v{vDS+q}")
            if not nodma or q == 0: dma_last[k] = E.vm(f"buffer_load_dwordx4 v{tv}, s[4:7], 0 offen lds")

    issue_dma(0)
    issue_dma(1)

    E.c("X read bases")
    E.e(f"v_lshrrev_b32 v{t0}, 1, v{vN}")
    E.e(f"v_add_u32 v{t0}, s{sW}, v{t0}")
    E.e(f"v_and_b32 v{t0}, 7, v{t0}")
    E.e(f"v_lshlrev_b32 v{t0}, 4, v{t0}")
    E.e(f"v_lshl_add_u32 v{t0}, v{vN}, 7, v{t0}")
    E.e(f"v_mul_u32_u24 v{t1}, 3840, v{vG}")
    E.e(f"v_add_u32 v{vXa}, v{t0}, v{t1}")
    E.e(f"v_add_u32 v{t1}, 12, v{vG}")
    E.e(f"v_min_u32 v{t1}, 13, v{t1}")
    E.e(f"v_mul_u32_u24 v{t1}, 3840, v{t1}")
    E.e(f"v_add_u32 v{vXa3}, v{t0}, v{t1}")
    E.c("T read bases")
    E.e(f"v_lshrrev_b32 v{t0}, 1, v{vN}")
    E.e(f"v_and_b32 v{t1}, 1, v{vN}")
    E.e(f"v_sub_u32 v{t0}, v{vG}, v{t0}")
    E.e(f"s_mul_i32 s{sTmp}, s{sW}, 1920")
    for f in range(4):
        E.e(f"v_add_u32 v{t2}, {4*f}, v{t0}")
        E.e(f"v_lshl_add_u32 v{t3}, v{t2}, 1, v{t1}")
        E.e(f"v_cmp_gt_u32 vcc, 7, v{t2}")
        E.e(f"v_mov_b32 v{t4}, 14")
        E.e(f"s_nop 0")
        E.e(f"v_cndmask_b32 v{t3}, v{t4}, v{t3}, vcc")
        E.e(f"v_lshlrev_b32 v{t3}, 4, v{t3}")
        E.e(f"v_add_u32 v{vT+f}, s{sTmp}, v{t3}")
    E.c("output base: tile-linear h layout [tile][cg][r][48 px][16B]")
    E.e(f"v_mul_u32_u24 v{t0}, 12, v{vG}")
    E.e(f"v_add_u32 v{t0}, v{t0}, v{vN}")
    E.e(f"v_lshlrev_b32 v{t0}, 4, v{t0}")
    E.e(f"s_mul_i32 s{sTmp}, s{sW}, 3072")
    E.e(f"v_add_u32 v{t0}, s{sTmp}, v{t0}")
    E.e(f"v_cmp_gt_u32 vcc, 12, v{vN}")
    E.e(f"v_mov_b32 v{t1}, 0x40000000")
    E.e(f"s_nop 0")
    E.e(f"v_cndmask_b32 v{vOut}, v{t1}, v{t0}, vcc")
    E.e(f"s_mul_i32 s{sLid}, s{sLid}, {3*73728}")

    E.c("T table build")
    lt = f"{name}_tz"; lt2 = f"{name}_tdone"
    E.e(f"s_cmp_eq_u32 s{sW}, 7")
    E.e(f"s_cbranch_scc1 {lt}")
    E.e(f"v_lshlrev_b32 v{t0}, 1, v{vL}")
    E.e(f"s_mul_i32 s{sTmp}, s{sW}, 2688")
    W = 48
    save = (E.nv, E.dv)
    for cb in range(3):
        E.e(f"s_add_u32 s{sTmp2}, s{sTmp}, {128*cb}")
        for j in range(7):
            E.vm(f"buffer_load_ushort v{W+8*cb+j}, v{t0}, s[8:11], s{sTmp2} offen offset:{384*j}")
    E.e(f"v_mul_u32_u24 v{t1}, 240, v{vL}")
    E.e(f"s_lshl_b32 s{sTmp}, s{sW}, 5")
    E.e(f"v_add_u32 v{t1}, s{sTmp}, v{t1}")
    E.e("s_waitcnt vmcnt(0)")
    for cb in range(3):
        w = W + 8*cb
        u = 80
        E.e(f"v_lshl_or_b32 v{u+0}, v{w+1}, 16, v{w+0}")
        E.e(f"v_lshl_or_b32 v{u+1}, v{w+3}, 16, v{w+2}")
        E.e(f"v_lshl_or_b32 v{u+2}, v{w+5}, 16, v{w+4}")
        E.e(f"v_mov_b32 v{u+3}, v{w+6}")
        E.e(f"v_lshlrev_b32 v{u+4}, 16, v{w+0}")
        E.e(f"v_lshl_or_b32 v{u+5}, v{w+2}, 16, v{w+1}")
        E.e(f"v_lshl_or_b32 v{u+6}, v{w+4}, 16, v{w+3}")
        E.e(f"v_lshl_or_b32 v{u+7}, v{w+6}, 16, v{w+5}")
        E.e(f"ds_write_b128 v{t1}, v[{u}:{u+3}] offset:{TBL + cb*64*240}")
        E.e(f"ds_write_b128 v{t1}, v[{u+4}:{u+7}] offset:{TBL + cb*64*240 + 16}")
        E.e("s_nop 1")
    E.e(f"s_branch {lt2}")
    E.label(lt)
    E.e(f"v_mul_u32_u24 v{t1}, 240, v{vL}")
    for i in range(4): E.e(f"v_mov_b32 v{80+i}, 0")
    for cb in range(3):
        E.e(f"ds_write_b128 v{t1}, v[80:83] offset:{TBL + cb*64*240 + 224}")
    E.e("s_waitcnt vmcnt(0)")
    E.label(lt2)
    E.nv = save[0] + 21; E.dv = E.nv
    E.nl += 6; E.dl = 0

    E.c("weight stream prep")
    lp = f"{name}_pdone"; lw2 = f"{name}_pw2"; lst = f"{name}_pst"
    sGw, sJ, sQ, sC2 = 50, 51, 52, 53
    E.e(f"s_lshl_b32 s{sGw}, s2, 3")
    E.e(f"s_add_u32 s{sGw}, s{sGw}, s{sW}")
    E.e(f"s_cmp_ge_u32 s{sGw}, 576")
    E.e(f"s_cbranch_scc1 {lp}")
    E.e(f"s_mul_i32 s{sJ}, s{sGw}, 2731")
    E.e(f"s_lshr_b32 s{sJ}, s{sJ}, 16")
    E.e(f"s_mul_i32 s{sTmp}, s{sJ}, 24")
    E.e(f"s_sub_u32 s{sQ}, s{sGw}, s{sTmp}")
    E.e(f"s_cmp_ge_u32 s{sQ}, 12")
    E.e(f"s_cbranch_scc1 {lw2}")
    srd(E, 16, 40, 41, 192*768*2)
    E.e(f"s_add_u32 s{sC2}, s{sJ}, 1")
    E.e(f"s_cmp_eq_u32 s{sC2}, 24")
    E.e(f"s_cselect_b32 s{sC2}, 0, s{sC2}")
    E.e(f"s_cmp_ge_u32 s{sQ}, 6")
    E.e(f"s_cselect_b32 s{sTmp}, 1, 0")
    E.e(f"s_mul_i32 s{sTmp2}, s{sTmp}, 6")
    E.e(f"s_sub_u32 s{sTmp2}, s{sQ}, s{sTmp2}")
    E.e(f"s_mul_i32 s{sTmp2}, s{sTmp2}, 49152")
    E.e(f"s_lshl_b32 s{sTmp}, s{sTmp}, 5")
    E.e(f"s_add_u32 s{sTmp2}, s{sTmp2}, s{sTmp}")
    E.e(f"s_lshl_b32 s{sTmp}, s{sC2}, 6")
    E.e(f"s_add_u32 s{sTmp2}, s{sTmp2}, s{sTmp}")
    E.e(f"v_mul_u32_u24 v{t0}, 12288, v{vG}")
    E.e(f"v_lshl_add_u32 v{t0}, v{vN}, 1, v{t0}")
    for e in range(8):
        E.e(f"buffer_load_ushort v{48+e}, v{t0}, s[16:19], s{sTmp2} offen")
        if e < 7: E.e(f"s_add_u32 s{sTmp2}, s{sTmp2}, 1536")
    E.e(f"s_branch {lst}")
    E.label(lw2)
    srd(E, 16, 42, 43, 192*768*2)
    E.e(f"s_add_u32 s{sC2}, s{sJ}, 23")
    E.e(f"s_cmp_ge_u32 s{sC2}, 24")
    E.e(f"s_cselect_b32 s{sTmp}, 24, 0")
    E.e(f"s_sub_u32 s{sC2}, s{sC2}, s{sTmp}")
    E.e(f"s_sub_u32 s{sTmp}, s{sQ}, 12")
    E.e(f"s_lshr_b32 s{sTmp2}, s{sTmp}, 1")
    E.e(f"s_lshl_b32 s{sTmp2}, s{sTmp2}, 6")
    E.e(f"s_and_b32 s{sTmp}, s{sTmp}, 1")
    E.e(f"s_lshl_b32 s{sTmp}, s{sTmp}, 3")
    E.e(f"s_add_u32 s{sTmp2}, s{sTmp2}, s{sTmp}")
    E.e(f"s_mul_i32 s{sTmp}, s{sC2}, 12288")
    E.e(f"s_add_u32 s{sTmp2}, s{sTmp2}, s{sTmp}")
    E.e(f"v_lshrrev_b32 v{t1}, 2, v{vN}")
    E.e(f"v_and_b32 v{t2}, 3, v{vN}")
    E.e(f"v_lshl_add_u32 v{t1}, v{t1}, 3, v{t2}")
    E.e(f"v_mul_u32_u24 v{t0}, 1536, v{vG}")
    E.e(f"v_lshl_add_u32 v{t0}, v{t1}, 1, v{t0}")
    for e in range(8):
        if e == 4: E.e(f"s_add_u32 s{sTmp2}, s{sTmp2}, 6144")
        E.e(f"buffer_load_ushort v{48+e}, v{t0}, s[16:19], s{sTmp2} offen offset:{384*(e&3)}")
    E.label(lst)
    E.e("s_waitcnt vmcnt(0)")
    for d in range(4):
        E.e(f"v_lshl_or_b32 v{56+d}, v{48+2*d+1}, 16, v{48+2*d}")
    E.e(f"s_mul_i32 s{sTmp}, s{sJ}, 24576")
    E.e(f"s_lshl_b32 s{sTmp2}, s{sQ}, 10")
    E.e(f"s_add_u32 s{sTmp}, s{sTmp}, s{sTmp2}")
    E.e(f"buffer_store_dwordx4 v[56:59], v{vL16}, s[20:23], s{sTmp} offen")
    E.e("s_waitcnt vmcnt(0)")
    E.label(lp)

    st("prologue done")
    def compute(k):
        t, s = divmod(k, 3)
        slot = SLOT0 + (k & 1)*SLOTSZ
        E.c(f"==== compute step {k} (tile {t}, cgset {s})")
        E.e(f"v_add_u32 v{vXc}, {slot}, v{vXa}")
        E.e(f"v_add_u32 v{vXc3}, {slot}, v{vXa3}")
        def rd_eo(f):
            b = EO + 8*(f & 1)
            a = vXc3 if f == 3 else vXc
            off = 0 if f == 3 else f*15360
            E.ds(f"ds_read_b128 v[{b}:{b+3}], v{a} offset:{off}")
            return E.ds(f"ds_read_b128 v[{b+4}:{b+7}], v{a} offset:{off+1920}")
        def rd_t(idx):
            f, c = divmod(idx, 8)
            r = Tr + 4*(idx & 3)
            return E.ds(f"ds_read_b128 v[{r}:{r+3}], v{vT+f} offset:{TBL + s*15360 + c*240}")
        eo = {0: rd_eo(0)}
        tt = {}
        for i in range(3): tt[i] = rd_t(i)
        eo[1] = rd_eo(1)
        def mfma(f, c):
            idx = f*8 + c
            E.wait(l=tt[idx])
            a = ACC + 4*(8*s + c); r = Tr + 4*(idx & 3); b = Bf + 4*c
            src = "0" if f == 0 else f"v[{a}:{a+3}]"
            E.e(f"v_mfma_f32_16x16x32_bf16 v[{a}:{a+3}], v[{r}:{r+3}], v[{b}:{b+3}], {src}")
            if idx + 3 < 32: tt[idx+3] = rd_t(idx+3)
        for f in range(4):
            b = EO + 8*(f & 1)
            E.wait(l=eo[f])
            for cp in range(4):
                E.e(f"v_perm_b32 v{Bf+4*(2*cp)}, v{b+4+cp}, v{b+cp}, s{sSelLo}")
                E.e(f"v_perm_b32 v{Bf+4*(2*cp+1)}, v{b+4+cp}, v{b+cp}, s{sSelHi}")
            if f + 2 < 4: eo[f+2] = rd_eo(f+2)
            for c in range(8):
                bb = Bf + 4*c
                for d in (1, 2, 3):
                    E.e(f"v_mov_b32_dpp v{bb+d}, v{bb} row_shl:{d} row_mask:0xf bank_mask:0xf bound_ctrl:1")
                if c > 0: mfma(f, c-1)
            E.e("s_nop 1")
            mfma(f, 7)

    def layernorm(k):
        t = k // 3
        slot = SLOT0 + (k & 1)*SLOTSZ
        E.c(f"==== layernorm tile {t}")
        E.e("s_nop 7")
        for r in range(4):
            E.e(f"v_mov_b32 v{ST+r}, v{ACC+r}")
            E.e(f"v_mul_f32 v{ST+4+r}, v{ACC+r}, v{ACC+r}")
        for ch in range(1, 24):
            for r in range(4):
                a = ACC + 4*ch + r
                E.e(f"v_add_f32 v{ST+r}, v{ST+r}, v{a}")
                E.e(f"v_fmac_f32 v{ST+4+r}, v{a}, v{a}")
        E.e(f"v_add_u32 v{t0}, {slot}, v{vL16}")
        E.e(f"s_lshl_b32 s{sTmp}, s{sW}, 11")
        E.e(f"v_add_u32 v{t1}, s{sTmp}, v{t0}")
        E.wait_all_lds(force=True)
        E.e("s_barrier")
        E.ds(f"ds_write_b128 v{t1}, v[{ST}:{ST+3}]")
        E.ds(f"ds_write_b128 v{t1}, v[{ST+4}:{ST+7}] offset:1024")
        E.wait_all_lds()
        E.e("s_barrier")
        R = 48
        ids = []
        for w in range(8):
            E.ds(f"ds_read_b128 v[{R+8*(w&3)}:{R+8*(w&3)+3}], v{t0} offset:{2048*w}")
            ids.append(E.ds(f"ds_read_b128 v[{R+8*(w&3)+4}:{R+8*(w&3)+7}], v{t0} offset:{2048*w+1024}"))
            if (w & 3) == 3:
                E.wait_all_lds()
                for ww in range(4):
                    for r in range(8):
                        if w == 3 and ww == 0: E.e(f"v_mov_b32 v{ST+r}, v{R+r}")
                        else: E.e(f"v_add_f32 v{ST+r}, v{ST+r}, v{R+8*ww+r}")
        E.e("s_barrier")
        if k + 2 <= 8: issue_dma(k + 2)
        E.e(f"s_mov_b32 s{sTmp}, {f2u(1.0/192):#x}")
        E.e(f"s_mov_b32 s{sTmp2}, {f2u(1e-5):#x}")
        E.e(f"s_mov_b32 s{sTmp3}, {f2u(S_):#x}")
        for r in range(4):
            m, q, rho, beta = ST+r, ST+4+r, ST+8+r, ST+12+r
            E.e(f"v_mul_f32 v{m}, s{sTmp}, v{m}")
            E.e(f"v_mul_f32 v{q}, s{sTmp}, v{q}")
            E.e(f"v_fma_f32 v{q}, -v{m}, v{m}, v{q}")
            E.e(f"v_max_f32 v{q}, 0, v{q}")
            E.e(f"v_add_f32 v{q}, s{sTmp2}, v{q}")
            E.e(f"v_rsq_f32 v{rho}, v{q}")
            E.e(f"s_nop 0")
            E.e(f"v_mul_f32 v{rho}, s{sTmp3}, v{rho}")
            E.e(f"v_mul_f32 v{beta}, v{m}, v{rho}")
        for cg in range(3):
            E.e(f"s_add_u32 s{54+cg}, s{sLid}, {t*73728 + cg*8*3072}")
        for cg in range(3):
            for r in range(4):
                o = 48 + 4*((cg*4 + r) & 7)
                for cp in range(4):
                    a0 = ACC + 4*(8*cg + 2*cp) + r; a1 = a0 + 4
                    E.e(f"v_fma_f32 v{t2}, v{a0}, v{ST+8+r}, -v{ST+12+r}")
                    E.e(f"v_fma_f32 v{t3}, v{a1}, v{ST+8+r}, -v{ST+12+r}")
                    E.e(f"v_cvt_pk_bf16_f32 v{o+cp}, v{t2}, v{t3}")
                so = 54 + cg
                if not nostore or (cg == 0 and r == 0): E.vm(f"buffer_store_dwordx4 v[{o}:{o+3}], v{vOut}, s[12:15], s{so} offen offset:{r*768}")

    for k in range(9):
        E.wait(v=dma_last[k])
        E.wait_all_lds(force=True)
        E.e("s_barrier")
        st(f"step{k} ready")
        if not nocompute: compute(k)
        st(f"step{k} computed")
        if k % 3 == 2:
            layernorm(k)
            st(f"ln{k//3} done")
        else:
            E.wait_all_lds(force=True)
            E.e("s_barrier")
            if k + 2 <= 8: issue_dma(k + 2)
    if stamp:
        E.e("s_waitcnt vmcnt(0)")
        st("stores done")
        E.e(f"s_add_u32 s46, s44, {240<<20}")
        E.e("s_addc_u32 s47, s45, 0")
        srd(E, 16, 46, 47, 1 << 20)
        E.e(f"s_lshl_b32 s{sTmp}, s2, 3")
        E.e(f"s_add_u32 s{sTmp}, s{sTmp}, s{sW}")
        E.e(f"s_lshl_b32 s{sTmp}, s{sTmp}, 8")
        E.e(f"v_lshlrev_b32 v{t0}, 2, v{vL}")
        E.e(f"buffer_store_dword v209, v{t0}, s[16:19], s{sTmp} offen")
        E.stamps = stamps
        global STAMPS; STAMPS = stamps
    E.label(f"{name}_end")
    E.e("s_endpgm")
    return header(name) + E.text() + descriptor(name, 216)

if __name__ == "__main__":
    print(gen_k1("k1_conv_kernel"))
```

```python
from em import *
import math
A_ = 2*math.sqrt(2/math.pi)*math.log2(math.e); B_ = A_*0.044715; S_ = B_**(1/3)
XBYTES = 384*384*384
WS_H = 1 << 20
SLOT = 24576
RING = 0
GBUF = 3*SLOT
K2_LDS = GBUF + 2*12288
NROUND = 3
D = 3

def mfma(d, a, b, c=None):
    src = "0" if c is None else f"v[{c}:{c+3}]"
    return f"v_mfma_f32_16x16x32_bf16 v[{d}:{d+3}], v[{a}:{a+3}], v[{b}:{b+3}], {src}"

def gen_k2(name, stamp=False, prio=True, nogelu=False):
    E = Em()
    sW, sPair = 3, 4
    sTmp, sTmp2, sTmp3 = 5, 6, 7
    sNegA, sS = 24, 25
    sTile = 26
    sSlot = 27
    sCnt, sRound = 28, 29
    sXo = 30
    sDw = 33
    sSo = 34
    vL, vN, vG, vL16 = 1, 2, 3, 4
    t0, t1, t2, t3 = 5, 6, 7, 8

    E.e("s_cmp_ge_u32 s2, 256")
    E.e(f"s_cbranch_scc1 {name}_end")
    stamps = []
    def st(tag, reg=30):
        if not stamp: return
        i = len(stamps); stamps.append(tag)
        E.e("s_memtime s[96:97]")
        E.e("s_waitcnt lgkmcnt(0)")
        E.e(f"v_writelane_b32 v{reg}, s96, {i % 64}")
        E.dl = E.nl
    E.e("s_load_dwordx2 s[36:37], s[0:1], 0")
    E.e("s_load_dwordx2 s[38:39], s[0:1], 32")
    E.e("s_load_dwordx2 s[40:41], s[0:1], 48")
    E.e(f"v_lshrrev_b32 v{t0}, 6, v0")
    E.e(f"v_and_b32 v{vL}, 63, v0")
    E.e(f"v_readfirstlane_b32 s{sW}, v{t0}")
    E.e(f"v_and_b32 v{vN}, 15, v{vL}")
    E.e(f"v_lshrrev_b32 v{vG}, 4, v{vL}")
    E.e(f"v_lshlrev_b32 v{vL16}, 4, v{vL}")
    E.e(f"s_and_b32 s{sPair}, s{sW}, 3")
    E.e(f"s_mov_b32 s{sNegA}, {f2u(-A_/S_):#x}")
    E.e(f"s_mov_b32 s{sS}, {f2u(S_):#x}")
    E.e(f"s_and_b32 s{sTmp}, s2, 7")
    E.e(f"s_lshl_b32 s{sTmp}, s{sTmp}, 5")
    E.e(f"s_lshr_b32 s{sTmp2}, s2, 3")
    E.e(f"s_add_u32 s{sTmp}, s{sTmp}, s{sTmp2}")
    E.e(f"s_lshr_b32 s44, s{sTmp}, 4")
    E.e(f"s_mul_i32 s44, s44, 24")
    E.e(f"s_and_b32 s45, s{sTmp}, 15")
    E.e(f"s_mul_i32 s45, s45, 24")
    E.e(f"s_mul_i32 s{sTile}, s{sTmp}, 3")
    E.e("s_waitcnt lgkmcnt(0)")
    srd(E, 8, 40, 41, 24*SLOT)
    E.e(f"s_add_u32 s42, s40, {WS_H}")
    E.e("s_addc_u32 s43, s41, 0")
    srd(E, 12, 42, 43, XBYTES)
    srd(E, 16, 36, 37, XBYTES)
    srd(E, 20, 38, 39, XBYTES)
    if stamp: E.e("v_mov_b32 v30, 0")
    st("start")
    E.e(f"s_cmp_ge_u32 s{sW}, 4")
    E.e(f"s_cbranch_scc1 {name}_C")

    XA, XB = 112, 184
    S = 88
    G = 76
    AR = 60
    TT = 52
    vA, vGw, vXo = 9, 10, 11
    if prio: E.e("s_setprio 1")
    E.e(f"v_mul_u32_u24 v{vXo}, 3072, v{vG}")
    E.e(f"v_lshl_add_u32 v{vXo}, v{vN}, 4, v{vXo}")
    E.e(f"s_mul_i32 s{sTmp}, s{sPair}, 768")
    E.e(f"v_add_u32 v{vXo}, s{sTmp}, v{vXo}")
    def load_x(base, tile_add):
        E.e(f"s_add_u32 s{sTmp}, s{sTile}, {tile_add}")
        E.e(f"s_mul_i32 s{sTmp}, s{sTmp}, 73728")
        last = None
        for ks in range(6):
            if ks: E.e(f"s_add_u32 s{sTmp}, s{sTmp}, 12288")
            for nt in range(3):
                r = base + (ks*3+nt)*4
                last = E.vm(f"buffer_load_dwordx4 v[{r}:{r+3}], v{vXo}, s[12:15], s{sTmp} offen offset:{nt*256}")
        return last
    load_x(XA, 0)
    E.e(f"s_mul_i32 s{sTmp}, s{sPair}, 3072")
    E.e(f"s_add_u32 s{sTmp}, s{sTmp}, {GBUF + 12288}")
    E.e(f"v_add_u32 v{vGw}, s{sTmp}, v{vL16}")
    E.e(f"s_mov_b32 s{sSlot}, {2*SLOT}")
    E.e(f"v_add_u32 v{vA}, s{sSlot}, v{vL16}")
    E.wait_all_vm()
    E.e("s_barrier")
    st("P B-1")
    rd = {}
    def a_read(f):
        r = AR + 4*(f & 3)
        return E.ds(f"ds_read_b128 v[{r}:{r+3}], v{vA} offset:{(f % 12)*1024}")
    for f in range(D): rd[f] = a_read(f)

    def gelu_ops(uA, uB, ta, tb, gdst):
        if nogelu:
            return [f"v_cvt_pk_bf16_f32 v{gdst}, v{uA}, v{uB}"]
        return [f"v_fma_f32 v{ta}, -v{uA}, v{uA}, s{sNegA}", f"v_fma_f32 v{tb}, -v{uB}, v{uB}, s{sNegA}",
                f"v_mul_f32 v{ta}, v{ta}, v{uA}", f"v_mul_f32 v{tb}, v{tb}, v{uB}",
                f"v_exp_f32 v{ta}, v{ta}", f"v_exp_f32 v{tb}, v{tb}",
                f"v_fma_f32 v{ta}, v{ta}, s{sS}, s{sS}", f"v_fma_f32 v{tb}, v{tb}, s{sS}, s{sS}",
                f"v_rcp_f32 v{ta}, v{ta}", f"v_rcp_f32 v{tb}, v{tb}",
                f"v_mul_f32 v{ta}, v{uA}, v{ta}", f"v_mul_f32 v{tb}, v{uB}, v{tb}",
                f"v_cvt_pk_bf16_f32 v{gdst}, v{ta}, v{tb}"]

    def p_stage(X):
        nonlocal rd
        nrd = {}
        for f in range(12):
            ht, ks = divmod(f, 6)
            q = (f + 6) % 12
            qh, qq = divmod(q, 6); qn, qi = divmod(qq, 2)
            sreg = S + (qh*3 + qn)*4 + 2*qi
            gd = G + qn*4 + 2*qh + qi
            ta = TT + 2*(f & 1)
            ops = gelu_ops(sreg, sreg+1, ta, ta+1, gd)
            segs = [ops[0:5], ops[5:9], ops[9:]] if len(ops) > 1 else [[], [], ops]
            ar = AR + 4*(f & 3)
            E.wait(l=rd[f])
            for nt in range(3):
                d = S + (ht*3 + nt)*4
                E.e(mfma(d, ar, X + (ks*3+nt)*4, None if ks == 0 else d))
                if nt == 0:
                    if f + D == 12:
                        E.wait_all_lds(force=True)
                        E.e("s_barrier")
                        E.e(f"s_add_u32 s{sSlot}, s{sSlot}, {SLOT}")
                        E.e(f"s_cmp_eq_u32 s{sSlot}, {3*SLOT}")
                        E.e(f"s_cselect_b32 s{sSlot}, 0, s{sSlot}")
                        E.e(f"v_add_u32 v{vA}, s{sSlot}, v{vL16}")
                    if f + D < 12: rd[f+D] = a_read(f+D)
                    else: nrd[f+D-12] = a_read(f+D-12)
                for o in segs[nt]: E.e(o)
            if qh == 1 and qi == 1:
                g = G + qn*4
                E.ds(f"ds_write_b128 v{vGw}, v[{g}:{g+3}] offset:{qn*1024}")
        rd = nrd

    vGw0, vGw1 = 12, 13
    E.e(f"v_mov_b32 v{vGw1}, v{vGw}")
    E.e(f"v_subrev_u32 v{vGw0}, 12288, v{vGw}")
    def toggle():
        E.e(f"v_add_u32 v{t0}, v{vGw0}, v{vGw1}")
        E.e(f"v_sub_u32 v{vGw}, v{t0}, v{vGw}")

    def p_loop(lbl, X):
        save = len(E.L)
        p_stage(X); toggle()
        del E.L[save:]
        E.e(f"s_mov_b32 s{sCnt}, 24")
        E.L.append(".p2align 6")
        E.label(lbl)
        b0 = len(E.L)
        p_stage(X); toggle()
        body2 = E.L[b0:]
        E.e(f"s_sub_u32 s{sCnt}, s{sCnt}, 1")
        E.e(f"s_cmp_lg_u32 s{sCnt}, 0")
        E.e(f"s_cbranch_scc1 {lbl}")
        save = len(E.L); p_stage(X); toggle()
        assert E.L[save:] == body2
        del E.L[save:]

    E.e(f"s_mov_b32 s{sRound}, 0")
    E.label(f"{name}_PA")
    E.e(f"s_cmp_eq_u32 s{sRound}, 2")
    E.e(f"s_cbranch_scc1 {name}_PA2")
    load_x(XB, 1)
    E.label(f"{name}_PA2")
    p_loop(f"{name}_PLA", XA)
    st("P round A done")
    E.e(f"s_cmp_eq_u32 s{sRound}, 2")
    E.e(f"s_cbranch_scc1 {name}_Pfin")
    E.e("s_waitcnt vmcnt(0)")
    load_x(XA, 2)
    p_loop(f"{name}_PLB", XB)
    E.e("s_waitcnt vmcnt(0)")
    E.e(f"s_mov_b32 s{sRound}, 2")
    E.e(f"s_branch {name}_PA")
    E.label(f"{name}_Pfin")
    p_stage(XA)
    st("P done")
    if stamp: stamp_out(E, name, 40, sW, vL, t0, sTmp, "P")
    E.e("s_endpgm")

    E.label(f"{name}_C")
    E.nl = E.dl = E.nv = E.dv = 0
    O = 112
    GI = 88
    CR = 72
    ID = 64
    RS = 40
    vA0, vA2, vGr, vDo = 9, 10, 11, 12
    vPx = 13
    def Oreg(u, nt, p): return O + ((u*3+nt)*2+p)*4
    E.e(f"s_sub_u32 s{sTmp}, s{sW}, 4")
    E.e(f"s_mul_i32 s{sDw}, s{sTmp}, 6144")
    E.e(f"v_add_u32 v{vDo}, s{sDw}, v{vL16}")
    E.e(f"v_mov_b32 v{vA0}, v{vL16}")
    E.e(f"v_add_u32 v{vA2}, {2*SLOT}, v{vL16}")
    E.e(f"s_mul_i32 s{sTmp}, s{sPair}, 3072")
    E.e(f"s_add_u32 s{sTmp}, s{sTmp}, {GBUF}")
    E.e(f"v_add_u32 v{vGr}, s{sTmp}, v{vL16}")
    dma = {}
    def issue_dma(J):
        j = J % 24; slot = (J % 3)*SLOT
        for grp, cnt in ((0, 4), (4, 2)):
            E.e(f"s_add_u32 m0, s{sDw}, {slot + grp*1024}")
            E.e(f"s_mov_b32 s{sSo}, {j*SLOT + grp*1024}")
            for i in range(cnt):
                dma[J] = E.vm(f"buffer_load_dwordx4 v{vDo}, s[8:11], s{sSo} offen offset:{i*1024} lds")
    issue_dma(-1); issue_dma(0)
    E.e(f"s_lshr_b32 s{sTmp}, s{sPair}, 1")
    E.e(f"s_add_u32 s44, s44, s{sTmp}")
    E.e(f"s_and_b32 s{sTmp}, s{sPair}, 1")
    E.e(f"s_add_u32 s45, s45, s{sTmp}")
    for nt in range(3):
        E.e(f"v_add_u32 v{t0}, {16*nt}, v{vN}")
        E.e(f"v_mul_u32_u24 v{t1}, 43, v{t0}")
        E.e(f"v_lshrrev_b32 v{t1}, 9, v{t1}")
        E.e(f"v_mul_u32_u24 v{t2}, 12, v{t1}")
        E.e(f"v_sub_u32 v{t2}, v{t0}, v{t2}")
        E.e(f"v_lshl_add_u32 v{t1}, v{t1}, 1, s44")
        E.e(f"v_lshl_add_u32 v{t2}, v{t2}, 1, s45")
        E.e(f"v_mul_u32_u24 v{t1}, 384, v{t1}")
        E.e(f"v_add_u32 v{t1}, v{t1}, v{t2}")
        E.e(f"v_mul_u32_u24 v{t1}, 384, v{t1}")
        E.e(f"v_lshl_add_u32 v{vPx+nt}, v{vG}, 4, v{t1}")
    E.e(f"v_lshrrev_b32 v{t0}, 2, v{vN}")
    E.e(f"v_and_b32 v{t1}, 3, v{vN}")
    E.e(f"v_and_b32 v{t2}, 1, v{t1}")
    E.e(f"v_lshlrev_b32 v{t2}, 4, v{t2}")
    E.e(f"v_mov_b32 v{t3}, 0x3f80")
    E.e(f"v_lshlrev_b32 v{t3}, v{t2}, v{t3}")
    E.e(f"v_cmp_eq_u32 vcc, v{t0}, v{vG}")
    E.e(f"v_mov_b32 v{t2}, 0")
    E.e("s_nop 0")
    E.e(f"v_cndmask_b32 v{t3}, v{t2}, v{t3}, vcc")
    E.e(f"v_cmp_gt_u32 vcc, 2, v{t1}")
    E.e("s_nop 1")
    E.e(f"v_cndmask_b32 v{ID+2}, v{t2}, v{t3}, vcc")
    E.e(f"v_cndmask_b32 v{ID+3}, v{t3}, v{t2}, vcc")
    for i in (0, 1, 4, 5): E.e(f"v_mov_b32 v{ID+i}, 0")
    sRow = 46
    E.e(f"s_mov_b32 s{sRow}, 0")
    E.e(f"s_mov_b32 s{sRound}, 0")
    E.wait(v=dma[-1])
    E.e("s_barrier")
    issue_dma(1)
    E.wait(v=dma[0])
    E.e("s_barrier")
    issue_dma(2)
    E.wait(v=dma[1])
    E.e("s_barrier")
    st("C B1")
    issue_dma(3)
    crd = {}; grd = {}
    def c_aread(k, mt):
        slot = (k+1) % 3
        base, off = (vA2, 0) if slot == 2 else (vA0, slot*SLOT)
        r = CR + 4*(mt & 3)
        return E.ds(f"ds_read_b128 v[{r}:{r+3}], v{base} offset:{off + 12288 + mt*1024}")
    def c_gread(k):
        last = None
        for nt in range(3):
            r = GI + 12*(k & 1) + 4*nt
            last = E.ds(f"ds_read_b128 v[{r}:{r+3}], v{vGr} offset:{(k & 1)*12288 + nt*1024}")
        return last
    grd[0] = c_gread(0)
    for mt in range(D): crd[(0, mt)] = c_aread(0, mt)

    def c_round():
        resid = {}
        for k in range(24):
            J = k + 1
            for mt in range(12):
                u, p = divmod(mt, 2)
                E.wait(l=max(crd[(k, mt)], grd[k]))
                ar = CR + 4*(mt & 3)
                for nt in range(3):
                    o = Oreg(u, nt, p)
                    E.e(mfma(o, ar, GI + 12*(k & 1) + 4*nt, None if k == 0 else o))
                    if nt == 0:
                        if mt + D == 12:
                            E.wait(v=dma[J+1])
                            E.wait_all_lds(force=True)
                            E.e("s_barrier")
                            issue_dma(J + 3)
                            grd[k+1] = c_gread(k+1)
                        if mt + D < 12: crd[(k, mt+D)] = c_aread(k, mt+D)
                        else: crd[(k+1, mt+D-12)] = c_aread(k+1, mt+D-12)
                if mt == 3 and k >= 2 and k % 2 == 0 and (k-2)//2 < 6:
                    uu = (k-2)//2
                    for nt in range(3):
                        r = RS + 12*(uu & 1) + 4*nt
                        resid[uu] = E.vm(f"buffer_load_dwordx4 v[{r}:{r+3}], v{vPx+nt}, s[16:19], s{sRow} offen offset:{uu*64}")
                if mt == 5 and k >= 5 and k % 2 == 1 and (k-5)//2 < 6:
                    uu = (k-5)//2
                    E.wait(v=resid[uu])
                    for nt in range(3):
                        r = RS + 12*(uu & 1) + 4*nt
                        for p2 in range(2):
                            o = Oreg(uu, nt, p2)
                            E.e(mfma(o, ID + (2 if p2 == 0 else 0), r, o))
        E.c("epilogue")
        E.e("s_nop 7")
        for u in range(6):
            for nt in range(3):
                o = Oreg(u, nt, 0)
                for d in range(4):
                    E.e(f"v_cvt_pk_bf16_f32 v{o+d}, v{o+2*d}, v{o+2*d+1}")
                E.vm(f"buffer_store_dwordx4 v[{o}:{o+3}], v{vPx+nt}, s[20:23], s{sRow} offen offset:{u*64}")
        crd_n = {(0, mt): crd[(24, mt)] for mt in range(D)}
        g_n = grd[24]
        d_n = {J-24: v for J, v in dma.items() if J >= 24}
        crd.clear(); crd.update(crd_n); grd.clear(); grd[0] = g_n
        dma.clear(); dma.update(d_n)

    save = len(E.L); c_round(); del E.L[save:]
    E.L.append(".p2align 6")
    E.label(f"{name}_CL")
    b0 = len(E.L)
    c_round()
    body = E.L[b0:]
    st("C round done")
    E.e(f"s_add_u32 s{sRow}, s{sRow}, {8*147456}")
    E.e(f"s_add_u32 s{sRound}, s{sRound}, 1")
    E.e(f"s_cmp_lt_u32 s{sRound}, {NROUND}")
    E.e(f"s_cbranch_scc1 {name}_CL")
    if not stamp:
        save = len(E.L); c_round(); assert E.L[save:] == body; del E.L[save:]
    if stamp:
        E.e("s_waitcnt vmcnt(0)")
        st("C done")
        stamp_out(E, name, 40, sW, vL, t0, sTmp, "C")
    E.label(f"{name}_end")
    E.e("s_endpgm")
    if stamp:
        global STAMPS; STAMPS = stamps
    return header(name) + E.text() + descriptor(name, 256)

def stamp_out(E, name, wsreg, sW, vL, t0, sTmp, tag):
    E.e(f"s_add_u32 s46, s{wsreg}, {240<<20}")
    E.e(f"s_addc_u32 s47, s{wsreg+1}, 0")
    srd(E, 48, 46, 47, 1 << 20)
    E.e(f"s_lshl_b32 s{sTmp}, s2, 3")
    E.e(f"s_add_u32 s{sTmp}, s{sTmp}, s{sW}")
    E.e(f"s_lshl_b32 s{sTmp}, s{sTmp}, 8")
    E.e(f"v_lshlrev_b32 v{t0}, 2, v{vL}")
    E.e(f"buffer_store_dword v30, v{t0}, s[48:51], s{sTmp} offen")

if __name__ == "__main__":
    print(gen_k2("k2_mlp_kernel"))
```

```python
import sys
from k1 import gen_k1, K1_LDS
from k2 import gen_k2, K2_LDS
MAIN='standalone__convnext_block__vision_kernel'
HDR = """; Kernarg layout for this problem (56 bytes, ptrs only, base s[0:1]):
"""
def make(kernels):
    s = HDR
    for name, grid, block, lds, _ in kernels:
        s += f"; @launch kernel={name} grid=({grid},1,1) block=({block},1,1) lds={lds}\n"
    s += '.amdgcn_target "amdgcn-amd-amdhsa--gfx950"\n.text\n'
    for k in kernels: s += k[4]
    return s
if __name__ == "__main__":
    if len(sys.argv) > 2 and sys.argv[2] == "var":
        ks = [(n, 256, 512, K1_LDS, gen_k1(n, **kw)) for n, kw in (("k1_base_kernel", {}), ("k1_nostore_kernel", dict(nostore=True)), ("k1_nocompute_kernel", dict(nocompute=True)), ("k1_nodma_kernel", dict(nodma=True)), ("k1_nodmanostore_kernel", dict(nodma=True, nostore=True)), ("k1_nocompnostore_kernel", dict(nocompute=True, nostore=True)))]
    elif len(sys.argv) > 2 and sys.argv[2] == "stamp":
        import k1
        ks = [("k1_stamp_kernel", 256, 512, K1_LDS, gen_k1("k1_stamp_kernel", stamp=True))]
        open("stamps.txt", "w").write("\n".join(k1.STAMPS))
    elif len(sys.argv) > 2 and sys.argv[2] == "full":
        ks = [("k1_conv_kernel", 256, 512, K1_LDS, gen_k1("k1_conv_kernel")), (MAIN, 256, 512, K2_LDS, gen_k2(MAIN))]
    elif len(sys.argv) > 2 and sys.argv[2] == "stamp2":
        import k2
        ks = [("k1_conv_kernel", 256, 512, K1_LDS, gen_k1("k1_conv_kernel")), (MAIN, 256, 512, K2_LDS, gen_k2(MAIN, stamp=True))]
        open("stamps.txt", "w").write("\n".join(k2.STAMPS))
    else:
        ks = [("k1_conv_kernel", 256, 512, K1_LDS, gen_k1("k1_conv_kernel"))]
    open(sys.argv[1], "w").write(make(ks))
```

```python
from em import *
import math
A_ = 2*math.sqrt(2/math.pi)*math.log2(math.e); B_ = A_*0.044715; S_ = B_**(1/3)
XBYTES = 384*384*384
SLOT = 24576; NS = 3
GBUF = NS*SLOT
PBUF = GBUF + 24576
XA, XB = PBUF, 0
T1LOC, T0LOC = 57344, GBUF
HLOC = GBUF
STLOC = 147456
F1_LDS = 163840
NROUND = 3
D = 3

def mfma(d, a, b, c=None):
    src = "0" if c is None else f"v[{c}:{c+3}]"
    return f"v_mfma_f32_16x16x32_bf16 v[{d}:{d+3}], v[{a}:{a+3}], v[{b}:{b+3}], {src}"

def gen_f1(name, stamp=False, f16=False, psched={9: 3, 5: 2, 7: 1, 8: 0}, wsite=(9, 11, 1), rsite=4, xsite=3, wait2=True, strip=(), inprep=True, pkln=True, pf=(14, 17), nprod=72):
    E = Em()
    sW, sPair, sHb = 3, 33, 35
    sTmp, sTmp2, sTmp3 = 24, 25, 28
    sSelLo, sSelHi = 26, 27
    sNegA, sS, sAh, sSh = 29, 30, 52, 53
    sR0, sC0 = 44, 45
    sBase = 31
    sTileRow = 32
    sRowP, sRowC, sRound = 54, 55, 56
    sDw, sSo, sM0w, sDwo = 57, 34, 58, 59
    vL16 = 1; vDS = 2; vXa, vXa3 = 9, 10; vT = 11; vHw = 15
    vA0, vA2, vGr, vGw, vDo = 16, 17, 18, 19, 20
    vPx = 21; ID = 24; t0, t1 = 30, 31
    TT, GT, RS, AR, GI, S, X, O = 32, 36, 40, 52, 68, 80, 104, 176
    RAW2 = 248
    STAMP = 255
    RAW0, RAW1 = X, X + 8
    def Oreg(i, nt): return O + (((i >> 1)*3 + nt)*2 + (i & 1))*4
    packed = [Oreg(2*u, nt) for u in range(3) for nt in range(3)]
    free = [q for q in range(32, 248, 4) if q not in packed]
    ACC = free[:24]; Bq = free[24:32]; EOq = free[32:36]; Tq = free[36:40]
    CT = free[40:45]
    assert all(EOq[i+1] == EOq[i] + 4 for i in (0, 2)) or True

    stamps = []
    def st(tag, dyn=False):
        if not stamp: return
        if dyn:
            base = len(stamps)
            for r in range(NROUND): stamps.append(f"{tag} r{r}")
            E.e(f"s_add_u32 m0, s{sRound}, {base}")
            E.e("s_memtime s[96:97]"); E.e("s_waitcnt lgkmcnt(0)")
            E.e(f"v_writelane_b32 v{STAMP}, s96, m0")
            E.e("s_add_u32 m0, m0, 32")
            E.e("s_memrealtime s[96:97]"); E.e("s_waitcnt lgkmcnt(0)")
            E.e(f"v_writelane_b32 v{STAMP}, s96, m0")
        else:
            i = len(stamps); stamps.append(tag)
            E.e("s_memtime s[96:97]"); E.e("s_waitcnt lgkmcnt(0)")
            E.e(f"v_writelane_b32 v{STAMP}, s96, {i}")
            E.e("s_memrealtime s[96:97]"); E.e("s_waitcnt lgkmcnt(0)")
            E.e(f"v_writelane_b32 v{STAMP}, s96, {32+i}")
        E.dl = E.nl

    E.e("s_cmp_ge_u32 s2, 256")
    E.e(f"s_cbranch_scc1 {name}_end")
    E.e("s_load_dwordx4 s[36:39], s[0:1], 0")
    E.e("s_load_dwordx2 s[40:41], s[0:1], 32")
    E.e("s_load_dwordx2 s[42:43], s[0:1], 48")
    if inprep:
        E.e("s_load_dwordx4 s[72:75], s[0:1], 16")
        E.e("s_load_dwordx2 s[76:77], s[0:1], 40")
    vL, vN, vG = 32, 33, 34
    a, b, c, d_, e_, f_, g_ = 35, 36, 37, 38, 39, 40, 41
    E.e(f"v_lshrrev_b32 v{a}, 6, v0")
    E.e(f"v_and_b32 v{vL}, 63, v0")
    E.e(f"v_readfirstlane_b32 s{sW}, v{a}")
    E.e(f"v_and_b32 v{vN}, 15, v{vL}")
    E.e(f"v_lshrrev_b32 v{vG}, 4, v{vL}")
    E.e(f"v_lshlrev_b32 v{vL16}, 4, v{vL}")
    E.e(f"s_and_b32 s{sPair}, s{sW}, 3")
    E.e(f"s_lshr_b32 s{sHb}, s{sW}, 2")
    E.e(f"s_mov_b32 s{sSelLo}, 0x05040100")
    E.e(f"s_mov_b32 s{sSelHi}, 0x07060302")
    E.e(f"s_mov_b32 s{sNegA}, {f2u(-A_/S_):#x}")
    E.e(f"s_mov_b32 s{sS}, {f2u(S_):#x}")
    if f16:
        import numpy as np
        h16 = lambda x: int(np.array([x], np.float16).view(np.uint16)[0])
        E.e(f"s_mov_b32 s{sAh}, {h16(A_/S_)*0x10001:#x}")
        E.e(f"s_mov_b32 s{sSh}, {h16(S_)*0x10001:#x}")
    E.e(f"s_and_b32 s{sTmp}, s2, 7")
    E.e(f"s_lshl_b32 s{sTmp}, s{sTmp}, 5")
    E.e(f"s_lshr_b32 s{sTmp2}, s2, 3")
    E.e(f"s_add_u32 s{sTmp}, s{sTmp}, s{sTmp2}")
    E.e(f"s_lshr_b32 s{sR0}, s{sTmp}, 4")
    E.e(f"s_mul_i32 s{sR0}, s{sR0}, 24")
    E.e(f"s_and_b32 s{sC0}, s{sTmp}, 15")
    E.e(f"s_mul_i32 s{sC0}, s{sC0}, 24")
    E.e(f"s_mul_i32 s{sM0w}, s{sW}, 7168")
    E.e(f"s_mul_i32 s{sDw}, s{sW}, 3072")
    E.e(f"s_mul_i32 s{sDwo}, s{sW}, 2688")
    E.e(f"s_cmp_eq_u32 s{sW}, 7")
    E.e(f"s_cselect_b32 s{sDwo}, 0x100000, s{sDwo}")
    E.e("s_waitcnt lgkmcnt(0)")
    srd(E, 4, 36, 37, XBYTES)
    srd(E, 16, 36, 37, XBYTES)
    srd(E, 12, 38, 39, 7*7*192*2)
    srd(E, 8, 42, 43, 24*SLOT)
    srd(E, 20, 40, 41, XBYTES)
    E.e("s_mov_b32 s22, 0")
    if stamp: E.e(f"v_mov_b32 v{STAMP}, 0")
    st("start")

    dwl = {}
    def dw_loads():
        E.e(f"v_lshrrev_b32 v{t0}, 3, v{vL16}")
        for cb, base in ((0, RAW0), (1, RAW1), (2, RAW2)):
            E.e(f"s_add_u32 s{sTmp}, s{sDwo}, {128*cb}")
            for j in range(7):
                dwl[cb] = E.vm(f"buffer_load_ushort v{base+j}, v{t0}, s[12:15], s{sTmp} offen offset:{384*j}")
    def t_write(raw, loc, u):
        u0, u1 = u
        E.e(f"v_lshl_or_b32 v{u0+0}, v{raw+1}, 16, v{raw+0}")
        E.e(f"v_lshl_or_b32 v{u0+1}, v{raw+3}, 16, v{raw+2}")
        E.e(f"v_lshl_or_b32 v{u0+2}, v{raw+5}, 16, v{raw+4}")
        E.e(f"v_mov_b32 v{u0+3}, v{raw+6}")
        E.e(f"v_lshlrev_b32 v{u1+0}, 16, v{raw+0}")
        E.e(f"v_lshl_or_b32 v{u1+1}, v{raw+2}, 16, v{raw+1}")
        E.e(f"v_lshl_or_b32 v{u1+2}, v{raw+4}, 16, v{raw+3}")
        E.e(f"v_lshl_or_b32 v{u1+3}, v{raw+6}, 16, v{raw+5}")
        E.e(f"v_mul_u32_u24 v{t0}, 15, v{vL16}")
        E.e(f"s_lshl_b32 s{sTmp}, s{sW}, 5")
        E.e(f"s_add_u32 s{sTmp}, s{sTmp}, {loc}")
        E.e(f"v_add_u32 v{t0}, s{sTmp}, v{t0}")
        E.e(f"s_cmp_eq_u32 s{sW}, 7")
        E.e(f"s_cselect_b32 s{sTmp}, 0, 16")
        E.e(f"v_add_u32 v{t1}, s{sTmp}, v{t0}")
        E.ds(f"ds_write_b128 v{t0}, v[{u0}:{u0+3}]")
        E.ds(f"ds_write_b128 v{t1}, v[{u1}:{u1+3}]")

    PW = 60
    if inprep:
        pld = emit_prep_loads(E, name, sW, vN, vG, a, b, c, sTmp, sTmp2, PW, 72)
        srd(E, 80, 76, 77, 256)
        srd(E, 84, 76, 77, 256)
        E.e(f"s_cmp_lt_u32 s2, {nprod}")
        E.e("s_cselect_b32 s86, s86, 0")
        srd(E, 88, 42, 43, 24*SLOT)
        E.e(f"s_cmp_lt_u32 s2, {nprod}")
        E.e("s_cselect_b32 s90, s90, 0")
    dw_loads()
    xd = {}
    E.e(f"s_mov_b32 s{sTileRow}, s{sR0}")
    E.e(f"s_sub_u32 s{sBase}, s{sTileRow}, 3")
    E.e(f"s_mul_i32 s{sBase}, s{sBase}, 384")
    E.e(f"s_add_u32 s{sBase}, s{sBase}, s{sC0}")
    E.e(f"s_sub_u32 s{sBase}, s{sBase}, 3")
    E.e(f"s_mul_i32 s{sBase}, s{sBase}, 384")
    E.e(f"s_mul_i32 s{sTmp}, s{sW}, 448")
    E.e(f"s_sub_u32 s{sTmp2}, s{sC0}, 3")
    for q in range(7):
        P, r, rem, sl, n_, dx, tt = a, b, c, d_, e_, f_, g_
        E.e(f"v_add_u32 v{P}, s{sTmp}, v{vL}")
        if q: E.e(f"v_add_u32 v{P}, {64*q}, v{P}")
        E.e(f"v_mul_u32_u24 v{r}, 4370, v{P}")
        E.e(f"v_lshrrev_b32 v{r}, 20, v{r}")
        E.e(f"v_mul_u32_u24 v{rem}, 240, v{r}")
        E.e(f"v_sub_u32 v{rem}, v{P}, v{rem}")
        E.e(f"v_lshrrev_b32 v{sl}, 3, v{rem}")
        E.e(f"v_and_b32 v{rem}, 7, v{rem}")
        E.e(f"v_cmp_le_u32 vcc, 15, v{sl}")
        E.e(f"v_mov_b32 v{dx}, 0")
        E.e("s_nop 0")
        E.e(f"v_addc_co_u32 v{dx}, vcc, 0, v{dx}, vcc")
        E.e(f"v_mul_u32_u24 v{n_}, 15, v{dx}")
        E.e(f"v_sub_u32 v{n_}, v{sl}, v{n_}")
        E.e(f"v_lshrrev_b32 v{sl}, 1, v{n_}")
        E.e(f"v_sub_u32 v{rem}, v{rem}, v{sl}")
        E.e(f"v_and_b32 v{rem}, 7, v{rem}")
        E.e(f"v_lshl_add_u32 v{n_}, v{n_}, 1, v{dx}")
        dd = vDS + q
        E.e(f"s_mov_b32 s{sTmp3}, 147456")
        E.e(f"v_mul_lo_u32 v{dd}, v{r}, s{sTmp3}")
        E.e(f"v_mul_u32_u24 v{tt}, 384, v{n_}")
        E.e(f"v_add_u32 v{dd}, v{dd}, v{tt}")
        E.e(f"v_lshl_add_u32 v{dd}, v{rem}, 4, v{dd}")
        E.e(f"v_add_u32 v{tt}, s{sTmp2}, v{n_}")
        E.e(f"v_cmp_gt_u32 vcc, 384, v{tt}")
        E.e(f"s_movk_i32 s{sTmp3}, 3360")
        E.e(f"v_cmp_gt_u32 s[48:49], s{sTmp3}, v{P}")
        E.e("s_nop 1")
        E.e("s_and_b64 vcc, vcc, s[48:49]")
        E.e(f"v_mov_b32 v{tt}, 0x40000000")
        E.e("s_nop 0")
        E.e(f"v_cndmask_b32 v{dd}, v{tt}, v{dd}, vcc")
        E.e(f"s_add_u32 m0, s{sM0w}, {XA + 1024*q}")
        E.e(f"v_add_u32 v{t0}, s{sBase}, v{dd}")
        xd[0] = E.vm(f"buffer_load_dwordx4 v{t0}, s[4:7], 0 offen lds")
    def x_base(s):
        E.e(f"s_sub_u32 s{sBase}, s{sTileRow}, 3")
        E.e(f"s_mul_i32 s{sBase}, s{sBase}, 384")
        E.e(f"s_add_u32 s{sBase}, s{sBase}, s{sC0}")
        E.e(f"s_sub_u32 s{sBase}, s{sBase}, 3")
        E.e(f"s_mul_i32 s{sBase}, s{sBase}, 384")
        if s: E.e(f"s_add_u32 s{sBase}, s{sBase}, {128*s}")
    def x_dma(s, q, loc):
        tv = t0 if (q & 1) == 0 else t1
        E.e(f"s_add_u32 m0, s{sM0w}, {loc + 1024*q}")
        E.e(f"v_add_u32 v{tv}, s{sBase}, v{vDS+q}")
        xd[s] = E.vm(f"buffer_load_dwordx4 v{tv}, s[4:7], 0 offen lds")
    x_base(1)
    for q in range(7): x_dma(1, q, XB)
    pst = None
    if inprep:
        E.wait(v=pld)
        for d in range(4): E.e(f"v_lshl_or_b32 v{68+d}, v{PW+2*d+1}, 16, v{PW+2*d}")
        E.e(f"s_mul_i32 s{sTmp}, s51, 24576")
        E.e(f"s_lshl_b32 s{sTmp2}, s52, 10")
        E.e(f"s_add_u32 s{sTmp}, s{sTmp}, s{sTmp2}")
        pst = E.vm(f"buffer_store_dwordx4 v[68:71], v{vL16}, s[88:91], s{sTmp} offen sc1")
    E.e(f"s_mul_i32 s{sTmp}, s{sW}, 53")
    E.e(f"v_add_u32 v{a}, s{sTmp}, v{vL}")
    E.e(f"v_mul_u32_u24 v{b}, 2185, v{a}")
    E.e(f"v_lshrrev_b32 v{b}, 16, v{b}")
    E.e(f"v_mul_u32_u24 v{c}, 30, v{b}")
    E.e(f"v_sub_u32 v{c}, v{a}, v{c}")
    E.e(f"s_mov_b32 s{sTmp3}, 147456")
    E.e(f"v_mul_lo_u32 v{d_}, v{b}, s{sTmp3}")
    E.e(f"v_mul_u32_u24 v{e_}, 384, v{c}")
    E.e(f"v_add_u32 v{d_}, v{d_}, v{e_}")
    E.e(f"s_sub_u32 s{sTmp2}, s{sC0}, 3")
    E.e(f"v_add_u32 v{e_}, s{sTmp2}, v{c}")
    E.e(f"v_cmp_gt_u32 vcc, 384, v{e_}")
    E.e(f"s_movk_i32 s{sTmp3}, 420")
    E.e(f"v_cmp_gt_u32 s[48:49], s{sTmp3}, v{a}")
    E.e("s_nop 1")
    E.e("s_and_b64 vcc, vcc, s[48:49]")
    E.e(f"v_cmp_gt_u32 s[48:49], 53, v{vL}")
    E.e("s_nop 1")
    E.e("s_and_b64 vcc, vcc, s[48:49]")
    E.e(f"v_mov_b32 v{e_}, 0x40000000")
    E.e("s_nop 0")
    E.e(f"v_cndmask_b32 v0, v{e_}, v{d_}, vcc")
    E.e(f"v_lshrrev_b32 v{a}, 1, v{vN}")
    E.e(f"v_add_u32 v{a}, s{sW}, v{a}")
    E.e(f"v_and_b32 v{a}, 7, v{a}")
    E.e(f"v_lshlrev_b32 v{a}, 4, v{a}")
    E.e(f"v_lshl_add_u32 v{a}, v{vN}, 7, v{a}")
    E.e(f"v_mul_u32_u24 v{b}, 3840, v{vG}")
    E.e(f"v_add_u32 v{vXa}, v{a}, v{b}")
    E.e(f"v_add_u32 v{b}, 12, v{vG}")
    E.e(f"v_min_u32 v{b}, 13, v{b}")
    E.e(f"v_mul_u32_u24 v{b}, 3840, v{b}")
    E.e(f"v_add_u32 v{vXa3}, v{a}, v{b}")
    E.e(f"v_lshrrev_b32 v{a}, 1, v{vN}")
    E.e(f"v_and_b32 v{b}, 1, v{vN}")
    E.e(f"v_sub_u32 v{a}, v{vG}, v{a}")
    E.e(f"s_mul_i32 s{sTmp}, s{sW}, 1920")
    E.e(f"s_add_u32 s{sTmp}, s{sTmp}, {T1LOC}")
    for f in range(4):
        E.e(f"v_add_u32 v{c}, {4*f}, v{a}")
        E.e(f"v_lshl_add_u32 v{d_}, v{c}, 1, v{b}")
        E.e(f"v_cmp_gt_u32 vcc, 7, v{c}")
        E.e(f"v_mov_b32 v{e_}, 14")
        E.e("s_nop 0")
        E.e(f"v_cndmask_b32 v{d_}, v{e_}, v{d_}, vcc")
        E.e(f"v_lshlrev_b32 v{d_}, 4, v{d_}")
        E.e(f"v_add_u32 v{vT+f}, s{sTmp}, v{d_}")
    E.e(f"v_mul_u32_u24 v{a}, 12, v{vG}")
    E.e(f"v_add_u32 v{a}, v{a}, v{vN}")
    E.e(f"v_lshrrev_b32 v{b}, 4, v{a}")
    E.e(f"v_and_b32 v{a}, 15, v{a}")
    E.e(f"v_lshlrev_b32 v{a}, 4, v{a}")
    E.e(f"v_lshl_add_u32 v{a}, v{b}, 10, v{a}")
    E.e(f"s_mul_i32 s{sTmp}, s{sHb}, 3072")
    E.e(f"s_lshl_b32 s{sTmp2}, s{sPair}, 8")
    E.e(f"s_add_u32 s{sTmp}, s{sTmp}, s{sTmp2}")
    E.e(f"s_add_u32 s{sTmp}, s{sTmp}, {HLOC}")
    E.e(f"v_add_u32 v{vHw}, s{sTmp}, v{a}")
    E.e(f"v_cmp_gt_u32 s[60:61], 12, v{vN}")
    E.e(f"s_mul_i32 s{sTmp}, s{sHb}, 6144")
    E.e(f"v_add_u32 v{vA0}, s{sTmp}, v{vL16}")
    E.e(f"v_add_u32 v{vA2}, {2*SLOT}, v{vA0}")
    E.e(f"s_mul_i32 s{sTmp}, s{sPair}, 3072")
    E.e(f"s_add_u32 s{sTmp}, s{sTmp}, {GBUF}")
    E.e(f"v_add_u32 v{vGr}, s{sTmp}, v{vL16}")
    E.e(f"s_lshl_b32 s{sTmp2}, s{sHb}, 3")
    E.e(f"v_add_u32 v{vGw}, s{sTmp2}, v{vGr}")
    E.e(f"v_add_u32 v{vDo}, s{sDw}, v{vL16}")
    E.e(f"s_lshr_b32 s{sTmp}, s{sPair}, 1")
    E.e(f"s_add_u32 s46, s{sR0}, s{sTmp}")
    E.e(f"s_and_b32 s{sTmp}, s{sPair}, 1")
    E.e(f"s_add_u32 s47, s{sC0}, s{sTmp}")
    E.e(f"s_mul_i32 s{sTmp3}, s{sHb}, 192")
    for nt in range(3):
        E.e(f"v_add_u32 v{a}, {16*nt}, v{vN}")
        E.e(f"v_mul_u32_u24 v{b}, 43, v{a}")
        E.e(f"v_lshrrev_b32 v{b}, 9, v{b}")
        E.e(f"v_mul_u32_u24 v{c}, 12, v{b}")
        E.e(f"v_sub_u32 v{c}, v{a}, v{c}")
        E.e(f"v_lshl_add_u32 v{b}, v{b}, 1, s46")
        E.e(f"v_lshl_add_u32 v{c}, v{c}, 1, s47")
        E.e(f"v_mul_u32_u24 v{b}, 384, v{b}")
        E.e(f"v_add_u32 v{b}, v{b}, v{c}")
        E.e(f"v_mul_u32_u24 v{b}, 384, v{b}")
        E.e(f"v_lshl_add_u32 v{b}, v{vG}, 4, v{b}")
        E.e(f"v_add_u32 v{vPx+nt}, s{sTmp3}, v{b}")
    E.e(f"v_lshrrev_b32 v{a}, 2, v{vN}")
    E.e(f"v_and_b32 v{b}, 3, v{vN}")
    E.e(f"v_and_b32 v{c}, 1, v{b}")
    E.e(f"v_lshlrev_b32 v{c}, 4, v{c}")
    E.e(f"v_mov_b32 v{d_}, 0x3f80")
    E.e(f"v_lshlrev_b32 v{d_}, v{c}, v{d_}")
    E.e(f"v_cmp_eq_u32 vcc, v{a}, v{vG}")
    E.e(f"v_mov_b32 v{c}, 0")
    E.e("s_nop 0")
    E.e(f"v_cndmask_b32 v{d_}, v{c}, v{d_}, vcc")
    E.e(f"v_cmp_gt_u32 vcc, 2, v{b}")
    E.e("s_nop 1")
    E.e(f"v_cndmask_b32 v{ID+2}, v{c}, v{d_}, vcc")
    E.e(f"v_cndmask_b32 v{ID+3}, v{d_}, v{c}, vcc")
    for i in (0, 1, 4, 5): E.e(f"v_mov_b32 v{ID+i}, 0")
    E.wait(v=dwl[2])
    t_write(RAW0, T0LOC, (44, 48))
    t_write(RAW1, T1LOC, (52, 56))
    E.e(f"s_mov_b32 s{sRound}, 0")
    E.e(f"s_mov_b32 s{sRowP}, 0")
    E.e(f"s_mov_b32 s{sRowC}, 0")
    E.wait(v=xd[0])
    E.wait_all_lds(force=True)
    E.e("s_barrier")
    if inprep:
        assert pst == E.nv and xd[1] == E.nv - 1
        E.nv -= 1; E.dv = min(E.dv, E.nv)
    st("prologue")

    dma = {}; rd = {}; gi = {}; resid = {}
    RL, RN = 3, 3
    def out_store(q):
        u, nt = divmod(q, 3); o = Oreg(2*u, nt)
        E.vm(f"buffer_store_dwordx4 v[{o}:{o+3}], v{vPx+nt}, s[20:23], s{sRowP} offen offset:{u*64}")

    def conv_step(s):
        loc = XB if s == 1 else XA
        toff = 0 if s == 1 else T0LOC - T1LOC
        E.c(f"==== conv step {s}")
        E.e(f"v_add_u32 v{t0}, {loc}, v{vXa}")
        E.e(f"v_add_u32 v{t1}, {loc}, v{vXa3}")
        def rd_eo(f):
            e4, o4 = EOq[2*(f & 1)], EOq[2*(f & 1)+1]
            adr = t1 if f == 3 else t0
            off = 0 if f == 3 else f*15360
            E.ds(f"ds_read_b128 v[{e4}:{e4+3}], v{adr} offset:{off}")
            return E.ds(f"ds_read_b128 v[{o4}:{o4+3}], v{adr} offset:{off+1920}")
        def rd_t(idx):
            f, c_ = divmod(idx, 8); r = Tq[idx & 3]
            return E.ds(f"ds_read_b128 v[{r}:{r+3}], v{vT+f} offset:{toff + c_*240}")
        eo = {0: rd_eo(0)}; tt = {}
        for i in range(3): tt[i] = rd_t(i)
        eo[1] = rd_eo(1)
        def mf(f, c_):
            idx = f*8 + c_
            E.wait(l=tt[idx])
            acc = ACC[8*s + c_]
            E.e(mfma(acc, Tq[idx & 3], Bq[c_], None if f == 0 else acc))
            if idx + 3 < 32: tt[idx+3] = rd_t(idx+3)
        for f in range(4):
            e4, o4 = EOq[2*(f & 1)], EOq[2*(f & 1)+1]
            E.wait(l=eo[f])
            for cp in range(4):
                E.e(f"v_perm_b32 v{Bq[2*cp]}, v{o4+cp}, v{e4+cp}, s{sSelLo}")
                E.e(f"v_perm_b32 v{Bq[2*cp+1]}, v{o4+cp}, v{e4+cp}, s{sSelHi}")
            if f + 2 < 4: eo[f+2] = rd_eo(f+2)
            for c_ in range(8):
                bb = Bq[c_]
                for dd in (1, 2, 3):
                    E.e(f"v_mov_b32_dpp v{bb+dd}, v{bb} row_shl:{dd} row_mask:0xf bank_mask:0xf bound_ctrl:1")
                if c_ > 0: mf(f, c_-1)
            if f < 3:
                out_store(3*s + f); E.e("s_nop 0")
            else: E.e("s_nop 1")
            mf(f, 7)

    def layernorm():
        E.c("==== layernorm")
        ST = CT[0]; ST2 = CT[1]; RHO = CT[2]; BETA = CT[3]
        E.e("s_nop 7")
        if pkln:
            for h in (0, 2):
                E.e(f"v_pk_add_f32 v[{ST+h}:{ST+h+1}], v[{ACC[0]+h}:{ACC[0]+h+1}], v[{ACC[1]+h}:{ACC[1]+h+1}]")
                E.e(f"v_pk_mul_f32 v[{ST2+h}:{ST2+h+1}], v[{ACC[0]+h}:{ACC[0]+h+1}], v[{ACC[0]+h}:{ACC[0]+h+1}]")
            for ch in range(1, 24):
                for h in (0, 2):
                    x_ = f"v[{ACC[ch]+h}:{ACC[ch]+h+1}]"
                    if ch > 1: E.e(f"v_pk_add_f32 v[{ST+h}:{ST+h+1}], v[{ST+h}:{ST+h+1}], {x_}")
                    E.e(f"v_pk_fma_f32 v[{ST2+h}:{ST2+h+1}], {x_}, {x_}, v[{ST2+h}:{ST2+h+1}]")
        else:
            for r in range(4):
                E.e(f"v_mov_b32 v{ST+r}, v{ACC[0]+r}")
                E.e(f"v_mul_f32 v{ST2+r}, v{ACC[0]+r}, v{ACC[0]+r}")
            for ch in range(1, 24):
                for r in range(4):
                    x_ = ACC[ch] + r
                    E.e(f"v_add_f32 v{ST+r}, v{ST+r}, v{x_}")
                    E.e(f"v_fmac_f32 v{ST2+r}, v{x_}, v{x_}")
        E.e(f"v_add_u32 v{t0}, {STLOC}, v{vL16}")
        E.e(f"s_lshl_b32 s{sTmp}, s{sW}, 11")
        E.e(f"v_add_u32 v{t1}, s{sTmp}, v{t0}")
        E.wait_all_lds(force=True)
        E.e("s_barrier")
        E.ds(f"ds_write_b128 v{t1}, v[{ST}:{ST+3}]")
        E.ds(f"ds_write_b128 v{t1}, v[{ST2}:{ST2+3}] offset:1024")
        E.wait_all_lds()
        E.e("s_barrier")
        for half in range(2):
            for ww in range(4):
                w = 4*half + ww
                E.ds(f"ds_read_b128 v[{Bq[2*ww]}:{Bq[2*ww]+3}], v{t0} offset:{2048*w}")
                E.ds(f"ds_read_b128 v[{Bq[2*ww+1]}:{Bq[2*ww+1]+3}], v{t0} offset:{2048*w+1024}")
            E.wait_all_lds()
            for ww in range(4):
                if pkln:
                    for h in (0, 2):
                        for dst, src in ((ST, Bq[2*ww]), (ST2, Bq[2*ww+1])):
                            if half == 0 and ww == 0: continue
                            if half == 0 and ww == 1:
                                s0 = Bq[0] if dst == ST else Bq[1]
                                E.e(f"v_pk_add_f32 v[{dst+h}:{dst+h+1}], v[{s0+h}:{s0+h+1}], v[{src+h}:{src+h+1}]")
                            else:
                                E.e(f"v_pk_add_f32 v[{dst+h}:{dst+h+1}], v[{dst+h}:{dst+h+1}], v[{src+h}:{src+h+1}]")
                    continue
                for r in range(4):
                    if half == 0 and ww == 0:
                        E.e(f"v_mov_b32 v{ST+r}, v{Bq[0]+r}"); E.e(f"v_mov_b32 v{ST2+r}, v{Bq[1]+r}")
                    else:
                        E.e(f"v_add_f32 v{ST+r}, v{ST+r}, v{Bq[2*ww]+r}"); E.e(f"v_add_f32 v{ST2+r}, v{ST2+r}, v{Bq[2*ww+1]+r}")
        E.e(f"s_mov_b32 s{sTmp}, {f2u(1.0/192):#x}")
        E.e(f"s_mov_b32 s{sTmp2}, {f2u(1e-5):#x}")
        for r in range(4):
            m, q, rho, beta = ST+r, ST2+r, RHO+r, BETA+r
            E.e(f"v_mul_f32 v{m}, s{sTmp}, v{m}")
            E.e(f"v_mul_f32 v{q}, s{sTmp}, v{q}")
            E.e(f"v_fma_f32 v{q}, -v{m}, v{m}, v{q}")
            E.e(f"v_max_f32 v{q}, 0, v{q}")
            E.e(f"v_add_f32 v{q}, s{sTmp2}, v{q}")
            E.e(f"v_rsq_f32 v{rho}, v{q}")
            E.e("s_nop 0")
            E.e(f"v_mul_f32 v{rho}, s{sS}, v{rho}")
            E.e(f"v_mul_f32 v{beta}, v{m}, v{rho}")
        E.e(f"v_add_u32 v{t0}, 32768, v{vHw}")
        E.e("s_mov_b64 s[62:63], exec")
        ta, tb = EOq[0], EOq[0] + 1
        if pkln:
            for ch in range(24):
                for h in (0, 2):
                    x_ = f"v[{ACC[ch]+h}:{ACC[ch]+h+1}]"
                    E.e(f"v_pk_fma_f32 {x_}, {x_}, v[{RHO+h}:{RHO+h+1}], v[{BETA+h}:{BETA+h+1}] neg_lo:[0,0,1] neg_hi:[0,0,1]")
        for cg in range(3):
            for r in range(4):
                o = Bq[(cg*4 + r) & 7]
                for cp in range(4):
                    a0 = ACC[8*cg + 2*cp] + r; a1 = ACC[8*cg + 2*cp + 1] + r
                    if pkln:
                        E.e(f"v_cvt_pk_bf16_f32 v{o+cp}, v{a0}, v{a1}")
                    else:
                        E.e(f"v_fma_f32 v{ta}, v{a0}, v{RHO+r}, -v{BETA+r}")
                        E.e(f"v_fma_f32 v{tb}, v{a1}, v{RHO+r}, -v{BETA+r}")
                        E.e(f"v_cvt_pk_bf16_f32 v{o+cp}, v{ta}, v{tb}")
                off = r*18432 + cg*6144
                adr = vHw
                if off >= 32768: adr, off = t0, off - 32768
                E.e("s_mov_b64 exec, s[60:61]")
                E.ds(f"ds_write_b128 v{adr}, v[{o}:{o+3}] offset:{off}")
                E.e("s_mov_b64 exec, s[62:63]")

    def issue_w(J, i):
        j = J % 24; slot = (J % NS)*SLOT
        E.e(f"s_add_u32 m0, s{sDw}, {slot + i*1024}")
        E.e(f"s_mov_b32 s{sSo}, {j*SLOT + i*1024}")
        dma[J] = E.vm(f"buffer_load_dwordx4 v{vDo}, s[8:11], s{sSo} offen lds")
    def a_read(J, f):
        slot = J % NS
        base, off = (vA2, (slot-2)*SLOT) if slot >= 2 else (vA0, slot*SLOT)
        o = off + (f*1024 if f < 6 else 12288 + (f-6)*1024)
        r = AR + 4*(((J+1)*12 + f) & 3)
        rd[(J, f)] = E.ds(f"ds_read_b128 v[{r}:{r+3}], v{base} offset:{o}")
    def gelu_half(c_, p, hf2):
        nt, hf = divmod(p, 2)
        uA = S + 12*(c_ & 1) + 4*nt + 2*hf; uB = uA + 1
        ta = TT + 2*(p & 1); tb = ta + 1
        gd = GT + 2*(nt & 1) + hf
        if f16:
            if hf2 == 0:
                return [f"v_cvt_pk_f16_f32 v{ta}, v{uA}, v{uB}",
                        f"v_pk_fma_f16 v{tb}, v{ta}, v{ta}, s{sAh}",
                        f"v_pk_mul_f16 v{tb}, v{tb}, v{ta} neg_lo:[1,0] neg_hi:[1,0]",
                        f"v_exp_f16_sdwa v{ta}, v{tb} dst_sel:WORD_0 dst_unused:UNUSED_PAD src0_sel:WORD_0",
                        f"v_exp_f16_sdwa v{ta}, v{tb} dst_sel:WORD_1 dst_unused:UNUSED_PRESERVE src0_sel:WORD_1"]
            return [f"v_pk_fma_f16 v{ta}, v{ta}, s{sSh}, s{sSh}",
                    f"v_rcp_f16_sdwa v{tb}, v{ta} dst_sel:WORD_0 dst_unused:UNUSED_PAD src0_sel:WORD_0",
                    f"v_rcp_f16_sdwa v{tb}, v{ta} dst_sel:WORD_1 dst_unused:UNUSED_PRESERVE src0_sel:WORD_1",
                    f"v_fma_mix_f32 v{ta}, v{uA}, v{tb}, 0 op_sel_hi:[0,1,0]",
                    f"v_fma_mix_f32 v{tb}, v{uB}, v{tb}, 0 op_sel:[0,1,0] op_sel_hi:[0,1,0]",
                    f"v_cvt_pk_bf16_f32 v{gd}, v{ta}, v{tb}"]
        if hf2 == 0:
            return [f"v_fma_f32 v{ta}, -v{uA}, v{uA}, s{sNegA}", f"v_fma_f32 v{tb}, -v{uB}, v{uB}, s{sNegA}",
                    f"v_mul_f32 v{ta}, v{ta}, v{uA}", f"v_mul_f32 v{tb}, v{tb}, v{uB}",
                    f"v_exp_f32 v{ta}, v{ta}", f"v_exp_f32 v{tb}, v{tb}"]
        return [f"v_fma_f32 v{ta}, v{ta}, s{sS}, s{sS}", f"v_fma_f32 v{tb}, v{tb}, s{sS}, s{sS}",
                f"v_rcp_f32 v{ta}, v{ta}", f"v_rcp_f32 v{tb}, v{tb}",
                f"v_mul_f32 v{ta}, v{uA}, v{ta}", f"v_mul_f32 v{tb}, v{uB}, v{tb}",
                f"v_cvt_pk_bf16_f32 v{gd}, v{ta}, v{tb}"]

    def stage(J):
        g1 = 0 <= J + 1 <= 23; g2 = 0 <= J - 1 <= 23
        last = J == 24
        E.c(f"---- stage {J}")
        def needs_frag(JJ, f): return (0 <= JJ + 1 <= 23) if f < 6 else (0 <= JJ - 1 <= 23)
        for g in range(12):
            gg = (g - 8) % 12
            c_ = (J + 1) if g >= 8 else J
            p, hf2 = divmod(gg, 2)
            dog = 0 <= c_ <= 23
            ops = gelu_half(c_, p, hf2) if dog else []
            if f16 and ops: segs = [ops[0:2], ops[2:3], ops[3:]] if hf2 == 1 else [ops[0:2], ops[2:4], ops[4:]]
            else: segs = [ops[0:2], ops[2:4], ops[4:]]
            ar = AR + 4*(((J+1)*12 + g) & 3)
            domf = g1 if g < 6 else g2
            if psched and g in psched and g != 9 and not last: E.e(f"s_setprio {psched[g]}")
            if domf:
                need = rd[(J, g)]
                if wait2 and g % 2 == 0 and (J, g+1) in rd and needs_frag(J, g+1): need = max(need, rd[(J, g+1)])
                if g == 6: need = max(need, gi[2])
                if J == -1 and g < 6: need = max(need, xrd[3*g+2])
                E.wait(l=need)
            for nt in range(3):
                if domf:
                    if g < 6:
                        dd = S + 12*((J+1) & 1) + 4*nt
                        E.e(mfma(dd, ar, X + (g*3+nt)*4, None if g == 0 else dd))
                    else:
                        o = Oreg(g-6, nt)
                        E.e(mfma(o, ar, GI + 4*nt, None if J == 1 else o))
                if nt == 0:
                    if g == 9:
                        if not last and (J + 1) <= 24 and (J+1) in dma: E.wait(v=dma[J+1])
                        E.wait_all_lds(force=True)
                        E.e("s_barrier")
                        if psched and 9 in psched and not last: E.e(f"s_setprio {psched[9]}")
                        if last: prep_next_c(0)
                    if g + D < 12:
                        if needs_frag(J, g + D) and (J, g + D) not in rd: a_read(J, g + D)
                    elif not last:
                        f2 = g + D - 12
                        if needs_frag(J+1, f2): a_read(J+1, f2)
                    if g < 3 and g2:
                        gi[g] = E.ds(f"ds_read_b128 v[{GI+4*g}:{GI+4*g+3}], v{vGr} offset:{((J-1) & 1)*12288 + g*1024}")
                for o_ in segs[nt]: E.e(o_)
            if dog and hf2 == 1 and (p & 1) == 1:
                nt = p >> 1; gd = GT + 2*(nt & 1)
                E.ds(f"ds_write_b64 v{vGw}, v[{gd}:{gd+1}] offset:{(c_ & 1)*12288 + nt*1024}")
            if last:
                if g == 10: prep_next_c(1)
                continue
            for i, gq in enumerate(wsite):
                if g == gq:
                    JJ = J + NS if gq >= 9 else J + NS - 1
                    if 2 <= JJ <= 24: issue_w(JJ, i)
            if g == xsite and 3 <= J < 10:
                if J == 3: x_base(0)
                x_dma(0, J - 3, XA)
            if g == rsite and 2 <= J < 11:
                q = J - 2; u, nt = divmod(q, 3); r = RS + 4*(q % RN)
                resid[q] = E.vm(f"buffer_load_dwordx4 v[{r}:{r+3}], v{vPx+nt}, s[16:19], s{sRowC} offen offset:{u*64}")
            if g == rsite - 1 and 2 + RL <= J < 11 + RL:
                q = J - 2 - RL; u, nt = divmod(q, 3)
                E.wait(v=resid[q])
                for p2 in range(2):
                    o = Oreg(2*u + p2, nt)
                    E.e(mfma(o, ID + (2 if p2 == 0 else 0), RS + 4*(q % RN), o))
            if pf and g == xsite and J in pf:
                sp = 1 + pf.index(J)
                x_base(sp)
                E.e(f"v_add_u32 v{t0}, s{sBase}, v0")
                E.vm(f"buffer_load_dword v{RAW2}, v{t0}, s[4:7], 0 offen")
            if J == 23 and g == 1: dw_loads()
            if J == 0 and g == 6:
                E.e(f"s_add_u32 s{sTileRow}, s{sTileRow}, 8")
                E.e(f"s_cmp_eq_u32 s{sRound}, {NROUND-1}")
                E.e(f"s_cselect_b32 s6, 0, s6")
                E.e(f"s_mov_b32 s22, {XBYTES}")

    def prep_next_c(part):
        if part == 0:
            x_base(1)
            for q in range(7): x_dma(1, q, XB)
        else:
            E.wait(v=dwl[2])
            t_write(RAW0, T0LOC, (S, S+4))
            t_write(RAW1, T1LOC, (S+8, S+12))

    xrd = {}
    state = {"round0": None}
    def round_body():
        conv_step(0)
        E.wait(v=xd[1]); E.wait_all_lds(force=True); E.e("s_barrier")
        if inprep:
            E.e(f"s_cmp_eq_u32 s{sRound}, 0")
            E.e(f"s_cselect_b32 s{sTmp}, s86, 0")
            E.e(f"s_cmp_eq_u32 s{sW}, 0")
            E.e(f"s_cselect_b32 s86, s{sTmp}, 0")
            E.e(f"v_mov_b32 v{t0}, 0")
            E.e(f"v_mov_b32 v{t1}, 1")
            E.e("s_mov_b64 s[62:63], exec")
            E.e("s_mov_b64 exec, 1")
            E.vm(f"buffer_atomic_add v{t1}, v{t0}, s[84:87], 0 offen sc1")
            E.e("s_mov_b64 exec, s[62:63]")
        x_base(2)
        for q in range(7): x_dma(2, q, XA)
        t_write(RAW2, T0LOC, (EOq[0], EOq[1]))
        st("conv0", dyn=True)
        conv_step(1)
        E.wait(v=xd[2]); E.wait_all_lds(force=True); E.e("s_barrier")
        if inprep:
            lp = f"{name}_poll"
            E.e(f"s_cmp_lg_u32 s{sRound}, 0")
            E.e(f"s_cbranch_scc1 {lp}_done")
            E.e(f"s_cmp_lg_u32 s{sW}, 0")
            E.e(f"s_cbranch_scc1 {lp}_bar")
            E.e(f"s_mov_b32 s{sTmp2}, 0")
            E.e(f"v_mov_b32 v{t0}, 0")
            E.label(f"{lp}")
            E.e(f"buffer_load_dword v{t1}, v{t0}, s[80:83], 0 offen sc1")
            E.e("s_waitcnt vmcnt(0)")
            E.e(f"v_readfirstlane_b32 s{sTmp}, v{t1}")
            E.e(f"s_add_u32 s{sTmp2}, s{sTmp2}, 1")
            E.e(f"s_cmp_ge_u32 s{sTmp2}, 0x40000")
            E.e(f"s_cbranch_scc1 {lp}_acq")
            E.e(f"s_cmp_lt_u32 s{sTmp}, {nprod}")
            E.e(f"s_cbranch_scc1 {lp}")
            E.label(f"{lp}_acq")
            E.e("buffer_inv sc1")
            E.e("s_waitcnt vmcnt(0)")
            E.label(f"{lp}_bar")
            E.e("s_barrier")
            E.label(f"{lp}_done")
        for J in (-1, 0, 1):
            for i in range(3): issue_w(J, i)
        st("conv1", dyn=True)
        conv_step(2)
        st("conv2", dyn=True)
        layernorm()
        E.wait(v=dma[1]); E.wait_all_lds(force=True); E.e("s_barrier")
        E.e(f"s_mul_i32 s{sTmp}, s{sPair}, 18432")
        E.e(f"s_add_u32 s{sTmp}, s{sTmp}, {HLOC}")
        E.e(f"v_add_u32 v{t0}, s{sTmp}, v{vL16}")
        for f in range(D): a_read(-1, f)
        for fi in range(18):
            xrd[fi] = E.ds(f"ds_read_b128 v[{X+4*fi}:{X+4*fi+3}], v{t0} offset:{fi*1024}")
        st("ln", dyn=True)
        for J in range(-1, 25): stage(J)
        E.e("s_setprio 0")
        E.e("s_nop 7")
        for q in range(9):
            u, nt = divmod(q, 3); o = Oreg(2*u, nt)
            for dd in range(4): E.e(f"v_cvt_pk_bf16_f32 v{o+dd}, v{o+2*dd}, v{o+2*dd+1}")
        E.e(f"s_mov_b32 s{sRowP}, s{sRowC}")
        E.e(f"s_add_u32 s{sRowC}, s{sRowC}, {8*147456}")
        E.wait_all_lds(force=True)
        E.e("s_barrier")
        st("mlp", dyn=True)
        rd.clear(); gi.clear(); dma.clear()

    nst = len(stamps)
    E.L.append(".p2align 6")
    E.label(f"{name}_L")
    b0 = len(E.L)
    round_body()
    body = list(E.L[b0:])
    E.e(f"s_add_u32 s{sRound}, s{sRound}, 1")
    E.e(f"s_cmp_lt_u32 s{sRound}, {NROUND}")
    E.e(f"s_cbranch_scc1 {name}_L")
    if not stamp:
        save = len(E.L); sv = (E.nl, E.dl, E.nv, E.dv)
        round_body()
        b2 = E.L[save:]
        if b2 != body:
            for x1, x2 in zip(body, b2):
                if x1 != x2: print("DIFF", x1, "|", x2); break
        assert b2 == body, "not steady"
        del E.L[save:]
    for q in range(9): out_store(q)
    if stamp:
        E.e("s_waitcnt vmcnt(0)")
        st("done")
        E.e(f"s_add_u32 s46, s42, {240<<20}")
        E.e(f"s_addc_u32 s47, s43, 0")
        srd(E, 48, 46, 47, 1 << 20)
        E.e(f"s_lshl_b32 s{sTmp}, s2, 3")
        E.e(f"s_add_u32 s{sTmp}, s{sTmp}, s{sW}")
        E.e(f"s_lshl_b32 s{sTmp}, s{sTmp}, 8")
        E.e(f"v_lshrrev_b32 v{t0}, 2, v{vL16}")
        E.e(f"buffer_store_dword v{STAMP}, v{t0}, s[48:51], s{sTmp} offen")
        global STAMPS; STAMPS = stamps
    E.label(f"{name}_end")
    E.e("s_endpgm")
    return header(name) + E.text() + descriptor(name, 256)

def gen_k0(name):
    E = Em()
    vL, vN, vG, vL16, t0, t1, t2 = 1, 2, 3, 4, 5, 6, 7
    sW, sTmp, sTmp2, sGw, sJ, sQ, sC2, sPb = 3, 24, 25, 50, 51, 52, 53, 58
    E.e("s_cmp_ge_u32 s2, 72")
    E.e(f"s_cbranch_scc1 {name}_end")
    E.e("s_load_dwordx4 s[40:43], s[0:1], 16")
    E.e("s_load_dwordx2 s[44:45], s[0:1], 48")
    E.e(f"v_lshrrev_b32 v{t0}, 6, v0")
    E.e(f"v_and_b32 v{vL}, 63, v0")
    E.e(f"v_readfirstlane_b32 s{sW}, v{t0}")
    E.e(f"v_and_b32 v{vN}, 15, v{vL}")
    E.e(f"v_lshrrev_b32 v{vG}, 4, v{vL}")
    E.e(f"v_lshlrev_b32 v{vL16}, 4, v{vL}")
    E.e("s_waitcnt lgkmcnt(0)")
    srd(E, 20, 44, 45, 24*24576)
    emit_prep_loads(E, name, sW, vN, vG, t0, t1, t2, sTmp, sTmp2, 8, 40)
    E.e("s_waitcnt vmcnt(0)")
    for d in range(4): E.e(f"v_lshl_or_b32 v{16+d}, v{8+2*d+1}, 16, v{8+2*d}")
    E.e(f"s_mul_i32 s{sTmp}, s51, 24576")
    E.e(f"s_lshl_b32 s{sTmp2}, s52, 10")
    E.e(f"s_add_u32 s{sTmp}, s{sTmp}, s{sTmp2}")
    E.e(f"buffer_store_dwordx4 v[16:19], v{vL16}, s[20:23], s{sTmp} offen")
    E.label(f"{name}_end")
    E.e("s_endpgm")
    return header(name) + E.text() + descriptor(name, 32)

def emit_prep_loads(E, name, sW, vN, vG, t0, t1, t2, sTmp, sTmp2, PW, wptr):
    lw2 = f"{name}_pw2"; lst = f"{name}_pst"
    sGw, sJ, sQ, sC2, sPb = 50, 51, 52, 53, 68
    E.e(f"s_lshl_b32 s{sGw}, s2, 3")
    E.e(f"s_add_u32 s{sGw}, s{sGw}, s{sW}")
    E.e(f"s_mul_i32 s{sJ}, s{sGw}, 2731")
    E.e(f"s_lshr_b32 s{sJ}, s{sJ}, 16")
    E.e(f"s_mul_i32 s{sTmp}, s{sJ}, 24")
    E.e(f"s_sub_u32 s{sQ}, s{sGw}, s{sTmp}")
    E.e(f"s_cmp_ge_u32 s{sQ}, 12")
    E.e(f"s_cbranch_scc1 {lw2}")
    srd(E, 64, wptr, wptr+1, 192*768*2)
    E.e(f"s_add_u32 s{sC2}, s{sJ}, 1")
    E.e(f"s_cmp_eq_u32 s{sC2}, 24")
    E.e(f"s_cselect_b32 s{sC2}, 0, s{sC2}")
    E.e(f"s_cmp_ge_u32 s{sQ}, 6")
    E.e(f"s_cselect_b32 s{sTmp}, 1, 0")
    E.e(f"s_mul_i32 s{sTmp2}, s{sTmp}, 6")
    E.e(f"s_sub_u32 s{sTmp2}, s{sQ}, s{sTmp2}")
    E.e(f"s_mul_i32 s{sTmp2}, s{sTmp2}, 49152")
    E.e(f"s_lshl_b32 s{sTmp}, s{sTmp}, 5")
    E.e(f"s_add_u32 s{sTmp2}, s{sTmp2}, s{sTmp}")
    E.e(f"s_lshl_b32 s{sTmp}, s{sC2}, 6")
    E.e(f"s_add_u32 s{sPb}, s{sTmp2}, s{sTmp}")
    E.e(f"v_mul_u32_u24 v{t0}, 12288, v{vG}")
    E.e(f"v_lshl_add_u32 v{t0}, v{vN}, 1, v{t0}")
    E.e("s_mov_b32 s69, 1536")
    E.e("s_mov_b32 s70, 1536")
    E.e(f"s_branch {lst}")
    E.label(lw2)
    srd(E, 64, wptr+2, wptr+3, 192*768*2)
    E.e(f"s_add_u32 s{sC2}, s{sJ}, 23")
    E.e(f"s_cmp_ge_u32 s{sC2}, 24")
    E.e(f"s_cselect_b32 s{sTmp}, 24, 0")
    E.e(f"s_sub_u32 s{sC2}, s{sC2}, s{sTmp}")
    E.e(f"s_sub_u32 s{sTmp}, s{sQ}, 12")
    E.e(f"s_lshr_b32 s{sTmp2}, s{sTmp}, 1")
    E.e(f"s_lshl_b32 s{sTmp2}, s{sTmp2}, 6")
    E.e(f"s_and_b32 s{sTmp}, s{sTmp}, 1")
    E.e(f"s_lshl_b32 s{sTmp}, s{sTmp}, 3")
    E.e(f"s_add_u32 s{sTmp2}, s{sTmp2}, s{sTmp}")
    E.e(f"s_mul_i32 s{sTmp}, s{sC2}, 12288")
    E.e(f"s_add_u32 s{sPb}, s{sTmp2}, s{sTmp}")
    E.e(f"v_lshrrev_b32 v{t1}, 2, v{vN}")
    E.e(f"v_and_b32 v{t2}, 3, v{vN}")
    E.e(f"v_lshl_add_u32 v{t1}, v{t1}, 3, v{t2}")
    E.e(f"v_mul_u32_u24 v{t0}, 1536, v{vG}")
    E.e(f"v_lshl_add_u32 v{t0}, v{t1}, 1, v{t0}")
    E.e("s_mov_b32 s69, 384")
    E.e(f"s_mov_b32 s70, {6144 - 3*384}")
    E.label(lst)
    E.e(f"s_cmp_lt_u32 s{sGw}, 576")
    E.e("s_cselect_b32 s66, s66, 0")
    last = None
    for e in range(8):
        last = E.vm(f"buffer_load_ushort v{PW+e}, v{t0}, s[64:67], s{sPb} offen")
        if e < 7: E.e(f"s_add_u32 s{sPb}, s{sPb}, s{70 if e == 3 else 69}")
    return last

if __name__ == "__main__":
    print(gen_f1("f1_kernel"))
```

```python
from em import *
import math
A_ = 2*math.sqrt(2/math.pi)*math.log2(math.e); B_ = A_*0.044715; S_ = B_**(1/3)
XBYTES = 384*384*384
WS_W = 0
WS_H = 1 << 20
TBL = 0
SLOT0 = 46080; SLOTSZ = 57344
K1_LDS = SLOT0 + 2*SLOTSZ

def gen_k1(name, dbg=None, nostore=False, nocompute=False, nodma=False, noln=False, stamp=False):
    E = Em()
    vL, vN, vG = 1, 2, 3
    vDS = 4
    vDT = 11
    vXa, vXa3, vXc, vXc3 = 13, 14, 15, 16
    vT = 17
    vOut, vL16 = 21, 22
    t0, t1, t2, t3, t4, t5, t6, t7 = 23, 24, 25, 26, 27, 28, 29, 30
    EO = 32
    Bf = 48
    Tr = 80
    ACC = 96
    ST = 192
    sW = 3
    sSelLo, sSelHi = 26, 27
    sBase, sTmp, sTmp2, sTmp3 = 24, 25, 28, 29
    sR0, sC = 30, 31
    sO0, sO1 = 32, 33
    sM0w = 34
    sLid = 35

    E.e("s_cmp_ge_u32 s2, 256")
    E.e(f"s_cbranch_scc1 {name}_end")
    stamps = []
    def st(tag):
        if not stamp: return
        i = len(stamps); stamps.append(tag)
        E.e(f"s_memtime s[{96}:{97}]")
        E.e("s_waitcnt lgkmcnt(0)")
        E.e(f"v_writelane_b32 v209, s96, {i}")
        E.dl = E.nl
    if stamp: E.e("v_mov_b32 v209, 0")
    st("start")
    E.e("s_load_dwordx4 s[36:39], s[0:1], 0")
    E.e("s_load_dwordx4 s[40:43], s[0:1], 16")
    E.e("s_load_dwordx2 s[44:45], s[0:1], 48")
    E.e(f"v_lshrrev_b32 v{t0}, 6, v0")
    E.e(f"v_and_b32 v{vL}, 63, v0")
    E.e(f"v_readfirstlane_b32 s{sW}, v{t0}")
    E.e(f"v_and_b32 v{vN}, 15, v{vL}")
    E.e(f"v_lshrrev_b32 v{vG}, 4, v{vL}")
    E.e(f"v_lshlrev_b32 v{vL16}, 4, v{vL}")
    E.e(f"s_mov_b32 s{sSelLo}, 0x05040100")
    E.e(f"s_mov_b32 s{sSelHi}, 0x07060302")
    E.e(f"s_and_b32 s{sTmp}, s2, 7")
    E.e(f"s_lshl_b32 s{sTmp}, s{sTmp}, 5")
    E.e(f"s_lshr_b32 s{sTmp2}, s2, 3")
    E.e(f"s_add_u32 s{sTmp}, s{sTmp}, s{sTmp2}")
    E.e(f"s_mov_b32 s{sLid}, s{sTmp}")
    E.e(f"s_lshr_b32 s{sR0}, s{sTmp}, 4")
    E.e(f"s_mul_i32 s{sR0}, s{sR0}, 24")
    E.e(f"s_and_b32 s{sC}, s{sTmp}, 15")
    E.e(f"s_mul_i32 s{sC}, s{sC}, 24")
    E.e(f"s_mul_i32 s{sM0w}, s{sW}, 7168")
    E.e("s_waitcnt lgkmcnt(0)")
    srd(E, 4, 36, 37, XBYTES)
    srd(E, 8, 38, 39, 7*7*192*2)
    E.e(f"s_add_u32 s46, s44, {WS_H}")
    E.e("s_addc_u32 s47, s45, 0")
    srd(E, 12, 46, 47, XBYTES)
    srd(E, 20, 44, 45, 24*24576)

    W = 48
    E.e(f"v_lshlrev_b32 v{t0}, 1, v{vL}")
    E.e(f"s_min_u32 s{sTmp}, s{sW}, 6")
    E.e(f"s_mul_i32 s{sTmp}, s{sTmp}, 2688")
    tld = None
    for cb in range(3):
        E.e(f"s_add_u32 s{sTmp2}, s{sTmp}, {128*cb}")
        for j in range(7):
            tld = E.vm(f"buffer_load_ushort v{W+8*cb+j}, v{t0}, s[8:11], s{sTmp2} offen offset:{384*j}")
    E.c("weight stream prep loads")
    lw2 = f"{name}_pw2"; lst = f"{name}_pst"
    sGw, sJ, sQ, sC2, sPb = 50, 51, 52, 53, 58
    PW = 200
    E.e(f"s_lshl_b32 s{sGw}, s2, 3")
    E.e(f"s_add_u32 s{sGw}, s{sGw}, s{sW}")
    E.e(f"s_mul_i32 s{sJ}, s{sGw}, 2731")
    E.e(f"s_lshr_b32 s{sJ}, s{sJ}, 16")
    E.e(f"s_mul_i32 s{sTmp}, s{sJ}, 24")
    E.e(f"s_sub_u32 s{sQ}, s{sGw}, s{sTmp}")
    E.e(f"s_cmp_ge_u32 s{sQ}, 12")
    E.e(f"s_cbranch_scc1 {lw2}")
    srd(E, 16, 40, 41, 192*768*2)
    E.e(f"s_add_u32 s{sC2}, s{sJ}, 1")
    E.e(f"s_cmp_eq_u32 s{sC2}, 24")
    E.e(f"s_cselect_b32 s{sC2}, 0, s{sC2}")
    E.e(f"s_cmp_ge_u32 s{sQ}, 6")
    E.e(f"s_cselect_b32 s{sTmp}, 1, 0")
    E.e(f"s_mul_i32 s{sTmp2}, s{sTmp}, 6")
    E.e(f"s_sub_u32 s{sTmp2}, s{sQ}, s{sTmp2}")
    E.e(f"s_mul_i32 s{sTmp2}, s{sTmp2}, 49152")
    E.e(f"s_lshl_b32 s{sTmp}, s{sTmp}, 5")
    E.e(f"s_add_u32 s{sTmp2}, s{sTmp2}, s{sTmp}")
    E.e(f"s_lshl_b32 s{sTmp}, s{sC2}, 6")
    E.e(f"s_add_u32 s{sPb}, s{sTmp2}, s{sTmp}")
    E.e(f"v_mul_u32_u24 v{t0}, 12288, v{vG}")
    E.e(f"v_lshl_add_u32 v{t0}, v{vN}, 1, v{t0}")
    E.e(f"s_mov_b32 s59, 1536")
    E.e(f"s_mov_b32 s60, 1536")
    E.e(f"s_branch {lst}")
    E.label(lw2)
    srd(E, 16, 42, 43, 192*768*2)
    E.e(f"s_add_u32 s{sC2}, s{sJ}, 23")
    E.e(f"s_cmp_ge_u32 s{sC2}, 24")
    E.e(f"s_cselect_b32 s{sTmp}, 24, 0")
    E.e(f"s_sub_u32 s{sC2}, s{sC2}, s{sTmp}")
    E.e(f"s_sub_u32 s{sTmp}, s{sQ}, 12")
    E.e(f"s_lshr_b32 s{sTmp2}, s{sTmp}, 1")
    E.e(f"s_lshl_b32 s{sTmp2}, s{sTmp2}, 6")
    E.e(f"s_and_b32 s{sTmp}, s{sTmp}, 1")
    E.e(f"s_lshl_b32 s{sTmp}, s{sTmp}, 3")
    E.e(f"s_add_u32 s{sTmp2}, s{sTmp2}, s{sTmp}")
    E.e(f"s_mul_i32 s{sTmp}, s{sC2}, 12288")
    E.e(f"s_add_u32 s{sPb}, s{sTmp2}, s{sTmp}")
    E.e(f"v_lshrrev_b32 v{t1}, 2, v{vN}")
    E.e(f"v_and_b32 v{t2}, 3, v{vN}")
    E.e(f"v_lshl_add_u32 v{t1}, v{t1}, 3, v{t2}")
    E.e(f"v_mul_u32_u24 v{t0}, 1536, v{vG}")
    E.e(f"v_lshl_add_u32 v{t0}, v{t1}, 1, v{t0}")
    E.e(f"s_mov_b32 s59, 384")
    E.e(f"s_mov_b32 s60, {6144 - 3*384}")
    E.label(lst)
    E.e(f"s_cmp_lt_u32 s{sGw}, 576")
    E.e(f"s_cselect_b32 s18, s18, 0")
    E.e(f"s_cselect_b32 s22, s22, 0")
    pld = None
    for e in range(8):
        pld = E.vm(f"buffer_load_ushort v{PW+e}, v{t0}, s[16:19], s{sPb} offen")
        if e < 7: E.e(f"s_add_u32 s{sPb}, s{sPb}, s{60 if e == 3 else 59}")
    E.c("static DMA offsets")
    E.e(f"s_mul_i32 s{sTmp}, s{sW}, 448")
    E.e(f"s_sub_u32 s{sTmp2}, s{sC}, 3")
    for q in range(7):
        P, r, rem, sl, n_, dx = t0, t1, t2, t3, t4, t5
        E.e(f"v_add_u32 v{P}, s{sTmp}, v{vL}")
        if q: E.e(f"v_add_u32 v{P}, {64*q}, v{P}")
        E.e(f"v_mul_u32_u24 v{r}, 4370, v{P}")
        E.e(f"v_lshrrev_b32 v{r}, 20, v{r}")
        E.e(f"v_mul_u32_u24 v{rem}, 240, v{r}")
        E.e(f"v_sub_u32 v{rem}, v{P}, v{rem}")
        E.e(f"v_lshrrev_b32 v{sl}, 3, v{rem}")
        E.e(f"v_and_b32 v{rem}, 7, v{rem}")
        E.e(f"v_cmp_le_u32 vcc, 15, v{sl}")
        E.e(f"v_mov_b32 v{dx}, 0")
        E.e(f"s_nop 0")
        E.e(f"v_addc_co_u32 v{dx}, vcc, 0, v{dx}, vcc")
        E.e(f"v_mul_u32_u24 v{n_}, 15, v{dx}")
        E.e(f"v_sub_u32 v{n_}, v{sl}, v{n_}")
        E.e(f"v_lshrrev_b32 v{sl}, 1, v{n_}")
        E.e(f"v_sub_u32 v{rem}, v{rem}, v{sl}")
        E.e(f"v_and_b32 v{rem}, 7, v{rem}")
        E.e(f"v_lshl_add_u32 v{n_}, v{n_}, 1, v{dx}")
        d = vDS + q
        E.e(f"s_mov_b32 s{sTmp3}, 147456")
        E.e(f"v_mul_lo_u32 v{d}, v{r}, s{sTmp3}")
        E.e(f"v_mul_u32_u24 v{t6}, 384, v{n_}")
        E.e(f"v_add_u32 v{d}, v{d}, v{t6}")
        E.e(f"v_lshl_add_u32 v{d}, v{rem}, 4, v{d}")
        E.e(f"v_add_u32 v{t6}, s{sTmp2}, v{n_}")
        E.e(f"v_cmp_gt_u32 vcc, 384, v{t6}")
        E.e(f"s_movk_i32 s{sTmp3}, 3360")
        E.e(f"v_cmp_gt_u32 s[48:49], s{sTmp3}, v{P}")
        E.e(f"s_nop 1")
        E.e(f"s_and_b64 vcc, vcc, s[48:49]")
        E.e(f"v_mov_b32 v{t6}, 0x40000000")
        E.e(f"s_nop 0")
        E.e(f"v_cndmask_b32 v{d}, v{t6}, v{d}, vcc")

    dma_last = {}
    def issue_dma(k):
        t, s = divmod(k, 3)
        slot = SLOT0 + (k & 1)*SLOTSZ
        E.c(f"DMA step {k}")
        E.e(f"s_add_u32 s{sBase}, s{sR0}, {8*t-3 & 0xffffffff}")
        E.e(f"s_mul_i32 s{sBase}, s{sBase}, 384")
        E.e(f"s_add_u32 s{sBase}, s{sBase}, s{sC}")
        E.e(f"s_sub_u32 s{sBase}, s{sBase}, 3")
        E.e(f"s_mul_i32 s{sBase}, s{sBase}, 384")
        if s: E.e(f"s_add_u32 s{sBase}, s{sBase}, {128*s}")
        for q in range(7):
            tv = vDT + (q & 1)
            E.e(f"s_add_u32 m0, s{sM0w}, {slot + 1024*q}")
            E.e(f"v_add_u32 v{tv}, s{sBase}, v{vDS+q}")
            if not nodma or q == 0: dma_last[k] = E.vm(f"buffer_load_dwordx4 v{tv}, s[4:7], 0 offen lds")

    issue_dma(0)
    issue_dma(1)

    E.c("X read bases")
    E.e(f"v_lshrrev_b32 v{t0}, 1, v{vN}")
    E.e(f"v_add_u32 v{t0}, s{sW}, v{t0}")
    E.e(f"v_and_b32 v{t0}, 7, v{t0}")
    E.e(f"v_lshlrev_b32 v{t0}, 4, v{t0}")
    E.e(f"v_lshl_add_u32 v{t0}, v{vN}, 7, v{t0}")
    E.e(f"v_mul_u32_u24 v{t1}, 3840, v{vG}")
    E.e(f"v_add_u32 v{vXa}, v{t0}, v{t1}")
    E.e(f"v_add_u32 v{t1}, 12, v{vG}")
    E.e(f"v_min_u32 v{t1}, 13, v{t1}")
    E.e(f"v_mul_u32_u24 v{t1}, 3840, v{t1}")
    E.e(f"v_add_u32 v{vXa3}, v{t0}, v{t1}")
    E.c("T read bases")
    E.e(f"v_lshrrev_b32 v{t0}, 1, v{vN}")
    E.e(f"v_and_b32 v{t1}, 1, v{vN}")
    E.e(f"v_sub_u32 v{t0}, v{vG}, v{t0}")
    E.e(f"s_mul_i32 s{sTmp}, s{sW}, 1920")
    for f in range(4):
        E.e(f"v_add_u32 v{t2}, {4*f}, v{t0}")
        E.e(f"v_lshl_add_u32 v{t3}, v{t2}, 1, v{t1}")
        E.e(f"v_cmp_gt_u32 vcc, 7, v{t2}")
        E.e(f"v_mov_b32 v{t4}, 14")
        E.e(f"s_nop 0")
        E.e(f"v_cndmask_b32 v{t3}, v{t4}, v{t3}, vcc")
        E.e(f"v_lshlrev_b32 v{t3}, 4, v{t3}")
        E.e(f"v_add_u32 v{vT+f}, s{sTmp}, v{t3}")
    E.c("output base: tile-linear h layout [tile][cg][r][48 px][16B]")
    E.e(f"v_mul_u32_u24 v{t0}, 12, v{vG}")
    E.e(f"v_add_u32 v{t0}, v{t0}, v{vN}")
    E.e(f"v_lshlrev_b32 v{t0}, 4, v{t0}")
    E.e(f"s_mul_i32 s{sTmp}, s{sW}, 3072")
    E.e(f"v_add_u32 v{t0}, s{sTmp}, v{t0}")
    E.e(f"v_cmp_gt_u32 vcc, 12, v{vN}")
    E.e(f"v_mov_b32 v{t1}, 0x40000000")
    E.e(f"s_nop 0")
    E.e(f"v_cndmask_b32 v{vOut}, v{t1}, v{t0}, vcc")
    E.e(f"s_mul_i32 s{sLid}, s{sLid}, {3*73728}")

    E.c("T table build")
    lt = f"{name}_tz"; lt2 = f"{name}_tdone"
    E.wait(v=tld)
    E.e(f"v_mul_u32_u24 v{t1}, 240, v{vL}")
    E.e(f"s_cmp_eq_u32 s{sW}, 7")
    E.e(f"s_cbranch_scc1 {lt}")
    E.e(f"s_lshl_b32 s{sTmp}, s{sW}, 5")
    E.e(f"v_add_u32 v{t1}, s{sTmp}, v{t1}")
    for cb in range(3):
        w = W + 8*cb
        u = 80
        E.e(f"v_lshl_or_b32 v{u+0}, v{w+1}, 16, v{w+0}")
        E.e(f"v_lshl_or_b32 v{u+1}, v{w+3}, 16, v{w+2}")
        E.e(f"v_lshl_or_b32 v{u+2}, v{w+5}, 16, v{w+4}")
        E.e(f"v_mov_b32 v{u+3}, v{w+6}")
        E.e(f"v_lshlrev_b32 v{u+4}, 16, v{w+0}")
        E.e(f"v_lshl_or_b32 v{u+5}, v{w+2}, 16, v{w+1}")
        E.e(f"v_lshl_or_b32 v{u+6}, v{w+4}, 16, v{w+3}")
        E.e(f"v_lshl_or_b32 v{u+7}, v{w+6}, 16, v{w+5}")
        E.e(f"ds_write_b128 v{t1}, v[{u}:{u+3}] offset:{TBL + cb*64*240}")
        E.e(f"ds_write_b128 v{t1}, v[{u+4}:{u+7}] offset:{TBL + cb*64*240 + 16}")
        E.e("s_nop 1")
    E.e(f"s_branch {lt2}")
    E.label(lt)
    for i in range(4): E.e(f"v_mov_b32 v{80+i}, 0")
    for cb in range(3):
        E.e(f"ds_write_b128 v{t1}, v[80:83] offset:{TBL + cb*64*240 + 224}")
    E.label(lt2)
    E.nl += 6; E.dl = 0

    E.wait(v=pld)
    for d in range(4):
        E.e(f"v_lshl_or_b32 v{84+d}, v{PW+2*d+1}, 16, v{PW+2*d}")
    E.e(f"s_mul_i32 s{sTmp}, s{sJ}, 24576")
    E.e(f"s_lshl_b32 s{sTmp2}, s{sQ}, 10")
    E.e(f"s_add_u32 s{sTmp}, s{sTmp}, s{sTmp2}")
    E.vm(f"buffer_store_dwordx4 v[84:87], v{vL16}, s[20:23], s{sTmp} offen")

    st("prologue done")
    def compute(k):
        t, s = divmod(k, 3)
        slot = SLOT0 + (k & 1)*SLOTSZ
        E.c(f"==== compute step {k} (tile {t}, cgset {s})")
        E.e(f"v_add_u32 v{vXc}, {slot}, v{vXa}")
        E.e(f"v_add_u32 v{vXc3}, {slot}, v{vXa3}")
        def rd_eo(f):
            b = EO + 8*(f & 1)
            a = vXc3 if f == 3 else vXc
            off = 0 if f == 3 else f*15360
            E.ds(f"ds_read_b128 v[{b}:{b+3}], v{a} offset:{off}")
            return E.ds(f"ds_read_b128 v[{b+4}:{b+7}], v{a} offset:{off+1920}")
        def rd_t(idx):
            f, c = divmod(idx, 8)
            r = Tr + 4*(idx & 3)
            return E.ds(f"ds_read_b128 v[{r}:{r+3}], v{vT+f} offset:{TBL + s*15360 + c*240}")
        eo = {0: rd_eo(0)}
        tt = {}
        for i in range(3): tt[i] = rd_t(i)
        eo[1] = rd_eo(1)
        def mfma(f, c):
            idx = f*8 + c
            E.wait(l=tt[idx])
            a = ACC + 4*(8*s + c); r = Tr + 4*(idx & 3); b = Bf + 4*c
            src = "0" if f == 0 else f"v[{a}:{a+3}]"
            E.e(f"v_mfma_f32_16x16x32_bf16 v[{a}:{a+3}], v[{r}:{r+3}], v[{b}:{b+3}], {src}")
            if idx + 3 < 32: tt[idx+3] = rd_t(idx+3)
        for f in range(4):
            b = EO + 8*(f & 1)
            E.wait(l=eo[f])
            for cp in range(4):
                E.e(f"v_perm_b32 v{Bf+4*(2*cp)}, v{b+4+cp}, v{b+cp}, s{sSelLo}")
                E.e(f"v_perm_b32 v{Bf+4*(2*cp+1)}, v{b+4+cp}, v{b+cp}, s{sSelHi}")
            if f + 2 < 4: eo[f+2] = rd_eo(f+2)
            for c in range(8):
                bb = Bf + 4*c
                for d in (1, 2, 3):
                    E.e(f"v_mov_b32_dpp v{bb+d}, v{bb} row_shl:{d} row_mask:0xf bank_mask:0xf bound_ctrl:1")
                if c > 0: mfma(f, c-1)
            E.e("s_nop 1")
            mfma(f, 7)

    def layernorm(k):
        t = k // 3
        slot = SLOT0 + (k & 1)*SLOTSZ
        E.c(f"==== layernorm tile {t}")
        E.e("s_nop 7")
        for r in range(4):
            E.e(f"v_mov_b32 v{ST+r}, v{ACC+r}")
            E.e(f"v_mul_f32 v{ST+4+r}, v{ACC+r}, v{ACC+r}")
        for ch in range(1, 24):
            for r in range(4):
                a = ACC + 4*ch + r
                E.e(f"v_add_f32 v{ST+r}, v{ST+r}, v{a}")
                E.e(f"v_fmac_f32 v{ST+4+r}, v{a}, v{a}")
        E.e(f"v_add_u32 v{t0}, {slot}, v{vL16}")
        E.e(f"s_lshl_b32 s{sTmp}, s{sW}, 11")
        E.e(f"v_add_u32 v{t1}, s{sTmp}, v{t0}")
        E.wait_all_lds(force=True)
        E.e("s_barrier")
        E.ds(f"ds_write_b128 v{t1}, v[{ST}:{ST+3}]")
        E.ds(f"ds_write_b128 v{t1}, v[{ST+4}:{ST+7}] offset:1024")
        E.wait_all_lds()
        E.e("s_barrier")
        R = 48
        ids = []
        for w in range(8):
            E.ds(f"ds_read_b128 v[{R+8*(w&3)}:{R+8*(w&3)+3}], v{t0} offset:{2048*w}")
            ids.append(E.ds(f"ds_read_b128 v[{R+8*(w&3)+4}:{R+8*(w&3)+7}], v{t0} offset:{2048*w+1024}"))
            if (w & 3) == 3:
                E.wait_all_lds()
                for ww in range(4):
                    for r in range(8):
                        if w == 3 and ww == 0: E.e(f"v_mov_b32 v{ST+r}, v{R+r}")
                        else: E.e(f"v_add_f32 v{ST+r}, v{ST+r}, v{R+8*ww+r}")
        E.e("s_barrier")
        if k + 2 <= 8: issue_dma(k + 2)
        E.e(f"s_mov_b32 s{sTmp}, {f2u(1.0/192):#x}")
        E.e(f"s_mov_b32 s{sTmp2}, {f2u(1e-5):#x}")
        E.e(f"s_mov_b32 s{sTmp3}, {f2u(S_):#x}")
        for r in range(4):
            m, q, rho, beta = ST+r, ST+4+r, ST+8+r, ST+12+r
            E.e(f"v_mul_f32 v{m}, s{sTmp}, v{m}")
            E.e(f"v_mul_f32 v{q}, s{sTmp}, v{q}")
            E.e(f"v_fma_f32 v{q}, -v{m}, v{m}, v{q}")
            E.e(f"v_max_f32 v{q}, 0, v{q}")
            E.e(f"v_add_f32 v{q}, s{sTmp2}, v{q}")
            E.e(f"v_rsq_f32 v{rho}, v{q}")
            E.e(f"s_nop 0")
            E.e(f"v_mul_f32 v{rho}, s{sTmp3}, v{rho}")
            E.e(f"v_mul_f32 v{beta}, v{m}, v{rho}")
        for cg in range(3):
            E.e(f"s_add_u32 s{54+cg}, s{sLid}, {t*73728 + cg*8*3072}")
        for cg in range(3):
            for r in range(4):
                o = 48 + 4*((cg*4 + r) & 7)
                for cp in range(4):
                    a0 = ACC + 4*(8*cg + 2*cp) + r; a1 = a0 + 4
                    E.e(f"v_fma_f32 v{t2}, v{a0}, v{ST+8+r}, -v{ST+12+r}")
                    E.e(f"v_fma_f32 v{t3}, v{a1}, v{ST+8+r}, -v{ST+12+r}")
                    E.e(f"v_cvt_pk_bf16_f32 v{o+cp}, v{t2}, v{t3}")
                so = 54 + cg
                if not nostore or (cg == 0 and r == 0): E.vm(f"buffer_store_dwordx4 v[{o}:{o+3}], v{vOut}, s[12:15], s{so} offen offset:{r*768}")

    for k in range(9):
        E.wait(v=dma_last[k])
        E.wait_all_lds(force=True)
        E.e("s_barrier")
        st(f"step{k} ready")
        if not nocompute: compute(k)
        st(f"step{k} computed")
        if k % 3 == 2:
            layernorm(k)
            st(f"ln{k//3} done")
        else:
            E.wait_all_lds(force=True)
            E.e("s_barrier")
            if k + 2 <= 8: issue_dma(k + 2)
    if stamp:
        E.e("s_waitcnt vmcnt(0)")
        st("stores done")
        E.e(f"s_add_u32 s46, s44, {240<<20}")
        E.e("s_addc_u32 s47, s45, 0")
        srd(E, 16, 46, 47, 1 << 20)
        E.e(f"s_lshl_b32 s{sTmp}, s2, 3")
        E.e(f"s_add_u32 s{sTmp}, s{sTmp}, s{sW}")
        E.e(f"s_lshl_b32 s{sTmp}, s{sTmp}, 8")
        E.e(f"v_lshlrev_b32 v{t0}, 2, v{vL}")
        E.e(f"buffer_store_dword v209, v{t0}, s[16:19], s{sTmp} offen")
        E.stamps = stamps
        global STAMPS; STAMPS = stamps
    E.label(f"{name}_end")
    E.e("s_endpgm")
    return header(name) + E.text() + descriptor(name, 216)

if __name__ == "__main__":
    print(gen_k1("k1_conv_kernel"))
```

```python
from em import *
import math
A_ = 2*math.sqrt(2/math.pi)*math.log2(math.e); B_ = A_*0.044715; S_ = B_**(1/3)
XBYTES = 384*384*384
WS_H = 1 << 20
SLOT = 24576
NS = 3
GBUF = NS*SLOT
XS = GBUF + 2*12288
K2_LDS = XS + 65536
NROUND = 3
D = 3

def mfma(d, a, b, c=None):
    src = "0" if c is None else f"v[{c}:{c+3}]"
    return f"v_mfma_f32_16x16x32_bf16 v[{d}:{d+3}], v[{a}:{a+3}], v[{b}:{b+3}], {src}"

def gen_k2(name, stamp=False, nogelu=False, strip=(), prio=None,
           wsite=((10, 2, 6), (11, 3, 7)), xsite=(8, 1), rsite=(4, 5), onecopy=False, psched=None, barg=9, sttest=None, trickle=True, tsite=(1,4), x0=11, wait2=False, m0once=False, f16=False, order=0, late=False):
    E = Em()
    sW, sPair, sHb = 3, 4, 35
    sTmp, sTmp2, sTmp3 = 5, 6, 7
    sNegA, sS = 24, 25
    sAh, sSh = 52, 53
    sHt = 26
    sRowP, sRowC = 27, 28
    sRound = 29
    sDw = 33; sSo = 34
    sXd = 30
    vL, vN, vG, vL16 = 1, 2, 3, 4
    t0, t1, t2, t3 = 5, 6, 7, 8
    vA0, vA2, vGr, vGw, vDo, vXo = 9, 10, 11, 12, 13, 14
    vPx = 15
    vXr = 18
    TT = 20
    GT = 24
    ID = 28
    RS = 36
    AR = 48
    GI = 64
    S = 76
    X = 100
    O = 172
    XT = 244
    TQ = 252
    vTw = 19
    STAMP = 34
    def Oreg(i, nt): return O + (((i >> 1)*3 + nt)*2 + (i & 1))*4

    E.e("s_cmp_ge_u32 s2, 256")
    E.e(f"s_cbranch_scc1 {name}_end")
    stamps = []
    def st(tag):
        if not stamp: return
        if tag not in stamps: stamps.append(tag)
        i = stamps.index(tag)
        E.e("s_memtime s[96:97]")
        E.e("s_waitcnt lgkmcnt(0)")
        E.e(f"v_writelane_b32 v{STAMP}, s96, {i % 32}")
        E.e("s_memrealtime s[96:97]")
        E.e("s_waitcnt lgkmcnt(0)")
        E.e(f"v_writelane_b32 v{STAMP}, s96, {32 + i % 32}")
        E.dl = E.nl
    E.e("s_load_dwordx2 s[36:37], s[0:1], 0")
    E.e("s_load_dwordx2 s[38:39], s[0:1], 32")
    E.e("s_load_dwordx2 s[40:41], s[0:1], 48")
    E.e(f"v_lshrrev_b32 v{t0}, 6, v0")
    E.e(f"v_and_b32 v{vL}, 63, v0")
    E.e(f"v_readfirstlane_b32 s{sW}, v{t0}")
    E.e(f"v_and_b32 v{vN}, 15, v{vL}")
    E.e(f"v_lshrrev_b32 v{vG}, 4, v{vL}")
    E.e(f"v_lshlrev_b32 v{vL16}, 4, v{vL}")
    E.e(f"s_and_b32 s{sPair}, s{sW}, 3")
    E.e(f"s_lshr_b32 s{sHb}, s{sW}, 2")
    E.e(f"s_mov_b32 s{sNegA}, {f2u(-A_/S_):#x}")
    E.e(f"s_mov_b32 s{sS}, {f2u(S_):#x}")
    import numpy as np
    h16 = lambda x: int(np.array([x], np.float16).view(np.uint16)[0])
    E.e(f"s_mov_b32 s{sAh}, {h16(A_/S_)*0x10001:#x}")
    E.e(f"s_mov_b32 s{sSh}, {h16(S_)*0x10001:#x}")
    E.e(f"s_and_b32 s{sTmp}, s2, 7")
    E.e(f"s_lshl_b32 s{sTmp}, s{sTmp}, 5")
    E.e(f"s_lshr_b32 s{sTmp2}, s2, 3")
    E.e(f"s_add_u32 s{sTmp}, s{sTmp}, s{sTmp2}")
    E.e(f"s_lshr_b32 s44, s{sTmp}, 4")
    E.e(f"s_mul_i32 s44, s44, 24")
    E.e(f"s_and_b32 s45, s{sTmp}, 15")
    E.e(f"s_mul_i32 s45, s45, 24")
    E.e(f"s_mul_i32 s{sHt}, s{sTmp}, {3*73728}")
    E.e(f"s_mul_i32 s{sDw}, s{sW}, 3072")
    E.e(f"v_add_u32 v{vDo}, s{sDw}, v{vL16}")
    E.e(f"v_mul_u32_u24 v{vXo}, 3072, v{vG}")
    E.e(f"v_lshl_add_u32 v{vXo}, v{vN}, 4, v{vXo}")
    E.e(f"s_mul_i32 s{sTmp}, s{sPair}, 768")
    E.e(f"v_add_u32 v{vXo}, s{sTmp}, v{vXo}")
    E.e(f"s_lshl_b32 s{sXd}, s{sPair}, 14")
    E.e(f"s_add_u32 s{sXd}, s{sXd}, {XS}")
    E.e(f"v_add_u32 v{vXr}, s{sXd}, v{vL16}")
    E.e("s_waitcnt lgkmcnt(0)")
    srd(E, 8, 40, 41, 24*SLOT)
    E.e(f"s_add_u32 s42, s40, {WS_H}")
    E.e("s_addc_u32 s43, s41, 0")
    srd(E, 12, 42, 43, XBYTES)
    srd(E, 16, 36, 37, XBYTES)
    srd(E, 20, 38, 39, XBYTES)
    E.e("s_mov_b32 s22, 0")
    if stamp: E.e(f"v_mov_b32 v{STAMP}, 0")
    st("start")
    E.e(f"s_cmp_eq_u32 s{sHb}, 1")
    E.e(f"s_cbranch_scc1 {name}_H1")

    def half(hb):
        nm = f"{name}_h{hb}"
        E.nl = E.dl = E.nv = E.dv = 0
        if prio is not None and prio == hb: E.e("s_setprio 1")
        dma = {}; xdma = {}; xt = {}
        def issue_w(J, i, fresh=False):
            j = J % 24; slot = (J % NS)*SLOT
            if m0once and not fresh:
                if i == 0:
                    E.e(f"s_add_u32 m0, s{sDw}, {slot}")
                    E.e(f"s_mov_b32 s31, {j*SLOT}")
                dma[J] = E.vm(f"buffer_load_dwordx4 v{vDo}, s[8:11], s31 offen offset:{i*1024} lds")
                return
            E.e(f"s_add_u32 m0, s{sDw}, {slot + i*1024}")
            E.e(f"s_mov_b32 s{sSo}, {j*SLOT + i*1024}")
            dma[J] = E.vm(f"buffer_load_dwordx4 v{vDo}, s[8:11], s{sSo} offen lds")
        def issue_x(q):
            fi = 8*hb + q; ks, nt = divmod(fi, 3)
            E.e(f"s_add_u32 m0, s{sXd}, {fi*1024}")
            E.e(f"s_add_u32 s{sSo}, s{sHt}, {ks*12288 + nt*256}")
            xdma[q] = E.vm(f"buffer_load_dwordx4 v{vXo}, s[12:15], s{sSo} offen lds")
        def issue_xt():
            E.e(f"s_add_u32 s{sSo}, s{sHt}, {5*12288}")
            for i, nt in enumerate((1, 2)):
                xt[i] = E.vm(f"buffer_load_dwordx4 v[{XT+4*i}:{XT+4*i+3}], v{vXo}, s[12:15], s{sSo} offen offset:{nt*256}")
        xrd = {}
        def x_read(fi):
            r = X + 4*fi
            xrd[fi] = E.ds(f"ds_read_b128 v[{r}:{r+3}], v{vXr} offset:{fi*1024}")
        def x_mov():
            for i in range(8): E.e(f"v_mov_b32 v{X+64+i}, v{XT+i}")
        for q in range(8): issue_x(q)
        issue_xt()
        for J in range(23, 23+NS):
            for i in range(3): issue_w(J, i, fresh=True)
        if m0once:
            E.e(f"s_add_u32 m0, s{sDw}, {(25 % NS)*SLOT}")
            E.e(f"s_mov_b32 s31, {1*SLOT}")
        E.e(f"v_add_u32 v{vA0}, {hb*6144}, v{vL16}")
        E.e(f"v_add_u32 v{vA2}, {2*SLOT + hb*6144}, v{vL16}")
        E.e(f"s_mul_i32 s{sTmp}, s{sPair}, 3072")
        E.e(f"s_add_u32 s{sTmp}, s{sTmp}, {GBUF}")
        E.e(f"v_add_u32 v{vGr}, s{sTmp}, v{vL16}")
        E.e(f"v_add_u32 v{vGw}, {8*hb}, v{vGr}")
        if sttest is None: E.e(f"v_add_u32 v{vTw}, {8192*hb}, v{vXr}")
        E.e(f"s_lshr_b32 s{sTmp}, s{sPair}, 1")
        E.e(f"s_add_u32 s44, s44, s{sTmp}")
        E.e(f"s_and_b32 s{sTmp}, s{sPair}, 1")
        E.e(f"s_add_u32 s45, s45, s{sTmp}")
        for nt in range(3):
            E.e(f"v_add_u32 v{t0}, {16*nt}, v{vN}")
            E.e(f"v_mul_u32_u24 v{t1}, 43, v{t0}")
            E.e(f"v_lshrrev_b32 v{t1}, 9, v{t1}")
            E.e(f"v_mul_u32_u24 v{t2}, 12, v{t1}")
            E.e(f"v_sub_u32 v{t2}, v{t0}, v{t2}")
            E.e(f"v_lshl_add_u32 v{t1}, v{t1}, 1, s44")
            E.e(f"v_lshl_add_u32 v{t2}, v{t2}, 1, s45")
            E.e(f"v_mul_u32_u24 v{t1}, 384, v{t1}")
            E.e(f"v_add_u32 v{t1}, v{t1}, v{t2}")
            E.e(f"v_mul_u32_u24 v{t1}, 384, v{t1}")
            E.e(f"v_lshl_add_u32 v{t1}, v{vG}, 4, v{t1}")
            E.e(f"v_add_u32 v{vPx+nt}, {192*hb}, v{t1}")
        if sttest == "lin":
            E.e(f"s_mul_i32 s{sTmp}, s2, 221184")
            E.e(f"s_mul_i32 s{sTmp2}, s{sW}, 9216")
            E.e(f"s_add_u32 s{sTmp}, s{sTmp}, s{sTmp2}")
            E.e(f"v_add_u32 v19, s{sTmp}, v{vL16}")
        elif sttest == "l128":
            E.e(f"v_lshrrev_b32 v{t0}, 3, v{vL}")
            E.e(f"v_mul_u32_u24 v{t0}, 768, v{t0}")
            E.e(f"v_and_b32 v{t1}, 7, v{vL}")
            E.e(f"v_lshl_add_u32 v{t0}, v{t1}, 4, v{t0}")
            E.e(f"s_mul_i32 s{sTmp}, s2, 221184")
            E.e(f"s_mul_i32 s{sTmp2}, s{sW}, 6144")
            E.e(f"s_add_u32 s{sTmp}, s{sTmp}, s{sTmp2}")
            E.e(f"v_add_u32 v19, s{sTmp}, v{t0}")
        E.e(f"v_lshrrev_b32 v{t0}, 2, v{vN}")
        E.e(f"v_and_b32 v{t1}, 3, v{vN}")
        E.e(f"v_and_b32 v{t2}, 1, v{t1}")
        E.e(f"v_lshlrev_b32 v{t2}, 4, v{t2}")
        E.e(f"v_mov_b32 v{t3}, 0x3f80")
        E.e(f"v_lshlrev_b32 v{t3}, v{t2}, v{t3}")
        E.e(f"v_cmp_eq_u32 vcc, v{t0}, v{vG}")
        E.e(f"v_mov_b32 v{t2}, 0")
        E.e("s_nop 0")
        E.e(f"v_cndmask_b32 v{t3}, v{t2}, v{t3}, vcc")
        E.e(f"v_cmp_gt_u32 vcc, 2, v{t1}")
        E.e("s_nop 1")
        E.e(f"v_cndmask_b32 v{ID+2}, v{t2}, v{t3}, vcc")
        E.e(f"v_cndmask_b32 v{ID+3}, v{t3}, v{t2}, vcc")
        for i in (0, 1, 4, 5): E.e(f"v_mov_b32 v{ID+i}, 0")
        E.e(f"s_mov_b32 s{sRowC}, {(-8*147456) & 0xffffffff:#x}")
        E.e(f"s_mov_b32 s{sRowP}, 0")
        E.e(f"s_mov_b32 s{sRound}, -1")
        E.e(f"s_add_u32 s{sHt}, s{sHt}, 73728")
        E.wait_all_vm()
        E.e("s_barrier")
        for fi in range(16): x_read(fi)
        x_mov()
        st("prologue")

        rd = {}; gi = {}; resid = {}
        RL, RN = 3, 3
        def a_read(J, f):
            slot = J % NS
            base, off = (vA2, (slot-2)*SLOT) if slot >= 2 else (vA0, slot*SLOT)
            o = off + (f*1024 if f < 6 else 12288 + (f-6)*1024)
            r = AR + 4*((J*12 + f) & 3)
            rd[(J, f)] = E.ds(f"ds_read_b128 v[{r}:{r+3}], v{base} offset:{o}")
        def gelu_half(c, p, hf2):
            nt, hf = divmod(p, 2)
            uA = S + 12*(c & 1) + 4*nt + 2*hf; uB = uA + 1
            ta = TT + 2*(p & 1); tb = ta + 1
            gd = GT + 2*(nt & 1) + hf
            if nogelu:
                return [] if hf2 == 0 else [f"v_cvt_pk_bf16_f32 v{gd}, v{uA}, v{uB}"]
            if f16:
                if hf2 == 0:
                    return [f"v_cvt_pk_f16_f32 v{ta}, v{uA}, v{uB}",
                            f"v_pk_fma_f16 v{tb}, v{ta}, v{ta}, s{sAh}",
                            f"v_pk_mul_f16 v{tb}, v{tb}, v{ta} neg_lo:[1,0] neg_hi:[1,0]",
                            f"v_exp_f16_sdwa v{ta}, v{tb} dst_sel:WORD_0 dst_unused:UNUSED_PAD src0_sel:WORD_0",
                            f"v_exp_f16_sdwa v{ta}, v{tb} dst_sel:WORD_1 dst_unused:UNUSED_PRESERVE src0_sel:WORD_1"]
                return [f"v_pk_fma_f16 v{ta}, v{ta}, s{sSh}, s{sSh}",
                        f"v_rcp_f16_sdwa v{tb}, v{ta} dst_sel:WORD_0 dst_unused:UNUSED_PAD src0_sel:WORD_0",
                        f"v_rcp_f16_sdwa v{tb}, v{ta} dst_sel:WORD_1 dst_unused:UNUSED_PRESERVE src0_sel:WORD_1",
                        f"v_fma_mix_f32 v{ta}, v{uA}, v{tb}, 0 op_sel_hi:[0,1,0]",
                        f"v_fma_mix_f32 v{tb}, v{uB}, v{tb}, 0 op_sel:[0,1,0] op_sel_hi:[0,1,0]",
                        f"v_cvt_pk_bf16_f32 v{gd}, v{ta}, v{tb}"]
            if hf2 == 0:
                return [f"v_fma_f32 v{ta}, -v{uA}, v{uA}, s{sNegA}", f"v_fma_f32 v{tb}, -v{uB}, v{uB}, s{sNegA}",
                        f"v_mul_f32 v{ta}, v{ta}, v{uA}", f"v_mul_f32 v{tb}, v{tb}, v{uB}",
                        f"v_exp_f32 v{ta}, v{ta}", f"v_exp_f32 v{tb}, v{tb}"]
            return [f"v_fma_f32 v{ta}, v{ta}, s{sS}, s{sS}", f"v_fma_f32 v{tb}, v{tb}, s{sS}, s{sS}",
                    f"v_rcp_f32 v{ta}, v{ta}", f"v_rcp_f32 v{tb}, v{tb}",
                    f"v_mul_f32 v{ta}, v{uA}, v{ta}", f"v_mul_f32 v{tb}, v{uB}, v{tb}",
                    f"v_cvt_pk_bf16_f32 v{gd}, v{ta}, v{tb}"]
        tw = {}; trd = {}
        def epi_piece(q, direct=False):
            u, nt = divmod(q, 3)
            o = Oreg(2*u, nt)
            for d in range(4): E.e(f"v_cvt_pk_bf16_f32 v{o+d}, v{o+2*d}, v{o+2*d+1}")
            if trickle and q < 8 and not direct:
                tw[q] = E.ds(f"ds_write_b128 v{vTw}, v[{o}:{o+3}] offset:{q*1024}")
            elif sttest is None:
                E.vm(f"buffer_store_dwordx4 v[{o}:{o+3}], v{vPx+nt}, s[20:23], s{sRowP} offen offset:{u*64}")
            else:
                E.e(f"s_add_u32 s{sTmp3}, s{sRowP}, {q*1024 if sttest=='lin' else (q%3)*128*8*0 + u*128}")
                E.vm(f"buffer_store_dwordx4 v[{o}:{o+3}], v19, s[20:23], s{sTmp3} offen")
        def trickle_read(q):
            trd[q] = E.ds(f"ds_read_b128 v[{TQ}:{TQ+3}], v{vTw} offset:{q*1024}")
        def trickle_store(q):
            u, nt = divmod(q, 3)
            E.wait(l=trd[q])
            E.vm(f"buffer_store_dwordx4 v[{TQ}:{TQ+3}], v{vPx+nt}, s[20:23], s{sRowP} offen offset:{u*64}")

        def stage(J, tail=False):
            j = J % 24
            E.c(f"---- stage {j}" + (" (tail)" if tail else ""))
            for g in range(12):
                if tail and g < 6:
                    if g < 3: gi[g] = E.ds(f"ds_read_b128 v[{GI+4*g}:{GI+4*g+3}], v{vGr} offset:{((j-1) & 1)*12288 + g*1024}")
                    if g + D < 12 and (J, g + D) not in rd and g + D >= 6: a_read(J, g + D)
                    continue
                gg = (g - 8) % 12
                c = (j + 1) if g >= 8 else j
                p, hf2 = divmod(gg, 2)
                ops = [] if tail else gelu_half(c, p, hf2)
                segs = [ops[0:2], ops[2:4], ops[4:]]
                if f16 and ops: segs = [ops[0:2], ops[2:3], ops[3:]] if hf2 == 1 else [ops[0:2], ops[2:4], ops[4:]]
                ar = AR + 4*((J*12 + g) & 3)
                need = rd[(J, g)]
                if wait2 and g % 2 == 0 and (J, g+1) in rd: need = max(need, rd[(J, g+1)])
                if g == 6: need = max(need, gi[2])
                if j == 23 and g < 6: need = max(need, xrd[min(3*g+2, 15)])
                if psched and g in psched and g != barg and not tail: E.e(f"s_setprio {psched[g]}")
                E.wait(l=need)
                for nt in range(3):
                    if g < 6:
                        d = S + 12*((j+1) & 1) + 4*nt
                        E.e(mfma(d, ar, X + (g*3+nt)*4, None if g == 0 else d))
                    else:
                        o = Oreg(g-6, nt)
                        E.e(mfma(o, ar, GI + 4*nt, None if j == 1 else o))
                    def mem_block():
                        if g == barg and not tail:
                            E.wait(v=dma[J+1])
                            E.wait_all_lds(force=True)
                            E.e("s_barrier")
                            if psched and barg in psched: E.e(f"s_setprio {psched[barg]}")
                        if g + D < 12:
                            if (J, g + D) not in rd: a_read(J, g + D)
                        elif not tail and g >= barg:
                            for f2 in range(0, g + D - 12 + 1):
                                if (J+1, f2) not in rd and (f2 + 12 - g) <= 3: a_read(J+1, f2)
                        if g < 3 and not tail:
                            gi[g] = E.ds(f"ds_read_b128 v[{GI+4*g}:{GI+4*g+3}], v{vGr} offset:{((j-1) & 1)*12288 + g*1024}")
                    if nt == 0 and not late: mem_block()
                    for o_ in segs[nt]: E.e(o_)
                    if nt == 2 and late: mem_block()
                if not tail and hf2 == 1 and (p & 1) == 1:
                    nt = p >> 1
                    gd = GT + 2*(nt & 1)
                    E.ds(f"ds_write_b64 v{vGw}, v[{gd}:{gd+1}] offset:{(c & 1)*12288 + nt*1024}")
                if tail: continue
                for i, gq in enumerate(wsite[hb]):
                    if g == gq: issue_w(J + NS if gq >= 9 else J + NS - 1, i)
                xs0 = x0 if trickle else 2
                if g == xsite[hb] and xs0 <= j < xs0 + 8: issue_x(j - xs0)
                if g == xsite[hb] and j == (xs0 - 1 if trickle else 10): issue_xt()
                if trickle and 2 <= j < 10:
                    if g == tsite[0] + hb: trickle_read(j - 2)
                    if g == tsite[1] + hb: trickle_store(j - 2)
                if g == rsite[hb] and 2 <= j < 11:
                    q = j - 2; u, nt = divmod(q, 3); r = RS + 4*(q % RN)
                    resid[q] = E.vm(f"buffer_load_dwordx4 v[{r}:{r+3}], v{vPx+nt}, s[16:19], s{sRowC} offen offset:{u*64}")
                if g == rsite[hb] - 1 and 2 + RL <= j < 11 + RL:
                    q = j - 2 - RL; u, nt = divmod(q, 3)
                    E.wait(v=resid[q])
                    for p2 in range(2):
                        o = Oreg(2*u + p2, nt)
                        E.e(mfma(o, ID + (2 if p2 == 0 else 0), RS + 4*(q % RN), o))
                if j == 1 and g <= 8:
                    epi_piece(g)
                if j == (10 if trickle else 2) and g == 0: E.e(f"s_mov_b32 s22, {XBYTES}")
                if j == 22 and g >= 5:
                    if g == 5: E.wait(v=max(xdma[7], xt[1]))
                    lo = {5: 0, 6: 2, 7: 4, 8: 7, 9: 10, 10: 12, 11: 14}[g]; hi = {5: 2, 6: 4, 7: 7, 8: 10, 9: 12, 10: 14, 11: 16}[g]
                    for fi in range(lo, hi): x_read(fi)
                    if g == 6: x_mov()
                    if g == 11: E.e(f"s_add_u32 s{sHt}, s{sHt}, 73728")
            if tail:
                E.e("s_nop 7")
                for q in range(9): epi_piece(q, direct=True)

        for f in range(D): a_read(23, f)
        E.e("s_waitcnt lgkmcnt(0)"); E.dl = E.nl
        E.e(f"s_branch {nm}_S23")
        def rekey():
            n = {(J-24, f): v for (J, f), v in rd.items() if J >= 24}; rd.clear(); rd.update(n)
            n = {J-24: v for J, v in dma.items() if J >= 24}; dma.clear(); dma.update(n)
        save = len(E.L)
        stage(23); rekey()
        for J in range(24): stage(J)
        rekey()
        del E.L[save:]
        E.L.append(".p2align 6")
        E.label(f"{nm}_L")
        b0 = len(E.L)
        for J in range(24):
            if J == 23: E.label(f"{nm}_S23")
            stage(J)
        rekey()
        body = [x for x in E.L[b0:] if not x.endswith("_S23:")]
        if stamp:
            for t in ("r-1", "r0", "r1", "r2"):
                if "round " + t not in stamps: stamps.append("round " + t)
            E.e(f"s_add_u32 m0, s{sRound}, 3")
            E.e("s_memtime s[96:97]")
            E.e("s_waitcnt lgkmcnt(0)")
            E.e(f"v_writelane_b32 v{STAMP}, s96, m0")
            E.e(f"s_add_u32 m0, m0, 32")
            E.e("s_memrealtime s[96:97]")
            E.e("s_waitcnt lgkmcnt(0)")
            E.e(f"v_writelane_b32 v{STAMP}, s96, m0")
            E.dl = E.nl
        E.e(f"s_max_i32 s{sRowP}, s{sRowC}, 0") if False else None
        E.e(f"s_add_u32 s{sRound}, s{sRound}, 1")
        E.e(f"s_mov_b32 s{sRowP}, s{sRowC}")
        E.e(f"s_add_u32 s{sRowC}, s{sRowC}, {8*147456}")
        E.e(f"s_max_i32 s{sRowP}, s{sRowP}, 0")
        E.e(f"s_cmp_lt_u32 s{sRound}, {NROUND}")
        E.e(f"s_cbranch_scc1 {nm}_L")
        if not stamp:
            save = len(E.L); sv = (dict(rd), dict(dma), E.nl, E.dl, E.nv, E.dv)
            for J in range(24): stage(J)
            assert E.L[save:] == body, "not steady"
            del E.L[save:]
            rd.clear(); rd.update(sv[0]); dma.clear(); dma.update(sv[1]); E.nl, E.dl, E.nv, E.dv = sv[2:]
        stage(0, tail=True)
        if stamp:
            E.e("s_waitcnt vmcnt(0)")
            st("done")
            E.e(f"s_add_u32 s46, s40, {240<<20}")
            E.e(f"s_addc_u32 s47, s41, 0")
            srd(E, 48, 46, 47, 1 << 20)
            E.e(f"s_lshl_b32 s{sTmp}, s2, 3")
            E.e(f"s_add_u32 s{sTmp}, s{sTmp}, s{sW}")
            E.e(f"s_lshl_b32 s{sTmp}, s{sTmp}, 8")
            E.e(f"v_lshlrev_b32 v{t0}, 2, v{vL}")
            E.e(f"buffer_store_dword v{STAMP}, v{t0}, s[48:51], s{sTmp} offen")
        E.e("s_endpgm")
    half(0)
    E.label(f"{name}_H1")
    half(1)
    E.label(f"{name}_end")
    E.e("s_endpgm")
    if stamp:
        global STAMPS; STAMPS = stamps
    if strip:
        out = []; inl = False
        for ln in E.L:
            if "_L:" in ln: inl = True
            if "(tail)" in ln: inl = False
            t = ln.strip()
            if inl:
                if "ds" in strip and (t.startswith("ds_") ): continue
                if "lgkm" in strip and t.startswith("s_waitcnt lgkmcnt"): continue
                if "vm" in strip and (t.startswith("buffer_") or t.startswith("s_waitcnt vmcnt")): continue
                if "vmw" in strip and t.startswith("s_waitcnt vmcnt"): continue
                if "vmo" in strip and t.startswith("buffer_") and not ("s[8:11]" in t): continue
                if "vmW" in strip and t.startswith("buffer_") and ("s[8:11]" in t): continue
                if "st" in strip and t.startswith("buffer_store"): continue
                if "bar" in strip and t.startswith("s_barrier"): continue
                if "valu" in strip and t.startswith("v_") and not t.startswith("v_mfma") and not t.startswith("v_writelane"): continue
                if "mfma" in strip and t.startswith("v_mfma"): continue
            out.append(ln)
        E.L = out
    return header(name) + E.text() + descriptor(name, 256)

if __name__ == "__main__":
    print(gen_k2("k2_mlp_kernel"))
```

```python
import sys
from k1 import gen_k1, K1_LDS
import k2c as k2
from k2c import gen_k2, K2_LDS
BEST=dict(wsite=((9,11,1),(10,0,2)), xsite=(2,3), rsite=(4,5), psched={9:3,0:2,3:1,6:0}, wait2=True, m0once=True)
MAIN='standalone__convnext_block__vision_kernel'
HDR = """; Kernarg layout for this problem (56 bytes, ptrs only, base s[0:1]):
"""
def make(kernels, plain=False):
    s = HDR
    if len(kernels) == 1 and plain:
        name, grid, block, lds, _ = kernels[0]
        s += f"; @launch grid=({grid},1,1) block=({block},1,1) lds={lds}\n"
    else:
        for name, grid, block, lds, _ in kernels:
            s += f"; @launch kernel={name} grid=({grid},1,1) block=({block},1,1) lds={lds}\n"
    s += '.amdgcn_target "amdgcn-amd-amdhsa--gfx950"\n.text\n'
    for k in kernels: s += k[4]
    return s
if __name__ == "__main__":
    if len(sys.argv) > 2 and sys.argv[2] == "var":
        ks = [(n, 256, 512, K1_LDS, gen_k1(n, **kw)) for n, kw in (("k1_base_kernel", {}), ("k1_nostore_kernel", dict(nostore=True)), ("k1_nocompute_kernel", dict(nocompute=True)), ("k1_nodma_kernel", dict(nodma=True)), ("k1_nodmanostore_kernel", dict(nodma=True, nostore=True)), ("k1_nocompnostore_kernel", dict(nocompute=True, nostore=True)))]
    elif len(sys.argv) > 2 and sys.argv[2] == "stamp":
        import k1
        ks = [("k1_stamp_kernel", 256, 512, K1_LDS, gen_k1("k1_stamp_kernel", stamp=True))]
        open("stamps.txt", "w").write("\n".join(k1.STAMPS))
    elif len(sys.argv) > 2 and sys.argv[2] == "var2":
        ks = [("k1_conv_kernel", 256, 512, K1_LDS, gen_k1("k1_conv_kernel"))]
        for n, kw in eval(sys.argv[3]):
            ks.append((f"k2_{n}_kernel", 256, 512, K2_LDS, gen_k2(f"k2_{n}_kernel", **kw)))
    elif len(sys.argv) > 2 and sys.argv[2] == "stampvar":
        ks = [("k1_conv_kernel", 256, 512, K1_LDS, gen_k1("k1_conv_kernel"))]
        for n, kw in eval(sys.argv[3]):
            ks.append((f"k2_{n}_kernel", 256, 512, K2_LDS, gen_k2(f"k2_{n}_kernel", stamp=True, **kw)))
        open("stamps.txt", "w").write("\n".join(k2.STAMPS))
    elif len(sys.argv) > 2 and sys.argv[2] in ("f1", "f1stamp"):
        import f1
        kw = eval(sys.argv[3]) if len(sys.argv) > 3 else {}
        stamp = sys.argv[2] == "f1stamp"
        ks = [(MAIN, 256, 512, f1.F1_LDS, f1.gen_f1(MAIN, stamp=stamp, **kw))]
        if not kw.get("inprep", True): ks = [("k0_prep_kernel", 72, 512, 0, f1.gen_k0("k0_prep_kernel"))] + ks
        if stamp: open("stamps.txt", "w").write("\n".join(f1.STAMPS))
    elif len(sys.argv) > 2 and sys.argv[2] == "full":
        ks = [("k1_conv_kernel", 256, 512, K1_LDS, gen_k1("k1_conv_kernel")), (MAIN, 256, 512, K2_LDS, gen_k2(MAIN, **BEST))]
    elif len(sys.argv) > 2 and sys.argv[2] == "stamp2":
        ks = [("k1_conv_kernel", 256, 512, K1_LDS, gen_k1("k1_conv_kernel")), (MAIN, 256, 512, K2_LDS, gen_k2(MAIN, stamp=True))]
        open("stamps.txt", "w").write("\n".join(k2.STAMPS))
    else:
        ks = [("k1_conv_kernel", 256, 512, K1_LDS, gen_k1("k1_conv_kernel"))]
    open(sys.argv[1], "w").write(make(ks, plain=sys.argv[1].endswith("vision.s")))
```

```python
from em import *
import math
A_ = 2*math.sqrt(2/math.pi)*math.log2(math.e); B_ = A_*0.044715; S_ = B_**(1/3)
XBYTES = 384*384*384
SLOT = 24576; NS = 3
GBUF = NS*SLOT
PBUF = GBUF + 24576
XA, XB = PBUF, 0
T1LOC, T0LOC = 57344, GBUF
HLOC = GBUF
STLOC = 147456
F1_LDS = 163840
NROUND = 3
D = 3

def mfma(d, a, b, c=None):
    src = "0" if c is None else f"v[{c}:{c+3}]"
    return f"v_mfma_f32_16x16x32_bf16 v[{d}:{d+3}], v[{a}:{a+3}], v[{b}:{b+3}], {src}"

def gen_f1(name, stamp=False, f16=False, psched={9: 3, 5: 2, 7: 1, 8: 0}, wsite=(9, 11, 1), rsite=4, xsite=3, wait2=True, strip=(), inprep=True, pkln=True, pf=(14, 17), nprod=72, fine=False, sp=2, cprio=True, dbgout=False, dbgshift=0):
    E = Em()
    sW, sPair, sHb = 3, 33, 35
    sTmp, sTmp2, sTmp3 = 24, 25, 28
    sSelLo, sSelHi = 26, 27
    sNegA, sS, sAh, sSh = 29, 30, 92, 93
    sR0, sC0 = 44, 45
    sBase = 31
    sTileRow = 32
    sRowP, sRowC, sRound = 54, 55, 56
    sDw, sSo, sM0w, sDwo = 57, 34, 58, 59
    vL16 = 1; vDS = 2; vXa, vXa3 = 9, 10; vT = 11; vHw = 15
    vA0, vA2, vGr, vGw, vDo = 16, 17, 18, 19, 20
    vPx = 21; ID = 24; t0, t1 = 30, 31
    TT, GT, RS, AR, GI, S, X, O = 32, 36, 40, 52, 68, 80, 104, 176
    RAW2 = 248
    STAMP = 255
    RAW0, RAW1 = X, X + 8
    def Oreg(i, nt): return O + (((i >> 1)*3 + nt)*2 + (i & 1))*4
    packed = [Oreg(2*u, nt) for u in range(3) for nt in range(3)]
    free = [q for q in range(32, 248, 4) if q not in packed]
    ACC = free[:24]; Bq = free[24:32]; EOq = free[32:36]; Tq = free[36:40]
    CT = free[40:45]
    assert all(EOq[i+1] == EOq[i] + 4 for i in (0, 2)) or True

    stamps = []
    def st(tag, dyn=False):
        if not stamp: return
        if fine and dyn: dyn = False
        if dyn:
            base = len(stamps)
            for r in range(NROUND): stamps.append(f"{tag} r{r}")
            E.e(f"s_add_u32 m0, s{sRound}, {base}")
            E.e("s_memtime s[96:97]"); E.e("s_waitcnt lgkmcnt(0)")
            E.e(f"v_writelane_b32 v{STAMP}, s96, m0")
            E.e("s_add_u32 m0, m0, 32")
            E.e("s_memrealtime s[96:97]"); E.e("s_waitcnt lgkmcnt(0)")
            E.e(f"v_writelane_b32 v{STAMP}, s96, m0")
        else:
            i = len(stamps); stamps.append(tag)
            E.e("s_memtime s[96:97]"); E.e("s_waitcnt lgkmcnt(0)")
            E.e(f"v_writelane_b32 v{STAMP}, s96, {i}")
            E.e("s_memrealtime s[96:97]"); E.e("s_waitcnt lgkmcnt(0)")
            E.e(f"v_writelane_b32 v{STAMP}, s96, {32+i}")
        E.dl = E.nl

    E.e("s_cmp_ge_u32 s2, 256")
    E.e(f"s_cbranch_scc1 {name}_end")
    E.e("s_load_dwordx4 s[36:39], s[0:1], 0")
    E.e("s_load_dwordx2 s[40:41], s[0:1], 32")
    E.e("s_load_dwordx2 s[42:43], s[0:1], 48")
    if inprep:
        E.e("s_load_dwordx4 s[72:75], s[0:1], 16")
        E.e("s_load_dwordx2 s[76:77], s[0:1], 40")
    vL, vN, vG = 32, 33, 34
    a, b, c, d_, e_, f_, g_ = 35, 36, 37, 38, 39, 40, 41
    E.e(f"v_lshrrev_b32 v{a}, 6, v0")
    E.e(f"v_and_b32 v{vL}, 63, v0")
    E.e(f"v_readfirstlane_b32 s{sW}, v{a}")
    E.e(f"v_and_b32 v{vN}, 15, v{vL}")
    E.e(f"v_lshrrev_b32 v{vG}, 4, v{vL}")
    E.e(f"v_lshlrev_b32 v{vL16}, 4, v{vL}")
    E.e(f"s_and_b32 s{sPair}, s{sW}, 3")
    E.e(f"s_lshr_b32 s{sHb}, s{sW}, 2")
    E.e(f"s_mov_b32 s{sSelLo}, 0x05040100")
    E.e(f"s_mov_b32 s{sSelHi}, 0x07060302")
    E.e(f"s_mov_b32 s{sNegA}, {f2u(-A_/S_):#x}")
    E.e(f"s_mov_b32 s{sS}, {f2u(S_):#x}")
    if f16:
        import numpy as np
        h16 = lambda x: int(np.array([x], np.float16).view(np.uint16)[0])
        E.e(f"s_mov_b32 s{sAh}, {h16(A_/S_)*0x10001:#x}")
        E.e(f"s_mov_b32 s{sSh}, {h16(S_)*0x10001:#x}")
    E.e(f"s_and_b32 s{sTmp}, s2, 7")
    E.e(f"s_lshl_b32 s{sTmp}, s{sTmp}, 5")
    E.e(f"s_lshr_b32 s{sTmp2}, s2, 3")
    E.e(f"s_add_u32 s{sTmp}, s{sTmp}, s{sTmp2}")
    E.e(f"s_lshr_b32 s{sR0}, s{sTmp}, 4")
    E.e(f"s_mul_i32 s{sR0}, s{sR0}, 24")
    E.e(f"s_and_b32 s{sC0}, s{sTmp}, 15")
    E.e(f"s_mul_i32 s{sC0}, s{sC0}, 24")
    E.e(f"s_mul_i32 s{sM0w}, s{sW}, 7168")
    E.e(f"s_mul_i32 s{sDw}, s{sW}, 3072")
    E.e(f"s_mul_i32 s{sDwo}, s{sW}, 2688")
    E.e(f"s_cmp_eq_u32 s{sW}, 7")
    E.e(f"s_cselect_b32 s{sDwo}, 0x100000, s{sDwo}")
    E.e("s_waitcnt lgkmcnt(0)")
    srd(E, 4, 36, 37, XBYTES)
    srd(E, 16, 36, 37, XBYTES)
    srd(E, 12, 38, 39, 7*7*192*2)
    srd(E, 8, 42, 43, 24*SLOT)
    srd(E, 20, 40, 41, XBYTES)
    E.e("s_mov_b32 s22, 0")
    if stamp: E.e(f"v_mov_b32 v{STAMP}, 0")
    st("start")

    dwl = {}
    def dw_load1(cb, j, first=False):
        base = (RAW0, RAW1, RAW2)[cb]
        if first: E.e(f"v_lshrrev_b32 v{t0}, 3, v{vL16}")
        if j == 0 or first: E.e(f"s_add_u32 s71, s{sDwo}, {128*cb}")
        dwl[cb] = E.vm(f"buffer_load_ushort v{base+j}, v{t0}, s[12:15], s71 offen offset:{384*j}")
    def dw_loads():
        for cb in range(3):
            for j in range(7): dw_load1(cb, j, first=(cb == 0 and j == 0))
    def t_write(raw, loc, u, t0=t0, t1=t1):
        u0, u1 = u
        E.e(f"v_lshl_or_b32 v{u0+0}, v{raw+1}, 16, v{raw+0}")
        E.e(f"v_lshl_or_b32 v{u0+1}, v{raw+3}, 16, v{raw+2}")
        E.e(f"v_lshl_or_b32 v{u0+2}, v{raw+5}, 16, v{raw+4}")
        E.e(f"v_mov_b32 v{u0+3}, v{raw+6}")
        E.e(f"v_lshlrev_b32 v{u1+0}, 16, v{raw+0}")
        E.e(f"v_lshl_or_b32 v{u1+1}, v{raw+2}, 16, v{raw+1}")
        E.e(f"v_lshl_or_b32 v{u1+2}, v{raw+4}, 16, v{raw+3}")
        E.e(f"v_lshl_or_b32 v{u1+3}, v{raw+6}, 16, v{raw+5}")
        E.e(f"v_mul_u32_u24 v{t0}, 15, v{vL16}")
        E.e(f"s_lshl_b32 s{sTmp}, s{sW}, 5")
        E.e(f"s_add_u32 s{sTmp}, s{sTmp}, {loc}")
        E.e(f"v_add_u32 v{t0}, s{sTmp}, v{t0}")
        E.e(f"s_cmp_eq_u32 s{sW}, 7")
        E.e(f"s_cselect_b32 s{sTmp}, 0, 16")
        E.e(f"v_add_u32 v{t1}, s{sTmp}, v{t0}")
        E.ds(f"ds_write_b128 v{t0}, v[{u0}:{u0+3}]")
        E.ds(f"ds_write_b128 v{t1}, v[{u1}:{u1+3}]")

    xd = {}
    E.e(f"s_mov_b32 s{sTileRow}, s{sR0}")
    E.e(f"s_sub_u32 s{sBase}, s{sTileRow}, 3")
    E.e(f"s_mul_i32 s{sBase}, s{sBase}, 384")
    E.e(f"s_add_u32 s{sBase}, s{sBase}, s{sC0}")
    E.e(f"s_sub_u32 s{sBase}, s{sBase}, 3")
    E.e(f"s_mul_i32 s{sBase}, s{sBase}, 384")
    E.e(f"s_mul_i32 s{sTmp}, s{sW}, 448")
    E.e(f"s_sub_u32 s{sTmp2}, s{sC0}, 3")
    for q in range(7):
        P, r, rem, sl, n_, dx, tt = a, b, c, d_, e_, f_, g_
        E.e(f"v_add_u32 v{P}, s{sTmp}, v{vL}")
        if q: E.e(f"v_add_u32 v{P}, {64*q}, v{P}")
        E.e(f"v_mul_u32_u24 v{r}, 4370, v{P}")
        E.e(f"v_lshrrev_b32 v{r}, 20, v{r}")
        E.e(f"v_mul_u32_u24 v{rem}, 240, v{r}")
        E.e(f"v_sub_u32 v{rem}, v{P}, v{rem}")
        E.e(f"v_lshrrev_b32 v{sl}, 3, v{rem}")
        E.e(f"v_and_b32 v{rem}, 7, v{rem}")
        E.e(f"v_cmp_le_u32 vcc, 15, v{sl}")
        E.e(f"v_mov_b32 v{dx}, 0")
        E.e("s_nop 0")
        E.e(f"v_addc_co_u32 v{dx}, vcc, 0, v{dx}, vcc")
        E.e(f"v_mul_u32_u24 v{n_}, 15, v{dx}")
        E.e(f"v_sub_u32 v{n_}, v{sl}, v{n_}")
        E.e(f"v_lshrrev_b32 v{sl}, 1, v{n_}")
        E.e(f"v_sub_u32 v{rem}, v{rem}, v{sl}")
        E.e(f"v_and_b32 v{rem}, 7, v{rem}")
        E.e(f"v_lshl_add_u32 v{n_}, v{n_}, 1, v{dx}")
        dd = vDS + q
        E.e(f"s_mov_b32 s{sTmp3}, 147456")
        E.e(f"v_mul_lo_u32 v{dd}, v{r}, s{sTmp3}")
        E.e(f"v_mul_u32_u24 v{tt}, 384, v{n_}")
        E.e(f"v_add_u32 v{dd}, v{dd}, v{tt}")
        E.e(f"v_lshl_add_u32 v{dd}, v{rem}, 4, v{dd}")
        E.e(f"v_add_u32 v{tt}, s{sTmp2}, v{n_}")
        E.e(f"v_cmp_gt_u32 vcc, 384, v{tt}")
        E.e(f"s_movk_i32 s{sTmp3}, 3360")
        E.e(f"v_cmp_gt_u32 s[48:49], s{sTmp3}, v{P}")
        E.e("s_nop 1")
        E.e("s_and_b64 vcc, vcc, s[48:49]")
        E.e(f"v_mov_b32 v{tt}, 0x40000000")
        E.e("s_nop 0")
        E.e(f"v_cndmask_b32 v{dd}, v{tt}, v{dd}, vcc")
        E.e(f"s_add_u32 m0, s{sM0w}, {XA + 1024*q}")
        E.e(f"v_add_u32 v{t0}, s{sBase}, v{dd}")
        xd[0] = E.vm(f"buffer_load_dwordx4 v{t0}, s[4:7], 0 offen lds")
    def x_base(s):
        E.e(f"s_sub_u32 s{sBase}, s{sTileRow}, 3")
        E.e(f"s_mul_i32 s{sBase}, s{sBase}, 384")
        E.e(f"s_add_u32 s{sBase}, s{sBase}, s{sC0}")
        E.e(f"s_sub_u32 s{sBase}, s{sBase}, 3")
        E.e(f"s_mul_i32 s{sBase}, s{sBase}, 384")
        if s: E.e(f"s_add_u32 s{sBase}, s{sBase}, {128*s}")
    def x_dma(s, q, loc, tmp=None):
        tv = (t0 if (q & 1) == 0 else t1) if tmp is None else tmp + (q & 1)
        E.e(f"s_add_u32 m0, s{sM0w}, {loc + 1024*q}")
        E.e(f"v_add_u32 v{tv}, s{sBase}, v{vDS+q}")
        xd[s] = E.vm(f"buffer_load_dwordx4 v{tv}, s[4:7], 0 offen lds")
    PW = 60
    if inprep:
        pld = emit_prep_loads(E, name, sW, vN, vG, a, b, c, sTmp, sTmp2, PW, 72)
        srd(E, 80, 76, 77, 256)
        srd(E, 84, 76, 77, 256)
        E.e(f"s_cmp_lt_u32 s2, {nprod}")
        E.e("s_cselect_b32 s86, s86, 0")
        srd(E, 88, 42, 43, 24*SLOT)
        E.e(f"s_cmp_lt_u32 s2, {nprod}")
        E.e("s_cselect_b32 s90, s90, 0")
    dw_loads()
    x_base(1)
    for q in range(7): x_dma(1, q, XB)
    pst = None
    if inprep:
        E.wait(v=pld)
        for d in range(4): E.e(f"v_lshl_or_b32 v{68+d}, v{PW+2*d+1}, 16, v{PW+2*d}")
        E.e(f"s_mul_i32 s{sTmp}, s51, 24576")
        E.e(f"s_lshl_b32 s{sTmp2}, s52, 10")
        E.e(f"s_add_u32 s{sTmp}, s{sTmp}, s{sTmp2}")
        pst = E.vm(f"buffer_store_dwordx4 v[68:71], v{vL16}, s[88:91], s{sTmp} offen sc1")
    E.e(f"s_mul_i32 s{sTmp}, s{sW}, 53")
    E.e(f"v_add_u32 v{a}, s{sTmp}, v{vL}")
    E.e(f"v_mul_u32_u24 v{b}, 2185, v{a}")
    E.e(f"v_lshrrev_b32 v{b}, 16, v{b}")
    E.e(f"v_mul_u32_u24 v{c}, 30, v{b}")
    E.e(f"v_sub_u32 v{c}, v{a}, v{c}")
    E.e(f"s_mov_b32 s{sTmp3}, 147456")
    E.e(f"v_mul_lo_u32 v{d_}, v{b}, s{sTmp3}")
    E.e(f"v_mul_u32_u24 v{e_}, 384, v{c}")
    E.e(f"v_add_u32 v{d_}, v{d_}, v{e_}")
    E.e(f"s_sub_u32 s{sTmp2}, s{sC0}, 3")
    E.e(f"v_add_u32 v{e_}, s{sTmp2}, v{c}")
    E.e(f"v_cmp_gt_u32 vcc, 384, v{e_}")
    E.e(f"s_movk_i32 s{sTmp3}, 420")
    E.e(f"v_cmp_gt_u32 s[48:49], s{sTmp3}, v{a}")
    E.e("s_nop 1")
    E.e("s_and_b64 vcc, vcc, s[48:49]")
    E.e(f"v_cmp_gt_u32 s[48:49], 53, v{vL}")
    E.e("s_nop 1")
    E.e("s_and_b64 vcc, vcc, s[48:49]")
    E.e(f"v_mov_b32 v{e_}, 0x40000000")
    E.e("s_nop 0")
    E.e(f"v_cndmask_b32 v0, v{e_}, v{d_}, vcc")
    E.e(f"v_lshrrev_b32 v{a}, 1, v{vN}")
    E.e(f"v_add_u32 v{a}, s{sW}, v{a}")
    E.e(f"v_and_b32 v{a}, 7, v{a}")
    E.e(f"v_lshlrev_b32 v{a}, 4, v{a}")
    E.e(f"v_lshl_add_u32 v{a}, v{vN}, 7, v{a}")
    E.e(f"v_mul_u32_u24 v{b}, 3840, v{vG}")
    E.e(f"v_add_u32 v{vXa}, v{a}, v{b}")
    E.e(f"v_add_u32 v{b}, 12, v{vG}")
    E.e(f"v_min_u32 v{b}, 13, v{b}")
    E.e(f"v_mul_u32_u24 v{b}, 3840, v{b}")
    E.e(f"v_add_u32 v{vXa3}, v{a}, v{b}")
    E.e(f"v_lshrrev_b32 v{a}, 1, v{vN}")
    E.e(f"v_and_b32 v{b}, 1, v{vN}")
    E.e(f"v_sub_u32 v{a}, v{vG}, v{a}")
    E.e(f"s_mul_i32 s{sTmp}, s{sW}, 1920")
    E.e(f"s_add_u32 s{sTmp}, s{sTmp}, {T1LOC}")
    for f in range(4):
        E.e(f"v_add_u32 v{c}, {4*f}, v{a}")
        E.e(f"v_lshl_add_u32 v{d_}, v{c}, 1, v{b}")
        E.e(f"v_cmp_gt_u32 vcc, 7, v{c}")
        E.e(f"v_mov_b32 v{e_}, 14")
        E.e("s_nop 0")
        E.e(f"v_cndmask_b32 v{d_}, v{e_}, v{d_}, vcc")
        E.e(f"v_lshlrev_b32 v{d_}, 4, v{d_}")
        E.e(f"v_add_u32 v{vT+f}, s{sTmp}, v{d_}")
    E.e(f"v_mul_u32_u24 v{a}, 12, v{vG}")
    E.e(f"v_add_u32 v{a}, v{a}, v{vN}")
    E.e(f"v_lshrrev_b32 v{b}, 4, v{a}")
    E.e(f"v_and_b32 v{a}, 15, v{a}")
    E.e(f"v_lshlrev_b32 v{a}, 4, v{a}")
    E.e(f"v_lshl_add_u32 v{a}, v{b}, 10, v{a}")
    E.e(f"s_mul_i32 s{sTmp}, s{sHb}, 3072")
    E.e(f"s_lshl_b32 s{sTmp2}, s{sPair}, 8")
    E.e(f"s_add_u32 s{sTmp}, s{sTmp}, s{sTmp2}")
    E.e(f"s_add_u32 s{sTmp}, s{sTmp}, {HLOC}")
    E.e(f"v_add_u32 v{vHw}, s{sTmp}, v{a}")
    E.e(f"v_cmp_gt_u32 s[60:61], 12, v{vN}")
    E.e(f"s_mul_i32 s{sTmp}, s{sHb}, 6144")
    E.e(f"v_add_u32 v{vA0}, s{sTmp}, v{vL16}")
    E.e(f"v_add_u32 v{vA2}, {2*SLOT}, v{vA0}")
    E.e(f"s_mul_i32 s{sTmp}, s{sPair}, 3072")
    E.e(f"s_add_u32 s{sTmp}, s{sTmp}, {GBUF}")
    E.e(f"v_add_u32 v{vGr}, s{sTmp}, v{vL16}")
    E.e(f"s_lshl_b32 s{sTmp2}, s{sHb}, 3")
    E.e(f"v_add_u32 v{vGw}, s{sTmp2}, v{vGr}")
    E.e(f"v_add_u32 v{vDo}, s{sDw}, v{vL16}")
    E.e(f"s_lshr_b32 s{sTmp}, s{sPair}, 1")
    E.e(f"s_add_u32 s46, s{sR0}, s{sTmp}")
    E.e(f"s_and_b32 s{sTmp}, s{sPair}, 1")
    E.e(f"s_add_u32 s47, s{sC0}, s{sTmp}")
    E.e(f"s_mul_i32 s{sTmp3}, s{sHb}, 192")
    for nt in range(3):
        E.e(f"v_add_u32 v{a}, {16*nt}, v{vN}")
        E.e(f"v_mul_u32_u24 v{b}, 43, v{a}")
        E.e(f"v_lshrrev_b32 v{b}, 9, v{b}")
        E.e(f"v_mul_u32_u24 v{c}, 12, v{b}")
        E.e(f"v_sub_u32 v{c}, v{a}, v{c}")
        E.e(f"v_lshl_add_u32 v{b}, v{b}, 1, s46")
        E.e(f"v_lshl_add_u32 v{c}, v{c}, 1, s47")
        E.e(f"v_mul_u32_u24 v{b}, 384, v{b}")
        E.e(f"v_add_u32 v{b}, v{b}, v{c}")
        E.e(f"v_mul_u32_u24 v{b}, 384, v{b}")
        E.e(f"v_lshl_add_u32 v{b}, v{vG}, 4, v{b}")
        E.e(f"v_add_u32 v{vPx+nt}, s{sTmp3}, v{b}")
    E.e(f"v_lshrrev_b32 v{a}, 2, v{vN}")
    E.e(f"v_and_b32 v{b}, 3, v{vN}")
    E.e(f"v_and_b32 v{c}, 1, v{b}")
    E.e(f"v_lshlrev_b32 v{c}, 4, v{c}")
    E.e(f"v_mov_b32 v{d_}, 0x3f80")
    E.e(f"v_lshlrev_b32 v{d_}, v{c}, v{d_}")
    E.e(f"v_cmp_eq_u32 vcc, v{a}, v{vG}")
    E.e(f"v_mov_b32 v{c}, 0")
    E.e("s_nop 0")
    E.e(f"v_cndmask_b32 v{d_}, v{c}, v{d_}, vcc")
    E.e(f"v_cmp_gt_u32 vcc, 2, v{b}")
    E.e("s_nop 1")
    E.e(f"v_cndmask_b32 v{ID+2}, v{c}, v{d_}, vcc")
    E.e(f"v_cndmask_b32 v{ID+3}, v{d_}, v{c}, vcc")
    for i in (0, 1, 4, 5): E.e(f"v_mov_b32 v{ID+i}, 0")
    E.wait(v=dwl[2])
    t_write(RAW0, T0LOC, (44, 48))
    t_write(RAW1, T1LOC, (52, 56))
    E.e(f"s_mov_b32 s{sRound}, 0")
    E.e(f"s_mov_b32 s{sRowP}, 0")
    E.e(f"s_mov_b32 s{sRowC}, 0")
    E.wait(v=xd[0])
    E.wait_all_lds(force=True)
    E.e("s_barrier")
    if inprep:
        assert pst == E.nv and xd[1] == E.nv - 1
        E.nv -= 1; E.dv = min(E.dv, E.nv)
    st("prologue")

    dma = {}; rd = {}; gi = {}; resid = {}
    RL, RN = 3, 3
    def out_store(q):
        u, nt = divmod(q, 3); o = Oreg(2*u, nt)
        E.vm(f"buffer_store_dwordx4 v[{o}:{o+3}], v{vPx+nt}, s[20:23], s{sRowP} offen offset:{u*64}")

    def conv_step(s, side=()):
        side = list(side)
        loc = XB if s == 1 else XA
        toff = 0 if s == 1 else T0LOC - T1LOC
        E.c(f"==== conv step {s}")
        E.e(f"v_add_u32 v{t0}, {loc}, v{vXa}")
        E.e(f"v_add_u32 v{t1}, {loc}, v{vXa3}")
        def rd_eo(f):
            e4, o4 = EOq[2*(f & 1)], EOq[2*(f & 1)+1]
            adr = t1 if f == 3 else t0
            off = 0 if f == 3 else f*15360
            E.ds(f"ds_read_b128 v[{e4}:{e4+3}], v{adr} offset:{off}")
            return E.ds(f"ds_read_b128 v[{o4}:{o4+3}], v{adr} offset:{off+1920}")
        def rd_t(idx):
            f, c_ = divmod(idx, 8); r = Tq[idx & 3]
            return E.ds(f"ds_read_b128 v[{r}:{r+3}], v{vT+f} offset:{toff + c_*240}")
        eo = {0: rd_eo(0)}; tt = {}
        for i in range(3): tt[i] = rd_t(i)
        eo[1] = rd_eo(1)
        def mf(f, c_):
            idx = f*8 + c_
            E.wait(l=tt[idx])
            acc = ACC[8*s + c_]
            E.e(mfma(acc, Tq[idx & 3], Bq[c_], None if f == 0 else acc))
            if idx + 3 < 32: tt[idx+3] = rd_t(idx+3)
            if side and c_ != 6 and idx % sp == 0: side.pop(0)()
        for f in range(4):
            e4, o4 = EOq[2*(f & 1)], EOq[2*(f & 1)+1]
            if cprio: E.e(f"s_setprio {3-f}")
            E.wait(l=eo[f])
            for cp in range(4):
                E.e(f"v_perm_b32 v{Bq[2*cp]}, v{o4+cp}, v{e4+cp}, s{sSelLo}")
                E.e(f"v_perm_b32 v{Bq[2*cp+1]}, v{o4+cp}, v{e4+cp}, s{sSelHi}")
            if f + 2 < 4: eo[f+2] = rd_eo(f+2)
            for c_ in range(8):
                bb = Bq[c_]
                for dd in (1, 2, 3):
                    E.e(f"v_mov_b32_dpp v{bb+dd}, v{bb} row_shl:{dd} row_mask:0xf bank_mask:0xf bound_ctrl:1")
                if c_ > 0: mf(f, c_-1)
            E.e("s_nop 1")
            mf(f, 7)
        while side: side.pop(0)()

    def layernorm():
        E.c("==== layernorm")
        ST = CT[0]; ST2 = CT[1]; RHO = CT[2]; BETA = CT[3]
        E.e("s_nop 7")
        if pkln:
            for h in (0, 2):
                E.e(f"v_pk_add_f32 v[{ST+h}:{ST+h+1}], v[{ACC[0]+h}:{ACC[0]+h+1}], v[{ACC[1]+h}:{ACC[1]+h+1}]")
                E.e(f"v_pk_mul_f32 v[{ST2+h}:{ST2+h+1}], v[{ACC[0]+h}:{ACC[0]+h+1}], v[{ACC[0]+h}:{ACC[0]+h+1}]")
            for ch in range(1, 24):
                for h in (0, 2):
                    x_ = f"v[{ACC[ch]+h}:{ACC[ch]+h+1}]"
                    if ch > 1: E.e(f"v_pk_add_f32 v[{ST+h}:{ST+h+1}], v[{ST+h}:{ST+h+1}], {x_}")
                    E.e(f"v_pk_fma_f32 v[{ST2+h}:{ST2+h+1}], {x_}, {x_}, v[{ST2+h}:{ST2+h+1}]")
        else:
            for r in range(4):
                E.e(f"v_mov_b32 v{ST+r}, v{ACC[0]+r}")
                E.e(f"v_mul_f32 v{ST2+r}, v{ACC[0]+r}, v{ACC[0]+r}")
            for ch in range(1, 24):
                for r in range(4):
                    x_ = ACC[ch] + r
                    E.e(f"v_add_f32 v{ST+r}, v{ST+r}, v{x_}")
                    E.e(f"v_fmac_f32 v{ST2+r}, v{x_}, v{x_}")
        E.e(f"v_add_u32 v{t0}, {STLOC}, v{vL16}")
        E.e(f"s_lshl_b32 s{sTmp}, s{sW}, 11")
        E.e(f"v_add_u32 v{t1}, s{sTmp}, v{t0}")
        E.wait_all_lds(force=True)
        if fine: st("ln stats")
        E.e("s_barrier")
        if fine: st("BA")
        E.ds(f"ds_write_b128 v{t1}, v[{ST}:{ST+3}]")
        E.ds(f"ds_write_b128 v{t1}, v[{ST2}:{ST2+3}] offset:1024")
        E.wait_all_lds()
        E.e("s_barrier")
        if fine: st("BB")
        RB = Bq + EOq + Tq
        for w in range(8):
            E.ds(f"ds_read_b128 v[{RB[2*w]}:{RB[2*w]+3}], v{t0} offset:{2048*w}")
            E.ds(f"ds_read_b128 v[{RB[2*w+1]}:{RB[2*w+1]+3}], v{t0} offset:{2048*w+1024}")
        base_id = E.nl - 16
        for w in range(1, 8):
            E.wait(l=base_id + 2*w + 2)
            for h in (0, 2):
                for k, dst in enumerate((ST, ST2)):
                    src = RB[2*w + k]
                    s0 = RB[k] if w == 1 else dst
                    E.e(f"v_pk_add_f32 v[{dst+h}:{dst+h+1}], v[{s0+h}:{s0+h+1}], v[{src+h}:{src+h+1}]")
        E.e(f"s_mov_b32 s{sTmp}, {f2u(1.0/192):#x}")
        E.e(f"s_mov_b32 s{sTmp2}, {f2u(1e-5):#x}")
        for r in range(4):
            m, q, rho, beta = ST+r, ST2+r, RHO+r, BETA+r
            E.e(f"v_mul_f32 v{m}, s{sTmp}, v{m}")
            E.e(f"v_mul_f32 v{q}, s{sTmp}, v{q}")
            E.e(f"v_fma_f32 v{q}, -v{m}, v{m}, v{q}")
            E.e(f"v_max_f32 v{q}, 0, v{q}")
            E.e(f"v_add_f32 v{q}, s{sTmp2}, v{q}")
            E.e(f"v_rsq_f32 v{rho}, v{q}")
            E.e("s_nop 0")
            E.e(f"v_mul_f32 v{rho}, s{sS}, v{rho}")
            E.e(f"v_mul_f32 v{beta}, v{m}, v{rho}")
        if fine: st("ln rho")
        E.e(f"v_add_u32 v{t0}, 32768, v{vHw}")
        E.e("s_mov_b64 s[62:63], exec")
        E.e("s_mov_b64 exec, s[60:61]")
        ta, tb = EOq[0], EOq[0] + 1
        if pkln:
            for ch in range(24):
                for h in (0, 2):
                    x_ = f"v[{ACC[ch]+h}:{ACC[ch]+h+1}]"
                    E.e(f"v_pk_fma_f32 {x_}, {x_}, v[{RHO+h}:{RHO+h+1}], v[{BETA+h}:{BETA+h+1}] neg_lo:[0,0,1] neg_hi:[0,0,1]")
        for cg in range(3):
            for r in range(4):
                o = Bq[(cg*4 + r) & 7]
                for cp in range(4):
                    a0 = ACC[8*cg + 2*cp] + r; a1 = ACC[8*cg + 2*cp + 1] + r
                    if pkln:
                        E.e(f"v_cvt_pk_bf16_f32 v{o+cp}, v{a0}, v{a1}")
                    else:
                        E.e(f"v_fma_f32 v{ta}, v{a0}, v{RHO+r}, -v{BETA+r}")
                        E.e(f"v_fma_f32 v{tb}, v{a1}, v{RHO+r}, -v{BETA+r}")
                        E.e(f"v_cvt_pk_bf16_f32 v{o+cp}, v{ta}, v{tb}")
                off = r*18432 + cg*6144
                adr = vHw
                if off >= 32768: adr, off = t0, off - 32768
                E.ds(f"ds_write_b128 v{adr}, v[{o}:{o+3}] offset:{off}")
        E.e("s_mov_b64 exec, s[62:63]")

    def issue_w(J, i):
        j = J % 24; slot = (J % NS)*SLOT
        E.e(f"s_add_u32 m0, s{sDw}, {slot + i*1024}")
        E.e(f"s_mov_b32 s{sSo}, {j*SLOT + i*1024}")
        dma[J] = E.vm(f"buffer_load_dwordx4 v{vDo}, s[8:11], s{sSo} offen lds")
    def a_read(J, f):
        slot = J % NS
        base, off = (vA2, (slot-2)*SLOT) if slot >= 2 else (vA0, slot*SLOT)
        o = off + (f*1024 if f < 6 else 12288 + (f-6)*1024)
        r = AR + 4*(((J+1)*12 + f) & 3)
        rd[(J, f)] = E.ds(f"ds_read_b128 v[{r}:{r+3}], v{base} offset:{o}")
    def gelu_half(c_, p, hf2):
        nt, hf = divmod(p, 2)
        uA = S + 12*(c_ & 1) + 4*nt + 2*hf; uB = uA + 1
        ta = TT + 2*(p & 1); tb = ta + 1
        gd = GT + 2*(nt & 1) + hf
        if f16:
            if hf2 == 0:
                return [f"v_cvt_pk_f16_f32 v{ta}, v{uA}, v{uB}",
                        f"v_pk_fma_f16 v{tb}, v{ta}, v{ta}, s{sAh}",
                        f"v_pk_mul_f16 v{tb}, v{tb}, v{ta} neg_lo:[1,0] neg_hi:[1,0]",
                        f"v_exp_f16_sdwa v{ta}, v{tb} dst_sel:WORD_0 dst_unused:UNUSED_PAD src0_sel:WORD_0",
                        f"v_exp_f16_sdwa v{ta}, v{tb} dst_sel:WORD_1 dst_unused:UNUSED_PRESERVE src0_sel:WORD_1"]
            return [f"v_pk_fma_f16 v{ta}, v{ta}, s{sSh}, s{sSh}",
                    f"v_rcp_f16_sdwa v{tb}, v{ta} dst_sel:WORD_0 dst_unused:UNUSED_PAD src0_sel:WORD_0",
                    f"v_rcp_f16_sdwa v{tb}, v{ta} dst_sel:WORD_1 dst_unused:UNUSED_PRESERVE src0_sel:WORD_1",
                    f"v_fma_mix_f32 v{ta}, v{uA}, v{tb}, 0 op_sel_hi:[0,1,0]",
                    f"v_fma_mix_f32 v{tb}, v{uB}, v{tb}, 0 op_sel:[0,1,0] op_sel_hi:[0,1,0]",
                    f"v_cvt_pk_bf16_f32 v{gd}, v{ta}, v{tb}"]
        if hf2 == 0:
            return [f"v_fma_f32 v{ta}, -v{uA}, v{uA}, s{sNegA}", f"v_fma_f32 v{tb}, -v{uB}, v{uB}, s{sNegA}",
                    f"v_mul_f32 v{ta}, v{ta}, v{uA}", f"v_mul_f32 v{tb}, v{tb}, v{uB}",
                    f"v_exp_f32 v{ta}, v{ta}", f"v_exp_f32 v{tb}, v{tb}"]
        return [f"v_fma_f32 v{ta}, v{ta}, s{sS}, s{sS}", f"v_fma_f32 v{tb}, v{tb}, s{sS}, s{sS}",
                f"v_rcp_f32 v{ta}, v{ta}", f"v_rcp_f32 v{tb}, v{tb}",
                f"v_mul_f32 v{ta}, v{uA}, v{ta}", f"v_mul_f32 v{tb}, v{uB}, v{tb}",
                f"v_cvt_pk_bf16_f32 v{gd}, v{ta}, v{tb}"]

    def stage(J):
        g1 = 0 <= J + 1 <= 23; g2 = 0 <= J - 1 <= 23
        last = J == 24
        E.c(f"---- stage {J}")
        def needs_frag(JJ, f): return (0 <= JJ + 1 <= 23) if f < 6 else (0 <= JJ - 1 <= 23)
        for g in range(12):
            gg = (g - 8) % 12
            c_ = (J + 1) if g >= 8 else J
            p, hf2 = divmod(gg, 2)
            dog = 0 <= c_ <= 23
            ops = gelu_half(c_, p, hf2) if dog else []
            if f16 and ops: segs = [ops[0:2], ops[2:3], ops[3:]] if hf2 == 1 else [ops[0:2], ops[2:4], ops[4:]]
            else: segs = [ops[0:2], ops[2:4], ops[4:]]
            ar = AR + 4*(((J+1)*12 + g) & 3)
            domf = g1 if g < 6 else g2
            if psched and g in psched and g != 9 and not last: E.e(f"s_setprio {psched[g]}")
            if domf:
                need = rd[(J, g)]
                if wait2 and g % 2 == 0 and (J, g+1) in rd and needs_frag(J, g+1): need = max(need, rd[(J, g+1)])
                if g == 6: need = max(need, gi[2])
                if J == -1 and g < 6: need = max(need, xrd[3*g+2])
                E.wait(l=need)
            for nt in range(3):
                if domf:
                    if g < 6:
                        dd = S + 12*((J+1) & 1) + 4*nt
                        E.e(mfma(dd, ar, X + (g*3+nt)*4, None if g == 0 else dd))
                    else:
                        o = Oreg(g-6, nt)
                        E.e(mfma(o, ar, GI + 4*nt, None if J == 1 else o))
                elif f16 and ops and nt > 0: E.e("s_nop 0")
                if nt == 0:
                    if g == 9:
                        if not last and (J + 1) <= 24 and (J+1) in dma: E.wait(v=dma[J+1])
                        E.wait_all_lds(force=True)
                        E.e("s_barrier")
                        if psched and 9 in psched and not last: E.e(f"s_setprio {psched[9]}")
                        if last: x_base(1)
                    if g + D < 12:
                        if needs_frag(J, g + D) and (J, g + D) not in rd: a_read(J, g + D)
                    elif not last:
                        f2 = g + D - 12
                        if needs_frag(J+1, f2): a_read(J+1, f2)
                    if g < 3 and g2:
                        gi[g] = E.ds(f"ds_read_b128 v[{GI+4*g}:{GI+4*g+3}], v{vGr} offset:{((J-1) & 1)*12288 + g*1024}")
                for o_ in segs[nt]: E.e(o_)
            if dog and hf2 == 1 and (p & 1) == 1:
                nt = p >> 1; gd = GT + 2*(nt & 1)
                E.ds(f"ds_write_b64 v{vGw}, v[{gd}:{gd+1}] offset:{(c_ & 1)*12288 + nt*1024}")
            if last:
                if g >= 9:
                    for q in {9: (0, 1, 2), 10: (3, 4), 11: (5, 6)}[g]: x_dma(1, q, XB)
                if g == 11: prep_next_c(1)
                continue
            for i, gq in enumerate(wsite):
                if g == gq:
                    JJ = J + NS if gq >= 9 else J + NS - 1
                    if 2 <= JJ <= 24: issue_w(JJ, i)
            if g == xsite and 3 <= J < 10:
                if J == 3: x_base(0)
                x_dma(0, J - 3, XA)
            if g == rsite and 2 <= J < 11:
                q = J - 2; u, nt = divmod(q, 3); r = RS + 4*(q % RN)
                resid[q] = E.vm(f"buffer_load_dwordx4 v[{r}:{r+3}], v{vPx+nt}, s[16:19], s{sRowC} offen offset:{u*64}")
            if g == rsite - 1 and 2 + RL <= J < 11 + RL:
                q = J - 2 - RL; u, nt = divmod(q, 3)
                E.wait(v=resid[q])
                for p2 in range(2):
                    o = Oreg(2*u + p2, nt)
                    E.e(mfma(o, ID + (2 if p2 == 0 else 0), RS + 4*(q % RN), o))
            if pf and g == xsite and J in pf:
                sp = 1 + pf.index(J)
                x_base(sp)
                E.e(f"v_add_u32 v{t0}, s{sBase}, v0")
                E.vm(f"buffer_load_dword v{RAW2}, v{t0}, s[4:7], 0 offen")
            if J == 19 and 1 <= g <= 7: dw_load1(2, g - 1, first=(g == 1))
            if J == 22 and g >= 6: dw_load1(0, g - 6, first=(g == 6))
            if J == 23 and g <= 7:
                if g == 0: dw_load1(0, 6)
                else: dw_load1(1, g - 1)
            if J == 0 and g == 6:
                E.e(f"s_add_u32 s{sTileRow}, s{sTileRow}, 8")
                E.e(f"s_cmp_eq_u32 s{sRound}, {NROUND-1}")
                E.e(f"s_cselect_b32 s6, 0, s6")
                E.e(f"s_mov_b32 s22, {XBYTES}")

    def prep_next_c(part):
        if part == 0:
            x_base(1)
            for q in range(7): x_dma(1, q, XB)
        else:
            E.wait(v=dwl[1])
            t_write(RAW0, T0LOC, (S, S+4))
            t_write(RAW1, T1LOC, (S+8, S+12))

    xrd = {}
    state = {"round0": None}
    def round_body():
        conv_step(0, [lambda q=q: out_store(q) for q in range(3)])
        if fine: st("c0 compute")
        E.wait(v=xd[1]); E.wait_all_lds(force=True); E.e("s_barrier")
        if fine: st("B0")
        DT = CT[4]
        def signal():
            E.e(f"s_cmp_eq_u32 s{sRound}, 0")
            E.e(f"s_cselect_b32 s{sTmp}, s86, 0")
            E.e(f"s_cmp_eq_u32 s{sW}, 0")
            E.e(f"s_cselect_b32 s86, s{sTmp}, 0")
            E.e(f"v_mov_b32 v{DT+2}, 0")
            E.e(f"v_mov_b32 v{DT+3}, 1")
            E.e("s_mov_b64 s[62:63], exec")
            E.e("s_mov_b64 exec, 1")
            E.vm(f"buffer_atomic_add v{DT+3}, v{DT+2}, s[84:87], 0 offen sc1")
            E.e("s_mov_b64 exec, s[62:63]")
        side = []
        if inprep: side.append(signal)
        x_base(2)
        side += [lambda q=q: x_dma(2, q, XA, tmp=DT) for q in range(7)]
        side += [lambda: t_write(RAW2, T0LOC, (CT[0], CT[1]), DT+2, DT+3)]
        side += [lambda q=q: out_store(q) for q in range(3, 6)]
        st("conv0", dyn=True)
        conv_step(1, side)
        if fine: st("c1 compute")
        E.wait(v=xd[2]); E.wait_all_lds(force=True); E.e("s_barrier")
        if fine: st("B1")
        if inprep:
            lp = f"{name}_poll"
            E.e(f"s_cmp_lg_u32 s{sRound}, 0")
            E.e(f"s_cbranch_scc1 {lp}_done")
            E.e(f"s_cmp_lg_u32 s{sW}, 0")
            E.e(f"s_cbranch_scc1 {lp}_bar")
            E.e(f"s_mov_b32 s{sTmp2}, 0")
            E.e(f"v_mov_b32 v{t0}, 0")
            E.label(f"{lp}")
            E.e(f"buffer_load_dword v{t1}, v{t0}, s[80:83], 0 offen sc1")
            E.e("s_waitcnt vmcnt(0)")
            E.e(f"v_readfirstlane_b32 s{sTmp}, v{t1}")
            E.e(f"s_add_u32 s{sTmp2}, s{sTmp2}, 1")
            E.e(f"s_cmp_ge_u32 s{sTmp2}, 0x40000")
            E.e(f"s_cbranch_scc1 {lp}_acq")
            E.e(f"s_cmp_lt_u32 s{sTmp}, {nprod}")
            E.e(f"s_cbranch_scc1 {lp}")
            E.label(f"{lp}_acq")
            E.e("buffer_inv sc1")
            E.e("s_waitcnt vmcnt(0)")
            E.label(f"{lp}_bar")
            E.e("s_barrier")
            E.label(f"{lp}_done")
        side = [lambda J=J, i=i: issue_w(J, i) for J in (-1, 0, 1) for i in range(3)]
        side += [lambda q=q: out_store(q) for q in range(6, 9)]
        st("conv1", dyn=True)
        conv_step(2, side)
        st("conv2", dyn=True)
        layernorm()
        if fine: st("ln hwrite")
        E.wait(v=dma[1]); E.wait_all_lds(force=True); E.e("s_barrier")
        if fine: st("BD")
        E.e(f"s_mul_i32 s{sTmp}, s{sPair}, 18432")
        E.e(f"s_add_u32 s{sTmp}, s{sTmp}, {HLOC}")
        E.e(f"v_add_u32 v{t0}, s{sTmp}, v{vL16}")
        for f in range(D): a_read(-1, f)
        for fi in range(18):
            xrd[fi] = E.ds(f"ds_read_b128 v[{X+4*fi}:{X+4*fi+3}], v{t0} offset:{fi*1024}")
        st("ln", dyn=True)
        for J in range(-1, 25):
            stage(J)
            if fine and J in (-1, 0, 1, 2, 12, 22, 23): st(f"stage {J}")
        if fine: st("stage 24")
        E.e("s_setprio 0")
        E.e("s_nop 7")
        for q in range(9):
            u, nt = divmod(q, 3); o = Oreg(2*u, nt)
            for dd in range(4): E.e(f"v_cvt_pk_bf16_f32 v{o+dd}, v{o+2*dd}, v{o+2*dd+1}")
        E.e(f"s_mov_b32 s{sRowP}, s{sRowC}")
        E.e(f"s_add_u32 s{sRowC}, s{sRowC}, {8*147456}")
        E.wait_all_lds(force=True)
        E.e("s_barrier")
        st("mlp", dyn=True)
        rd.clear(); gi.clear(); dma.clear()

    nst = len(stamps)
    E.L.append(".p2align 6")
    E.label(f"{name}_L")
    b0 = len(E.L)
    round_body()
    body = list(E.L[b0:])
    E.e(f"s_add_u32 s{sRound}, s{sRound}, 1")
    E.e(f"s_cmp_lt_u32 s{sRound}, {NROUND}")
    E.e(f"s_cbranch_scc1 {name}_L")
    if not stamp:
        save = len(E.L); sv = (E.nl, E.dl, E.nv, E.dv)
        round_body()
        b2 = E.L[save:]
        if b2 != body:
            for x1, x2 in zip(body, b2):
                if x1 != x2: print("DIFF", x1, "|", x2); break
        assert b2 == body, "not steady"
        del E.L[save:]
    for q in range(9): out_store(q)
    if stamp:
        E.e("s_waitcnt vmcnt(0)")
        st("done")
        E.e(f"s_add_u32 s46, s42, {240<<20}")
        E.e(f"s_addc_u32 s47, s43, 0")
        srd(E, 48, 46, 47, 1 << 20)
        E.e(f"s_lshl_b32 s{sTmp}, s2, 3")
        E.e(f"s_add_u32 s{sTmp}, s{sTmp}, s{sW}")
        E.e(f"s_lshl_b32 s{sTmp}, s{sTmp}, 8")
        E.e(f"v_lshrrev_b32 v{t0}, 2, v{vL16}")
        E.e(f"buffer_store_dword v{STAMP}, v{t0}, s[48:51], s{sTmp} offen")
        if dbgout:
            E.e(f"s_cmp_lg_u32 s2, {dbgout}")
            E.e(f"s_cbranch_scc1 {name}_end")
            E.e(f"s_cmp_lg_u32 s{sW}, 0")
            E.e(f"s_cbranch_scc1 {name}_end")
            E.e(f"v_readlane_b32 s{sTmp}, v{STAMP}, 32")
            E.e("s_nop 3")
            E.e(f"v_subrev_u32 v{t1}, s{sTmp}, v{STAMP}")
            E.e(f"v_lshrrev_b32 v{t0}, 2, v{vL16}")
            E.e(f"v_subrev_u32 v{t0}, {(32+dbgshift)*4 - 4}, v{t0}")
            E.e(f"buffer_store_dword v{t1}, v{t0}, s[80:83], 0 offen")
        global STAMPS; STAMPS = stamps
    E.label(f"{name}_end")
    E.e("s_endpgm")
    return header(name) + E.text() + descriptor(name, 256)

def gen_k0(name):
    E = Em()
    vL, vN, vG, vL16, t0, t1, t2 = 1, 2, 3, 4, 5, 6, 7
    sW, sTmp, sTmp2, sGw, sJ, sQ, sC2, sPb = 3, 24, 25, 50, 51, 52, 53, 58
    E.e("s_cmp_ge_u32 s2, 72")
    E.e(f"s_cbranch_scc1 {name}_end")
    E.e("s_load_dwordx4 s[40:43], s[0:1], 16")
    E.e("s_load_dwordx2 s[44:45], s[0:1], 48")
    E.e(f"v_lshrrev_b32 v{t0}, 6, v0")
    E.e(f"v_and_b32 v{vL}, 63, v0")
    E.e(f"v_readfirstlane_b32 s{sW}, v{t0}")
    E.e(f"v_and_b32 v{vN}, 15, v{vL}")
    E.e(f"v_lshrrev_b32 v{vG}, 4, v{vL}")
    E.e(f"v_lshlrev_b32 v{vL16}, 4, v{vL}")
    E.e("s_waitcnt lgkmcnt(0)")
    srd(E, 20, 44, 45, 24*24576)
    emit_prep_loads(E, name, sW, vN, vG, t0, t1, t2, sTmp, sTmp2, 8, 40)
    E.e("s_waitcnt vmcnt(0)")
    for d in range(4): E.e(f"v_lshl_or_b32 v{16+d}, v{8+2*d+1}, 16, v{8+2*d}")
    E.e(f"s_mul_i32 s{sTmp}, s51, 24576")
    E.e(f"s_lshl_b32 s{sTmp2}, s52, 10")
    E.e(f"s_add_u32 s{sTmp}, s{sTmp}, s{sTmp2}")
    E.e(f"buffer_store_dwordx4 v[16:19], v{vL16}, s[20:23], s{sTmp} offen")
    E.label(f"{name}_end")
    E.e("s_endpgm")
    return header(name) + E.text() + descriptor(name, 32)

def emit_prep_loads(E, name, sW, vN, vG, t0, t1, t2, sTmp, sTmp2, PW, wptr):
    lw2 = f"{name}_pw2"; lst = f"{name}_pst"
    sGw, sJ, sQ, sC2, sPb = 50, 51, 52, 53, 68
    E.e(f"s_lshl_b32 s{sGw}, s2, 3")
    E.e(f"s_add_u32 s{sGw}, s{sGw}, s{sW}")
    E.e(f"s_mul_i32 s{sJ}, s{sGw}, 2731")
    E.e(f"s_lshr_b32 s{sJ}, s{sJ}, 16")
    E.e(f"s_mul_i32 s{sTmp}, s{sJ}, 24")
    E.e(f"s_sub_u32 s{sQ}, s{sGw}, s{sTmp}")
    E.e(f"s_cmp_ge_u32 s{sQ}, 12")
    E.e(f"s_cbranch_scc1 {lw2}")
    srd(E, 64, wptr, wptr+1, 192*768*2)
    E.e(f"s_add_u32 s{sC2}, s{sJ}, 1")
    E.e(f"s_cmp_eq_u32 s{sC2}, 24")
    E.e(f"s_cselect_b32 s{sC2}, 0, s{sC2}")
    E.e(f"s_cmp_ge_u32 s{sQ}, 6")
    E.e(f"s_cselect_b32 s{sTmp}, 1, 0")
    E.e(f"s_mul_i32 s{sTmp2}, s{sTmp}, 6")
    E.e(f"s_sub_u32 s{sTmp2}, s{sQ}, s{sTmp2}")
    E.e(f"s_mul_i32 s{sTmp2}, s{sTmp2}, 49152")
    E.e(f"s_lshl_b32 s{sTmp}, s{sTmp}, 5")
    E.e(f"s_add_u32 s{sTmp2}, s{sTmp2}, s{sTmp}")
    E.e(f"s_lshl_b32 s{sTmp}, s{sC2}, 6")
    E.e(f"s_add_u32 s{sPb}, s{sTmp2}, s{sTmp}")
    E.e(f"v_mul_u32_u24 v{t0}, 12288, v{vG}")
    E.e(f"v_lshl_add_u32 v{t0}, v{vN}, 1, v{t0}")
    E.e("s_mov_b32 s69, 1536")
    E.e("s_mov_b32 s70, 1536")
    E.e(f"s_branch {lst}")
    E.label(lw2)
    srd(E, 64, wptr+2, wptr+3, 192*768*2)
    E.e(f"s_add_u32 s{sC2}, s{sJ}, 23")
    E.e(f"s_cmp_ge_u32 s{sC2}, 24")
    E.e(f"s_cselect_b32 s{sTmp}, 24, 0")
    E.e(f"s_sub_u32 s{sC2}, s{sC2}, s{sTmp}")
    E.e(f"s_sub_u32 s{sTmp}, s{sQ}, 12")
    E.e(f"s_lshr_b32 s{sTmp2}, s{sTmp}, 1")
    E.e(f"s_lshl_b32 s{sTmp2}, s{sTmp2}, 6")
    E.e(f"s_and_b32 s{sTmp}, s{sTmp}, 1")
    E.e(f"s_lshl_b32 s{sTmp}, s{sTmp}, 3")
    E.e(f"s_add_u32 s{sTmp2}, s{sTmp2}, s{sTmp}")
    E.e(f"s_mul_i32 s{sTmp}, s{sC2}, 12288")
    E.e(f"s_add_u32 s{sPb}, s{sTmp2}, s{sTmp}")
    E.e(f"v_lshrrev_b32 v{t1}, 2, v{vN}")
    E.e(f"v_and_b32 v{t2}, 3, v{vN}")
    E.e(f"v_lshl_add_u32 v{t1}, v{t1}, 3, v{t2}")
    E.e(f"v_mul_u32_u24 v{t0}, 1536, v{vG}")
    E.e(f"v_lshl_add_u32 v{t0}, v{t1}, 1, v{t0}")
    E.e("s_mov_b32 s69, 384")
    E.e(f"s_mov_b32 s70, {6144 - 3*384}")
    E.label(lst)
    E.e(f"s_cmp_lt_u32 s{sGw}, 576")
    E.e("s_cselect_b32 s66, s66, 0")
    last = None
    for e in range(8):
        last = E.vm(f"buffer_load_ushort v{PW+e}, v{t0}, s[64:67], s{sPb} offen")
        if e < 7: E.e(f"s_add_u32 s{sPb}, s{sPb}, s{70 if e == 3 else 69}")
    return last

if __name__ == "__main__":
    print(gen_f1("f1_kernel"))
```

```python
from em import *
import math
A_ = 2*math.sqrt(2/math.pi)*math.log2(math.e); B_ = A_*0.044715; S_ = B_**(1/3)
XBYTES = 384*384*384
SLOT = 24576; NS = 3
GBUF = NS*SLOT
PBUF = GBUF + 24576
XA, XB = PBUF, 0
T1LOC, T0LOC = 57344, GBUF
HLOC = GBUF
STLOC = 147456
F1_LDS = 163840
NROUND = 3
D = 3

def mfma(d, a, b, c=None):
    src = "0" if c is None else f"v[{c}:{c+3}]"
    return f"v_mfma_f32_16x16x32_bf16 v[{d}:{d+3}], v[{a}:{a+3}], v[{b}:{b+3}], {src}"

def gen_f1(name, stamp=False, f16=False, psched={9: 3, 5: 2, 7: 1, 8: 0}, wsite=(9, 11, 1), rsite=4, xsite=3, wait2=True, strip=(), inprep=True, pkln=True, pf=(14, 17), nprod=72, fine=False, sp=2, cprio=True, dbgout=False, dbgshift=0, stflag='', xflag='', rflag=''):
    E = Em()
    sW, sPair, sHb = 3, 33, 35
    sTmp, sTmp2, sTmp3 = 24, 25, 28
    sSelLo, sSelHi = 26, 27
    sNegA, sS, sAh, sSh = 29, 30, 92, 93
    sR0, sC0 = 44, 45
    sBase = 31
    sTileRow = 32
    sRowP, sRowC, sRound = 54, 55, 56
    sDw, sSo, sM0w, sDwo = 57, 34, 58, 59
    vL16 = 1; vDS = 2; vXa, vXa3 = 9, 10; vT = 11; vHw = 15
    vA0, vA2, vGr, vGw, vDo = 16, 17, 18, 19, 20
    vPx = 21; ID = 24; t0, t1 = 30, 31
    TT, GT, RS, AR, GI, S, X, O = 32, 36, 40, 52, 68, 80, 104, 176
    RAW2 = 248
    STAMP = 255
    RAW0, RAW1 = X, X + 8
    def Oreg(i, nt): return O + (((i >> 1)*3 + nt)*2 + (i & 1))*4
    packed = [Oreg(2*u, nt) for u in range(3) for nt in range(3)]
    free = [q for q in range(32, 248, 4) if q not in packed]
    ACC = free[:24]; Bq = free[24:32]; EOq = free[32:36]; Tq = free[36:40]
    CT = free[40:45]
    assert all(EOq[i+1] == EOq[i] + 4 for i in (0, 2)) or True

    stamps = []
    def st(tag, dyn=False):
        if not stamp: return
        if fine and dyn: dyn = False
        if dyn:
            base = len(stamps)
            for r in range(NROUND): stamps.append(f"{tag} r{r}")
            E.e(f"s_add_u32 m0, s{sRound}, {base}")
            E.e("s_memtime s[96:97]"); E.e("s_waitcnt lgkmcnt(0)")
            E.e(f"v_writelane_b32 v{STAMP}, s96, m0")
            E.e("s_add_u32 m0, m0, 32")
            E.e("s_memrealtime s[96:97]"); E.e("s_waitcnt lgkmcnt(0)")
            E.e(f"v_writelane_b32 v{STAMP}, s96, m0")
        else:
            i = len(stamps); stamps.append(tag)
            E.e("s_memtime s[96:97]"); E.e("s_waitcnt lgkmcnt(0)")
            E.e(f"v_writelane_b32 v{STAMP}, s96, {i}")
            E.e("s_memrealtime s[96:97]"); E.e("s_waitcnt lgkmcnt(0)")
            E.e(f"v_writelane_b32 v{STAMP}, s96, {32+i}")
        E.dl = E.nl

    E.e("s_cmp_ge_u32 s2, 256")
    E.e(f"s_cbranch_scc1 {name}_end")
    E.e("s_load_dwordx4 s[36:39], s[0:1], 0")
    E.e("s_load_dwordx2 s[40:41], s[0:1], 32")
    E.e("s_load_dwordx2 s[42:43], s[0:1], 48")
    if inprep:
        E.e("s_load_dwordx4 s[72:75], s[0:1], 16")
        E.e("s_load_dwordx2 s[76:77], s[0:1], 40")
    vL, vN, vG = 32, 33, 34
    a, b, c, d_, e_, f_, g_ = 35, 36, 37, 38, 39, 40, 41
    E.e(f"v_lshrrev_b32 v{a}, 6, v0")
    E.e(f"v_and_b32 v{vL}, 63, v0")
    E.e(f"v_readfirstlane_b32 s{sW}, v{a}")
    E.e(f"v_and_b32 v{vN}, 15, v{vL}")
    E.e(f"v_lshrrev_b32 v{vG}, 4, v{vL}")
    E.e(f"v_lshlrev_b32 v{vL16}, 4, v{vL}")
    E.e(f"s_and_b32 s{sPair}, s{sW}, 3")
    E.e(f"s_lshr_b32 s{sHb}, s{sW}, 2")
    E.e(f"s_mov_b32 s{sSelLo}, 0x05040100")
    E.e(f"s_mov_b32 s{sSelHi}, 0x07060302")
    E.e(f"s_mov_b32 s{sNegA}, {f2u(-A_/S_):#x}")
    E.e(f"s_mov_b32 s{sS}, {f2u(S_):#x}")
    if f16:
        import numpy as np
        h16 = lambda x: int(np.array([x], np.float16).view(np.uint16)[0])
        E.e(f"s_mov_b32 s{sAh}, {h16(A_/S_)*0x10001:#x}")
        E.e(f"s_mov_b32 s{sSh}, {h16(S_)*0x10001:#x}")
    E.e(f"s_and_b32 s{sTmp}, s2, 7")
    E.e(f"s_lshl_b32 s{sTmp}, s{sTmp}, 5")
    E.e(f"s_lshr_b32 s{sTmp2}, s2, 3")
    E.e(f"s_add_u32 s{sTmp}, s{sTmp}, s{sTmp2}")
    E.e(f"s_lshr_b32 s{sR0}, s{sTmp}, 4")
    E.e(f"s_mul_i32 s{sR0}, s{sR0}, 24")
    E.e(f"s_and_b32 s{sC0}, s{sTmp}, 15")
    E.e(f"s_mul_i32 s{sC0}, s{sC0}, 24")
    E.e(f"s_mul_i32 s{sM0w}, s{sW}, 7168")
    E.e(f"s_mul_i32 s{sDw}, s{sW}, 3072")
    E.e(f"s_mul_i32 s{sDwo}, s{sW}, 2688")
    E.e(f"s_cmp_eq_u32 s{sW}, 7")
    E.e(f"s_cselect_b32 s{sDwo}, 0x100000, s{sDwo}")
    E.e("s_waitcnt lgkmcnt(0)")
    srd(E, 4, 36, 37, XBYTES)
    srd(E, 16, 36, 37, XBYTES)
    srd(E, 12, 38, 39, 7*7*192*2)
    srd(E, 8, 42, 43, 24*SLOT)
    srd(E, 20, 40, 41, XBYTES)
    E.e("s_mov_b32 s22, 0")
    if stamp: E.e(f"v_mov_b32 v{STAMP}, 0")
    st("start")

    dwl = {}
    def dw_load1(cb, j, first=False):
        base = (RAW0, RAW1, RAW2)[cb]
        if first: E.e(f"v_lshrrev_b32 v{t0}, 3, v{vL16}")
        if j == 0 or first: E.e(f"s_add_u32 s71, s{sDwo}, {128*cb}")
        dwl[cb] = E.vm(f"buffer_load_ushort v{base+j}, v{t0}, s[12:15], s71 offen offset:{384*j}")
    def dw_loads():
        for cb in range(3):
            for j in range(7): dw_load1(cb, j, first=(cb == 0 and j == 0))
    def t_write(raw, loc, u, t0=t0, t1=t1):
        u0, u1 = u
        E.e(f"v_lshl_or_b32 v{u0+0}, v{raw+1}, 16, v{raw+0}")
        E.e(f"v_lshl_or_b32 v{u0+1}, v{raw+3}, 16, v{raw+2}")
        E.e(f"v_lshl_or_b32 v{u0+2}, v{raw+5}, 16, v{raw+4}")
        E.e(f"v_mov_b32 v{u0+3}, v{raw+6}")
        E.e(f"v_lshlrev_b32 v{u1+0}, 16, v{raw+0}")
        E.e(f"v_lshl_or_b32 v{u1+1}, v{raw+2}, 16, v{raw+1}")
        E.e(f"v_lshl_or_b32 v{u1+2}, v{raw+4}, 16, v{raw+3}")
        E.e(f"v_lshl_or_b32 v{u1+3}, v{raw+6}, 16, v{raw+5}")
        E.e(f"v_mul_u32_u24 v{t0}, 15, v{vL16}")
        E.e(f"s_lshl_b32 s{sTmp}, s{sW}, 5")
        E.e(f"s_add_u32 s{sTmp}, s{sTmp}, {loc}")
        E.e(f"v_add_u32 v{t0}, s{sTmp}, v{t0}")
        E.e(f"s_cmp_eq_u32 s{sW}, 7")
        E.e(f"s_cselect_b32 s{sTmp}, 0, 16")
        E.e(f"v_add_u32 v{t1}, s{sTmp}, v{t0}")
        E.ds(f"ds_write_b128 v{t0}, v[{u0}:{u0+3}]")
        E.ds(f"ds_write_b128 v{t1}, v[{u1}:{u1+3}]")

    xd = {}
    E.e(f"s_mov_b32 s{sTileRow}, s{sR0}")
    E.e(f"s_sub_u32 s{sBase}, s{sTileRow}, 3")
    E.e(f"s_mul_i32 s{sBase}, s{sBase}, 384")
    E.e(f"s_add_u32 s{sBase}, s{sBase}, s{sC0}")
    E.e(f"s_sub_u32 s{sBase}, s{sBase}, 3")
    E.e(f"s_mul_i32 s{sBase}, s{sBase}, 384")
    E.e(f"s_mul_i32 s{sTmp}, s{sW}, 448")
    E.e(f"s_sub_u32 s{sTmp2}, s{sC0}, 3")
    for q in range(7):
        P, r, rem, sl, n_, dx, tt = a, b, c, d_, e_, f_, g_
        E.e(f"v_add_u32 v{P}, s{sTmp}, v{vL}")
        if q: E.e(f"v_add_u32 v{P}, {64*q}, v{P}")
        E.e(f"v_mul_u32_u24 v{r}, 4370, v{P}")
        E.e(f"v_lshrrev_b32 v{r}, 20, v{r}")
        E.e(f"v_mul_u32_u24 v{rem}, 240, v{r}")
        E.e(f"v_sub_u32 v{rem}, v{P}, v{rem}")
        E.e(f"v_lshrrev_b32 v{sl}, 3, v{rem}")
        E.e(f"v_and_b32 v{rem}, 7, v{rem}")
        E.e(f"v_cmp_le_u32 vcc, 15, v{sl}")
        E.e(f"v_mov_b32 v{dx}, 0")
        E.e("s_nop 0")
        E.e(f"v_addc_co_u32 v{dx}, vcc, 0, v{dx}, vcc")
        E.e(f"v_mul_u32_u24 v{n_}, 15, v{dx}")
        E.e(f"v_sub_u32 v{n_}, v{sl}, v{n_}")
        E.e(f"v_lshrrev_b32 v{sl}, 1, v{n_}")
        E.e(f"v_sub_u32 v{rem}, v{rem}, v{sl}")
        E.e(f"v_and_b32 v{rem}, 7, v{rem}")
        E.e(f"v_lshl_add_u32 v{n_}, v{n_}, 1, v{dx}")
        dd = vDS + q
        E.e(f"s_mov_b32 s{sTmp3}, 147456")
        E.e(f"v_mul_lo_u32 v{dd}, v{r}, s{sTmp3}")
        E.e(f"v_mul_u32_u24 v{tt}, 384, v{n_}")
        E.e(f"v_add_u32 v{dd}, v{dd}, v{tt}")
        E.e(f"v_lshl_add_u32 v{dd}, v{rem}, 4, v{dd}")
        E.e(f"v_add_u32 v{tt}, s{sTmp2}, v{n_}")
        E.e(f"v_cmp_gt_u32 vcc, 384, v{tt}")
        E.e(f"s_movk_i32 s{sTmp3}, 3360")
        E.e(f"v_cmp_gt_u32 s[48:49], s{sTmp3}, v{P}")
        E.e("s_nop 1")
        E.e("s_and_b64 vcc, vcc, s[48:49]")
        E.e(f"v_mov_b32 v{tt}, 0x40000000")
        E.e("s_nop 0")
        E.e(f"v_cndmask_b32 v{dd}, v{tt}, v{dd}, vcc")
        E.e(f"s_add_u32 m0, s{sM0w}, {XA + 1024*q}")
        E.e(f"v_add_u32 v{t0}, s{sBase}, v{dd}")
        xd[0] = E.vm(f"buffer_load_dwordx4 v{t0}, s[4:7], 0 offen lds")
    def x_base(s):
        E.e(f"s_sub_u32 s{sBase}, s{sTileRow}, 3")
        E.e(f"s_mul_i32 s{sBase}, s{sBase}, 384")
        E.e(f"s_add_u32 s{sBase}, s{sBase}, s{sC0}")
        E.e(f"s_sub_u32 s{sBase}, s{sBase}, 3")
        E.e(f"s_mul_i32 s{sBase}, s{sBase}, 384")
        if s: E.e(f"s_add_u32 s{sBase}, s{sBase}, {128*s}")
    def x_dma(s, q, loc, tmp=None):
        tv = (t0 if (q & 1) == 0 else t1) if tmp is None else tmp + (q & 1)
        E.e(f"s_add_u32 m0, s{sM0w}, {loc + 1024*q}")
        E.e(f"v_add_u32 v{tv}, s{sBase}, v{vDS+q}")
        xd[s] = E.vm(f"buffer_load_dwordx4 v{tv}, s[4:7], 0 offen{xflag} lds")
    PW = 60
    if inprep:
        pld = emit_prep_loads(E, name, sW, vN, vG, a, b, c, sTmp, sTmp2, PW, 72)
        srd(E, 80, 76, 77, 256)
        srd(E, 84, 76, 77, 256)
        E.e(f"s_cmp_lt_u32 s2, {nprod}")
        E.e("s_cselect_b32 s86, s86, 0")
        srd(E, 88, 42, 43, 24*SLOT)
        E.e(f"s_cmp_lt_u32 s2, {nprod}")
        E.e("s_cselect_b32 s90, s90, 0")
    dw_loads()
    x_base(1)
    for q in range(7): x_dma(1, q, XB)
    pst = None
    if inprep:
        E.wait(v=pld)
        for d in range(4): E.e(f"v_lshl_or_b32 v{68+d}, v{PW+2*d+1}, 16, v{PW+2*d}")
        E.e(f"s_mul_i32 s{sTmp}, s51, 24576")
        E.e(f"s_lshl_b32 s{sTmp2}, s52, 10")
        E.e(f"s_add_u32 s{sTmp}, s{sTmp}, s{sTmp2}")
        pst = E.vm(f"buffer_store_dwordx4 v[68:71], v{vL16}, s[88:91], s{sTmp} offen sc1")
    E.e(f"s_mul_i32 s{sTmp}, s{sW}, 53")
    E.e(f"v_add_u32 v{a}, s{sTmp}, v{vL}")
    E.e(f"v_mul_u32_u24 v{b}, 2185, v{a}")
    E.e(f"v_lshrrev_b32 v{b}, 16, v{b}")
    E.e(f"v_mul_u32_u24 v{c}, 30, v{b}")
    E.e(f"v_sub_u32 v{c}, v{a}, v{c}")
    E.e(f"s_mov_b32 s{sTmp3}, 147456")
    E.e(f"v_mul_lo_u32 v{d_}, v{b}, s{sTmp3}")
    E.e(f"v_mul_u32_u24 v{e_}, 384, v{c}")
    E.e(f"v_add_u32 v{d_}, v{d_}, v{e_}")
    E.e(f"s_sub_u32 s{sTmp2}, s{sC0}, 3")
    E.e(f"v_add_u32 v{e_}, s{sTmp2}, v{c}")
    E.e(f"v_cmp_gt_u32 vcc, 384, v{e_}")
    E.e(f"s_movk_i32 s{sTmp3}, 420")
    E.e(f"v_cmp_gt_u32 s[48:49], s{sTmp3}, v{a}")
    E.e("s_nop 1")
    E.e("s_and_b64 vcc, vcc, s[48:49]")
    E.e(f"v_cmp_gt_u32 s[48:49], 53, v{vL}")
    E.e("s_nop 1")
    E.e("s_and_b64 vcc, vcc, s[48:49]")
    E.e(f"v_mov_b32 v{e_}, 0x40000000")
    E.e("s_nop 0")
    E.e(f"v_cndmask_b32 v0, v{e_}, v{d_}, vcc")
    E.e(f"v_lshrrev_b32 v{a}, 1, v{vN}")
    E.e(f"v_add_u32 v{a}, s{sW}, v{a}")
    E.e(f"v_and_b32 v{a}, 7, v{a}")
    E.e(f"v_lshlrev_b32 v{a}, 4, v{a}")
    E.e(f"v_lshl_add_u32 v{a}, v{vN}, 7, v{a}")
    E.e(f"v_mul_u32_u24 v{b}, 3840, v{vG}")
    E.e(f"v_add_u32 v{vXa}, v{a}, v{b}")
    E.e(f"v_add_u32 v{b}, 12, v{vG}")
    E.e(f"v_min_u32 v{b}, 13, v{b}")
    E.e(f"v_mul_u32_u24 v{b}, 3840, v{b}")
    E.e(f"v_add_u32 v{vXa3}, v{a}, v{b}")
    E.e(f"v_lshrrev_b32 v{a}, 1, v{vN}")
    E.e(f"v_and_b32 v{b}, 1, v{vN}")
    E.e(f"v_sub_u32 v{a}, v{vG}, v{a}")
    E.e(f"s_mul_i32 s{sTmp}, s{sW}, 1920")
    E.e(f"s_add_u32 s{sTmp}, s{sTmp}, {T1LOC}")
    for f in range(4):
        E.e(f"v_add_u32 v{c}, {4*f}, v{a}")
        E.e(f"v_lshl_add_u32 v{d_}, v{c}, 1, v{b}")
        E.e(f"v_cmp_gt_u32 vcc, 7, v{c}")
        E.e(f"v_mov_b32 v{e_}, 14")
        E.e("s_nop 0")
        E.e(f"v_cndmask_b32 v{d_}, v{e_}, v{d_}, vcc")
        E.e(f"v_lshlrev_b32 v{d_}, 4, v{d_}")
        E.e(f"v_add_u32 v{vT+f}, s{sTmp}, v{d_}")
    E.e(f"v_mul_u32_u24 v{a}, 12, v{vG}")
    E.e(f"v_add_u32 v{a}, v{a}, v{vN}")
    E.e(f"v_lshrrev_b32 v{b}, 4, v{a}")
    E.e(f"v_and_b32 v{a}, 15, v{a}")
    E.e(f"v_lshlrev_b32 v{a}, 4, v{a}")
    E.e(f"v_lshl_add_u32 v{a}, v{b}, 10, v{a}")
    E.e(f"s_mul_i32 s{sTmp}, s{sHb}, 3072")
    E.e(f"s_lshl_b32 s{sTmp2}, s{sPair}, 8")
    E.e(f"s_add_u32 s{sTmp}, s{sTmp}, s{sTmp2}")
    E.e(f"s_add_u32 s{sTmp}, s{sTmp}, {HLOC}")
    E.e(f"v_add_u32 v{vHw}, s{sTmp}, v{a}")
    E.e(f"v_cmp_gt_u32 s[60:61], 12, v{vN}")
    E.e(f"s_mul_i32 s{sTmp}, s{sHb}, 6144")
    E.e(f"v_add_u32 v{vA0}, s{sTmp}, v{vL16}")
    E.e(f"v_add_u32 v{vA2}, {2*SLOT}, v{vA0}")
    E.e(f"s_mul_i32 s{sTmp}, s{sPair}, 3072")
    E.e(f"s_add_u32 s{sTmp}, s{sTmp}, {GBUF}")
    E.e(f"v_add_u32 v{vGr}, s{sTmp}, v{vL16}")
    E.e(f"s_lshl_b32 s{sTmp2}, s{sHb}, 3")
    E.e(f"v_add_u32 v{vGw}, s{sTmp2}, v{vGr}")
    E.e(f"v_add_u32 v{vDo}, s{sDw}, v{vL16}")
    E.e(f"s_lshr_b32 s{sTmp}, s{sPair}, 1")
    E.e(f"s_add_u32 s46, s{sR0}, s{sTmp}")
    E.e(f"s_and_b32 s{sTmp}, s{sPair}, 1")
    E.e(f"s_add_u32 s47, s{sC0}, s{sTmp}")
    E.e(f"s_mul_i32 s{sTmp3}, s{sHb}, 192")
    for nt in range(3):
        E.e(f"v_add_u32 v{a}, {16*nt}, v{vN}")
        E.e(f"v_mul_u32_u24 v{b}, 43, v{a}")
        E.e(f"v_lshrrev_b32 v{b}, 9, v{b}")
        E.e(f"v_mul_u32_u24 v{c}, 12, v{b}")
        E.e(f"v_sub_u32 v{c}, v{a}, v{c}")
        E.e(f"v_lshl_add_u32 v{b}, v{b}, 1, s46")
        E.e(f"v_lshl_add_u32 v{c}, v{c}, 1, s47")
        E.e(f"v_mul_u32_u24 v{b}, 384, v{b}")
        E.e(f"v_add_u32 v{b}, v{b}, v{c}")
        E.e(f"v_mul_u32_u24 v{b}, 384, v{b}")
        E.e(f"v_lshl_add_u32 v{b}, v{vG}, 4, v{b}")
        E.e(f"v_add_u32 v{vPx+nt}, s{sTmp3}, v{b}")
    E.e(f"v_lshrrev_b32 v{a}, 2, v{vN}")
    E.e(f"v_and_b32 v{b}, 3, v{vN}")
    E.e(f"v_and_b32 v{c}, 1, v{b}")
    E.e(f"v_lshlrev_b32 v{c}, 4, v{c}")
    E.e(f"v_mov_b32 v{d_}, 0x3f80")
    E.e(f"v_lshlrev_b32 v{d_}, v{c}, v{d_}")
    E.e(f"v_cmp_eq_u32 vcc, v{a}, v{vG}")
    E.e(f"v_mov_b32 v{c}, 0")
    E.e("s_nop 0")
    E.e(f"v_cndmask_b32 v{d_}, v{c}, v{d_}, vcc")
    E.e(f"v_cmp_gt_u32 vcc, 2, v{b}")
    E.e("s_nop 1")
    E.e(f"v_cndmask_b32 v{ID+2}, v{c}, v{d_}, vcc")
    E.e(f"v_cndmask_b32 v{ID+3}, v{d_}, v{c}, vcc")
    for i in (0, 1, 4, 5): E.e(f"v_mov_b32 v{ID+i}, 0")
    E.wait(v=dwl[2])
    t_write(RAW0, T0LOC, (44, 48))
    t_write(RAW1, T1LOC, (52, 56))
    E.e(f"s_mov_b32 s{sRound}, 0")
    E.e(f"s_mov_b32 s{sRowP}, 0")
    E.e(f"s_mov_b32 s{sRowC}, 0")
    E.wait(v=xd[0])
    E.wait_all_lds(force=True)
    E.e("s_barrier")
    if inprep:
        assert pst == E.nv and xd[1] == E.nv - 1
        E.nv -= 1; E.dv = min(E.dv, E.nv)
    st("prologue")

    dma = {}; rd = {}; gi = {}; resid = {}
    RL, RN = 3, 3
    def out_store(q):
        u, nt = divmod(q, 3); o = Oreg(2*u, nt)
        E.vm(f"buffer_store_dwordx4 v[{o}:{o+3}], v{vPx+nt}, s[20:23], s{sRowP} offen offset:{u*64}{stflag}")

    def conv_step(s, side=()):
        side = list(side)
        loc = XB if s == 1 else XA
        toff = 0 if s == 1 else T0LOC - T1LOC
        E.c(f"==== conv step {s}")
        E.e(f"v_add_u32 v{t0}, {loc}, v{vXa}")
        E.e(f"v_add_u32 v{t1}, {loc}, v{vXa3}")
        def rd_eo(f):
            e4, o4 = EOq[2*(f & 1)], EOq[2*(f & 1)+1]
            adr = t1 if f == 3 else t0
            off = 0 if f == 3 else f*15360
            E.ds(f"ds_read_b128 v[{e4}:{e4+3}], v{adr} offset:{off}")
            return E.ds(f"ds_read_b128 v[{o4}:{o4+3}], v{adr} offset:{off+1920}")
        def rd_t(idx):
            f, c_ = divmod(idx, 8); r = Tq[idx & 3]
            return E.ds(f"ds_read_b128 v[{r}:{r+3}], v{vT+f} offset:{toff + c_*240}")
        eo = {0: rd_eo(0)}; tt = {}
        for i in range(3): tt[i] = rd_t(i)
        eo[1] = rd_eo(1)
        def mf(f, c_):
            idx = f*8 + c_
            E.wait(l=tt[idx])
            acc = ACC[8*s + c_]
            E.e(mfma(acc, Tq[idx & 3], Bq[c_], None if f == 0 else acc))
            if idx + 3 < 32: tt[idx+3] = rd_t(idx+3)
            if side and c_ != 6 and idx % sp == 0: side.pop(0)()
        for f in range(4):
            e4, o4 = EOq[2*(f & 1)], EOq[2*(f & 1)+1]
            if cprio: E.e(f"s_setprio {3-f}")
            E.wait(l=eo[f])
            for cp in range(4):
                E.e(f"v_perm_b32 v{Bq[2*cp]}, v{o4+cp}, v{e4+cp}, s{sSelLo}")
                E.e(f"v_perm_b32 v{Bq[2*cp+1]}, v{o4+cp}, v{e4+cp}, s{sSelHi}")
            if f + 2 < 4: eo[f+2] = rd_eo(f+2)
            for c_ in range(8):
                bb = Bq[c_]
                for dd in (1, 2, 3):
                    E.e(f"v_mov_b32_dpp v{bb+dd}, v{bb} row_shl:{dd} row_mask:0xf bank_mask:0xf bound_ctrl:1")
                if c_ > 0: mf(f, c_-1)
            E.e("s_nop 1")
            mf(f, 7)
        while side: side.pop(0)()

    def layernorm():
        E.c("==== layernorm")
        ST = CT[0]; ST2 = CT[1]; RHO = CT[2]; BETA = CT[3]
        E.e("s_nop 7")
        if pkln:
            for h in (0, 2):
                E.e(f"v_pk_add_f32 v[{ST+h}:{ST+h+1}], v[{ACC[0]+h}:{ACC[0]+h+1}], v[{ACC[1]+h}:{ACC[1]+h+1}]")
                E.e(f"v_pk_mul_f32 v[{ST2+h}:{ST2+h+1}], v[{ACC[0]+h}:{ACC[0]+h+1}], v[{ACC[0]+h}:{ACC[0]+h+1}]")
            for ch in range(1, 24):
                for h in (0, 2):
                    x_ = f"v[{ACC[ch]+h}:{ACC[ch]+h+1}]"
                    if ch > 1: E.e(f"v_pk_add_f32 v[{ST+h}:{ST+h+1}], v[{ST+h}:{ST+h+1}], {x_}")
                    E.e(f"v_pk_fma_f32 v[{ST2+h}:{ST2+h+1}], {x_}, {x_}, v[{ST2+h}:{ST2+h+1}]")
        else:
            for r in range(4):
                E.e(f"v_mov_b32 v{ST+r}, v{ACC[0]+r}")
                E.e(f"v_mul_f32 v{ST2+r}, v{ACC[0]+r}, v{ACC[0]+r}")
            for ch in range(1, 24):
                for r in range(4):
                    x_ = ACC[ch] + r
                    E.e(f"v_add_f32 v{ST+r}, v{ST+r}, v{x_}")
                    E.e(f"v_fmac_f32 v{ST2+r}, v{x_}, v{x_}")
        E.e(f"v_add_u32 v{t0}, {STLOC}, v{vL16}")
        E.e(f"s_lshl_b32 s{sTmp}, s{sW}, 11")
        E.e(f"v_add_u32 v{t1}, s{sTmp}, v{t0}")
        E.wait_all_lds(force=True)
        if fine: st("ln stats")
        E.e("s_barrier")
        if fine: st("BA")
        E.ds(f"ds_write_b128 v{t1}, v[{ST}:{ST+3}]")
        E.ds(f"ds_write_b128 v{t1}, v[{ST2}:{ST2+3}] offset:1024")
        E.wait_all_lds()
        E.e("s_barrier")
        if fine: st("BB")
        RB = Bq + EOq + Tq
        for w in range(8):
            E.ds(f"ds_read_b128 v[{RB[2*w]}:{RB[2*w]+3}], v{t0} offset:{2048*w}")
            E.ds(f"ds_read_b128 v[{RB[2*w+1]}:{RB[2*w+1]+3}], v{t0} offset:{2048*w+1024}")
        base_id = E.nl - 16
        for w in range(1, 8):
            E.wait(l=base_id + 2*w + 2)
            for h in (0, 2):
                for k, dst in enumerate((ST, ST2)):
                    src = RB[2*w + k]
                    s0 = RB[k] if w == 1 else dst
                    E.e(f"v_pk_add_f32 v[{dst+h}:{dst+h+1}], v[{s0+h}:{s0+h+1}], v[{src+h}:{src+h+1}]")
        E.e(f"s_mov_b32 s{sTmp}, {f2u(1.0/192):#x}")
        E.e(f"s_mov_b32 s{sTmp2}, {f2u(1e-5):#x}")
        for r in range(4):
            m, q, rho, beta = ST+r, ST2+r, RHO+r, BETA+r
            E.e(f"v_mul_f32 v{m}, s{sTmp}, v{m}")
            E.e(f"v_mul_f32 v{q}, s{sTmp}, v{q}")
            E.e(f"v_fma_f32 v{q}, -v{m}, v{m}, v{q}")
            E.e(f"v_max_f32 v{q}, 0, v{q}")
            E.e(f"v_add_f32 v{q}, s{sTmp2}, v{q}")
            E.e(f"v_rsq_f32 v{rho}, v{q}")
            E.e("s_nop 0")
            E.e(f"v_mul_f32 v{rho}, s{sS}, v{rho}")
            E.e(f"v_mul_f32 v{beta}, v{m}, v{rho}")
        if fine: st("ln rho")
        E.e(f"v_add_u32 v{t0}, 32768, v{vHw}")
        E.e("s_mov_b64 s[62:63], exec")
        E.e("s_mov_b64 exec, s[60:61]")
        ta, tb = EOq[0], EOq[0] + 1
        if pkln:
            for ch in range(24):
                for h in (0, 2):
                    x_ = f"v[{ACC[ch]+h}:{ACC[ch]+h+1}]"
                    E.e(f"v_pk_fma_f32 {x_}, {x_}, v[{RHO+h}:{RHO+h+1}], v[{BETA+h}:{BETA+h+1}] neg_lo:[0,0,1] neg_hi:[0,0,1]")
        for cg in range(3):
            for r in range(4):
                o = Bq[(cg*4 + r) & 7]
                for cp in range(4):
                    a0 = ACC[8*cg + 2*cp] + r; a1 = ACC[8*cg + 2*cp + 1] + r
                    if pkln:
                        E.e(f"v_cvt_pk_bf16_f32 v{o+cp}, v{a0}, v{a1}")
                    else:
                        E.e(f"v_fma_f32 v{ta}, v{a0}, v{RHO+r}, -v{BETA+r}")
                        E.e(f"v_fma_f32 v{tb}, v{a1}, v{RHO+r}, -v{BETA+r}")
                        E.e(f"v_cvt_pk_bf16_f32 v{o+cp}, v{ta}, v{tb}")
                off = r*18432 + cg*6144
                adr = vHw
                if off >= 32768: adr, off = t0, off - 32768
                E.ds(f"ds_write_b128 v{adr}, v[{o}:{o+3}] offset:{off}")
        E.e("s_mov_b64 exec, s[62:63]")

    def issue_w(J, i):
        j = J % 24; slot = (J % NS)*SLOT
        E.e(f"s_add_u32 m0, s{sDw}, {slot + i*1024}")
        E.e(f"s_mov_b32 s{sSo}, {j*SLOT + i*1024}")
        dma[J] = E.vm(f"buffer_load_dwordx4 v{vDo}, s[8:11], s{sSo} offen lds")
    def a_read(J, f):
        slot = J % NS
        base, off = (vA2, (slot-2)*SLOT) if slot >= 2 else (vA0, slot*SLOT)
        o = off + (f*1024 if f < 6 else 12288 + (f-6)*1024)
        r = AR + 4*(((J+1)*12 + f) & 3)
        rd[(J, f)] = E.ds(f"ds_read_b128 v[{r}:{r+3}], v{base} offset:{o}")
    def gelu_half(c_, p, hf2):
        nt, hf = divmod(p, 2)
        uA = S + 12*(c_ & 1) + 4*nt + 2*hf; uB = uA + 1
        ta = TT + 2*(p & 1); tb = ta + 1
        gd = GT + 2*(nt & 1) + hf
        if f16:
            if hf2 == 0:
                return [f"v_cvt_pk_f16_f32 v{ta}, v{uA}, v{uB}",
                        f"v_pk_fma_f16 v{tb}, v{ta}, v{ta}, s{sAh}",
                        f"v_pk_mul_f16 v{tb}, v{tb}, v{ta} neg_lo:[1,0] neg_hi:[1,0]",
                        f"v_exp_f16_sdwa v{ta}, v{tb} dst_sel:WORD_0 dst_unused:UNUSED_PAD src0_sel:WORD_0",
                        f"v_exp_f16_sdwa v{ta}, v{tb} dst_sel:WORD_1 dst_unused:UNUSED_PRESERVE src0_sel:WORD_1"]
            return [f"v_pk_fma_f16 v{ta}, v{ta}, s{sSh}, s{sSh}",
                    f"v_rcp_f16_sdwa v{tb}, v{ta} dst_sel:WORD_0 dst_unused:UNUSED_PAD src0_sel:WORD_0",
                    f"v_rcp_f16_sdwa v{tb}, v{ta} dst_sel:WORD_1 dst_unused:UNUSED_PRESERVE src0_sel:WORD_1",
                    f"v_fma_mix_f32 v{ta}, v{uA}, v{tb}, 0 op_sel_hi:[0,1,0]",
                    f"v_fma_mix_f32 v{tb}, v{uB}, v{tb}, 0 op_sel:[0,1,0] op_sel_hi:[0,1,0]",
                    f"v_cvt_pk_bf16_f32 v{gd}, v{ta}, v{tb}"]
        if hf2 == 0:
            return [f"v_fma_f32 v{ta}, -v{uA}, v{uA}, s{sNegA}", f"v_fma_f32 v{tb}, -v{uB}, v{uB}, s{sNegA}",
                    f"v_mul_f32 v{ta}, v{ta}, v{uA}", f"v_mul_f32 v{tb}, v{tb}, v{uB}",
                    f"v_exp_f32 v{ta}, v{ta}", f"v_exp_f32 v{tb}, v{tb}"]
        return [f"v_fma_f32 v{ta}, v{ta}, s{sS}, s{sS}", f"v_fma_f32 v{tb}, v{tb}, s{sS}, s{sS}",
                f"v_rcp_f32 v{ta}, v{ta}", f"v_rcp_f32 v{tb}, v{tb}",
                f"v_mul_f32 v{ta}, v{uA}, v{ta}", f"v_mul_f32 v{tb}, v{uB}, v{tb}",
                f"v_cvt_pk_bf16_f32 v{gd}, v{ta}, v{tb}"]

    def stage(J):
        g1 = 0 <= J + 1 <= 23; g2 = 0 <= J - 1 <= 23
        last = J == 24
        E.c(f"---- stage {J}")
        def needs_frag(JJ, f): return (0 <= JJ + 1 <= 23) if f < 6 else (0 <= JJ - 1 <= 23)
        for g in range(12):
            gg = (g - 8) % 12
            c_ = (J + 1) if g >= 8 else J
            p, hf2 = divmod(gg, 2)
            dog = 0 <= c_ <= 23
            ops = gelu_half(c_, p, hf2) if dog else []
            if f16 and ops: segs = [ops[0:2], ops[2:3], ops[3:]] if hf2 == 1 else [ops[0:2], ops[2:4], ops[4:]]
            else: segs = [ops[0:2], ops[2:4], ops[4:]]
            ar = AR + 4*(((J+1)*12 + g) & 3)
            domf = g1 if g < 6 else g2
            if psched and g in psched and g != 9 and not last: E.e(f"s_setprio {psched[g]}")
            if domf:
                need = rd[(J, g)]
                if wait2 and g % 2 == 0 and (J, g+1) in rd and needs_frag(J, g+1): need = max(need, rd[(J, g+1)])
                if g == 6: need = max(need, gi[2])
                if J == -1 and g < 6: need = max(need, xrd[3*g+2])
                E.wait(l=need)
            for nt in range(3):
                if domf:
                    if g < 6:
                        dd = S + 12*((J+1) & 1) + 4*nt
                        E.e(mfma(dd, ar, X + (g*3+nt)*4, None if g == 0 else dd))
                    else:
                        o = Oreg(g-6, nt)
                        E.e(mfma(o, ar, GI + 4*nt, None if J == 1 else o))
                elif f16 and ops and nt > 0: E.e("s_nop 0")
                if nt == 0:
                    if g == 9:
                        if not last and (J + 1) <= 24 and (J+1) in dma: E.wait(v=dma[J+1])
                        E.wait_all_lds(force=True)
                        E.e("s_barrier")
                        if psched and 9 in psched and not last: E.e(f"s_setprio {psched[9]}")
                        if last: x_base(1)
                    if g + D < 12:
                        if needs_frag(J, g + D) and (J, g + D) not in rd: a_read(J, g + D)
                    elif not last:
                        f2 = g + D - 12
                        if needs_frag(J+1, f2): a_read(J+1, f2)
                    if g < 3 and g2:
                        gi[g] = E.ds(f"ds_read_b128 v[{GI+4*g}:{GI+4*g+3}], v{vGr} offset:{((J-1) & 1)*12288 + g*1024}")
                for o_ in segs[nt]: E.e(o_)
            if dog and hf2 == 1 and (p & 1) == 1:
                nt = p >> 1; gd = GT + 2*(nt & 1)
                E.ds(f"ds_write_b64 v{vGw}, v[{gd}:{gd+1}] offset:{(c_ & 1)*12288 + nt*1024}")
            if last:
                if g >= 9:
                    for q in {9: (0, 1, 2), 10: (3, 4), 11: (5, 6)}[g]: x_dma(1, q, XB)
                if g == 11: prep_next_c(1)
                continue
            for i, gq in enumerate(wsite):
                if g == gq:
                    JJ = J + NS if gq >= 9 else J + NS - 1
                    if 2 <= JJ <= 24: issue_w(JJ, i)
            if g == xsite and 3 <= J < 10:
                if J == 3: x_base(0)
                x_dma(0, J - 3, XA)
            if g == rsite and 2 <= J < 11:
                q = J - 2; u, nt = divmod(q, 3); r = RS + 4*(q % RN)
                resid[q] = E.vm(f"buffer_load_dwordx4 v[{r}:{r+3}], v{vPx+nt}, s[16:19], s{sRowC} offen offset:{u*64}{rflag}")
            if g == rsite - 1 and 2 + RL <= J < 11 + RL:
                q = J - 2 - RL; u, nt = divmod(q, 3)
                E.wait(v=resid[q])
                for p2 in range(2):
                    o = Oreg(2*u + p2, nt)
                    E.e(mfma(o, ID + (2 if p2 == 0 else 0), RS + 4*(q % RN), o))
            if pf and g == xsite and J in pf:
                sp = 1 + pf.index(J)
                x_base(sp)
                E.e(f"v_add_u32 v{t0}, s{sBase}, v0")
                E.vm(f"buffer_load_dword v{RAW2}, v{t0}, s[4:7], 0 offen")
            if J == 19 and 1 <= g <= 7: dw_load1(2, g - 1, first=(g == 1))
            if J == 22 and g >= 6: dw_load1(0, g - 6, first=(g == 6))
            if J == 23 and g <= 7:
                if g == 0: dw_load1(0, 6)
                else: dw_load1(1, g - 1)
            if J == 0 and g == 6:
                E.e(f"s_add_u32 s{sTileRow}, s{sTileRow}, 8")
                E.e(f"s_cmp_eq_u32 s{sRound}, {NROUND-1}")
                E.e(f"s_cselect_b32 s6, 0, s6")
                E.e(f"s_mov_b32 s22, {XBYTES}")

    def prep_next_c(part):
        if part == 0:
            x_base(1)
            for q in range(7): x_dma(1, q, XB)
        else:
            E.wait(v=dwl[1])
            t_write(RAW0, T0LOC, (S, S+4))
            t_write(RAW1, T1LOC, (S+8, S+12))

    xrd = {}
    state = {"round0": None}
    def round_body():
        conv_step(0, [lambda q=q: out_store(q) for q in range(3)])
        if fine: st("c0 compute")
        E.wait(v=xd[1]); E.wait_all_lds(force=True); E.e("s_barrier")
        if fine: st("B0")
        DT = CT[4]
        def signal():
            E.e(f"s_cmp_eq_u32 s{sRound}, 0")
            E.e(f"s_cselect_b32 s{sTmp}, s86, 0")
            E.e(f"s_cmp_eq_u32 s{sW}, 0")
            E.e(f"s_cselect_b32 s86, s{sTmp}, 0")
            E.e(f"v_mov_b32 v{DT+2}, 0")
            E.e(f"v_mov_b32 v{DT+3}, 1")
            E.e("s_mov_b64 s[62:63], exec")
            E.e("s_mov_b64 exec, 1")
            E.vm(f"buffer_atomic_add v{DT+3}, v{DT+2}, s[84:87], 0 offen sc1")
            E.e("s_mov_b64 exec, s[62:63]")
        side = []
        if inprep: side.append(signal)
        x_base(2)
        side += [lambda q=q: x_dma(2, q, XA, tmp=DT) for q in range(7)]
        side += [lambda: t_write(RAW2, T0LOC, (CT[0], CT[1]), DT+2, DT+3)]
        side += [lambda q=q: out_store(q) for q in range(3, 6)]
        st("conv0", dyn=True)
        conv_step(1, side)
        if fine: st("c1 compute")
        E.wait(v=xd[2]); E.wait_all_lds(force=True); E.e("s_barrier")
        if fine: st("B1")
        if inprep:
            lp = f"{name}_poll"
            E.e(f"s_cmp_lg_u32 s{sRound}, 0")
            E.e(f"s_cbranch_scc1 {lp}_done")
            E.e(f"s_cmp_lg_u32 s{sW}, 0")
            E.e(f"s_cbranch_scc1 {lp}_bar")
            E.e(f"s_mov_b32 s{sTmp2}, 0")
            E.e(f"v_mov_b32 v{t0}, 0")
            E.label(f"{lp}")
            E.e(f"buffer_load_dword v{t1}, v{t0}, s[80:83], 0 offen sc1")
            E.e("s_waitcnt vmcnt(0)")
            E.e(f"v_readfirstlane_b32 s{sTmp}, v{t1}")
            E.e(f"s_add_u32 s{sTmp2}, s{sTmp2}, 1")
            E.e(f"s_cmp_ge_u32 s{sTmp2}, 0x40000")
            E.e(f"s_cbranch_scc1 {lp}_acq")
            E.e(f"s_cmp_lt_u32 s{sTmp}, {nprod}")
            E.e(f"s_cbranch_scc1 {lp}")
            E.label(f"{lp}_acq")
            E.e("buffer_inv sc1")
            E.e("s_waitcnt vmcnt(0)")
            E.label(f"{lp}_bar")
            E.e("s_barrier")
            E.label(f"{lp}_done")
        side = [lambda J=J, i=i: issue_w(J, i) for J in (-1, 0, 1) for i in range(3)]
        side += [lambda q=q: out_store(q) for q in range(6, 9)]
        st("conv1", dyn=True)
        conv_step(2, side)
        st("conv2", dyn=True)
        layernorm()
        if fine: st("ln hwrite")
        E.wait(v=dma[1]); E.wait_all_lds(force=True); E.e("s_barrier")
        if fine: st("BD")
        E.e(f"s_mul_i32 s{sTmp}, s{sPair}, 18432")
        E.e(f"s_add_u32 s{sTmp}, s{sTmp}, {HLOC}")
        E.e(f"v_add_u32 v{t0}, s{sTmp}, v{vL16}")
        for f in range(D): a_read(-1, f)
        for fi in range(18):
            xrd[fi] = E.ds(f"ds_read_b128 v[{X+4*fi}:{X+4*fi+3}], v{t0} offset:{fi*1024}")
        st("ln", dyn=True)
        for J in range(-1, 25):
            stage(J)
            if fine and J in (-1, 0, 1, 2, 12, 22, 23): st(f"stage {J}")
        if fine: st("stage 24")
        E.e("s_setprio 0")
        E.e("s_nop 7")
        for q in range(9):
            u, nt = divmod(q, 3); o = Oreg(2*u, nt)
            for dd in range(4): E.e(f"v_cvt_pk_bf16_f32 v{o+dd}, v{o+2*dd}, v{o+2*dd+1}")
        E.e(f"s_mov_b32 s{sRowP}, s{sRowC}")
        E.e(f"s_add_u32 s{sRowC}, s{sRowC}, {8*147456}")
        E.wait_all_lds(force=True)
        E.e("s_barrier")
        st("mlp", dyn=True)
        rd.clear(); gi.clear(); dma.clear()

    nst = len(stamps)
    E.L.append(".p2align 6")
    E.label(f"{name}_L")
    b0 = len(E.L)
    round_body()
    body = list(E.L[b0:])
    E.e(f"s_add_u32 s{sRound}, s{sRound}, 1")
    E.e(f"s_cmp_lt_u32 s{sRound}, {NROUND}")
    E.e(f"s_cbranch_scc1 {name}_L")
    if not stamp:
        save = len(E.L); sv = (E.nl, E.dl, E.nv, E.dv)
        round_body()
        b2 = E.L[save:]
        if b2 != body:
            for x1, x2 in zip(body, b2):
                if x1 != x2: print("DIFF", x1, "|", x2); break
        assert b2 == body, "not steady"
        del E.L[save:]
    for q in range(9): out_store(q)
    if stamp:
        E.e("s_waitcnt vmcnt(0)")
        st("done")
        E.e(f"s_add_u32 s46, s42, {240<<20}")
        E.e(f"s_addc_u32 s47, s43, 0")
        srd(E, 48, 46, 47, 1 << 20)
        E.e(f"s_lshl_b32 s{sTmp}, s2, 3")
        E.e(f"s_add_u32 s{sTmp}, s{sTmp}, s{sW}")
        E.e(f"s_lshl_b32 s{sTmp}, s{sTmp}, 8")
        E.e(f"v_lshrrev_b32 v{t0}, 2, v{vL16}")
        E.e(f"buffer_store_dword v{STAMP}, v{t0}, s[48:51], s{sTmp} offen")
        if dbgout:
            E.e(f"s_cmp_lg_u32 s2, {dbgout}")
            E.e(f"s_cbranch_scc1 {name}_end")
            E.e(f"s_cmp_lg_u32 s{sW}, 0")
            E.e(f"s_cbranch_scc1 {name}_end")
            E.e(f"v_readlane_b32 s{sTmp}, v{STAMP}, 32")
            E.e("s_nop 3")
            E.e(f"v_subrev_u32 v{t1}, s{sTmp}, v{STAMP}")
            E.e(f"v_lshrrev_b32 v{t0}, 2, v{vL16}")
            E.e(f"v_subrev_u32 v{t0}, {(32+dbgshift)*4 - 4}, v{t0}")
            E.e(f"buffer_store_dword v{t1}, v{t0}, s[80:83], 0 offen")
        global STAMPS; STAMPS = stamps
    E.label(f"{name}_end")
    E.e("s_endpgm")
    return header(name) + E.text() + descriptor(name, 256)

def gen_k0(name):
    E = Em()
    vL, vN, vG, vL16, t0, t1, t2 = 1, 2, 3, 4, 5, 6, 7
    sW, sTmp, sTmp2, sGw, sJ, sQ, sC2, sPb = 3, 24, 25, 50, 51, 52, 53, 58
    E.e("s_cmp_ge_u32 s2, 72")
    E.e(f"s_cbranch_scc1 {name}_end")
    E.e("s_load_dwordx4 s[40:43], s[0:1], 16")
    E.e("s_load_dwordx2 s[44:45], s[0:1], 48")
    E.e(f"v_lshrrev_b32 v{t0}, 6, v0")
    E.e(f"v_and_b32 v{vL}, 63, v0")
    E.e(f"v_readfirstlane_b32 s{sW}, v{t0}")
    E.e(f"v_and_b32 v{vN}, 15, v{vL}")
    E.e(f"v_lshrrev_b32 v{vG}, 4, v{vL}")
    E.e(f"v_lshlrev_b32 v{vL16}, 4, v{vL}")
    E.e("s_waitcnt lgkmcnt(0)")
    srd(E, 20, 44, 45, 24*24576)
    emit_prep_loads(E, name, sW, vN, vG, t0, t1, t2, sTmp, sTmp2, 8, 40)
    E.e("s_waitcnt vmcnt(0)")
    for d in range(4): E.e(f"v_lshl_or_b32 v{16+d}, v{8+2*d+1}, 16, v{8+2*d}")
    E.e(f"s_mul_i32 s{sTmp}, s51, 24576")
    E.e(f"s_lshl_b32 s{sTmp2}, s52, 10")
    E.e(f"s_add_u32 s{sTmp}, s{sTmp}, s{sTmp2}")
    E.e(f"buffer_store_dwordx4 v[16:19], v{vL16}, s[20:23], s{sTmp} offen")
    E.label(f"{name}_end")
    E.e("s_endpgm")
    return header(name) + E.text() + descriptor(name, 32)

def emit_prep_loads(E, name, sW, vN, vG, t0, t1, t2, sTmp, sTmp2, PW, wptr):
    lw2 = f"{name}_pw2"; lst = f"{name}_pst"
    sGw, sJ, sQ, sC2, sPb = 50, 51, 52, 53, 68
    E.e(f"s_lshl_b32 s{sGw}, s2, 3")
    E.e(f"s_add_u32 s{sGw}, s{sGw}, s{sW}")
    E.e(f"s_mul_i32 s{sJ}, s{sGw}, 2731")
    E.e(f"s_lshr_b32 s{sJ}, s{sJ}, 16")
    E.e(f"s_mul_i32 s{sTmp}, s{sJ}, 24")
    E.e(f"s_sub_u32 s{sQ}, s{sGw}, s{sTmp}")
    E.e(f"s_cmp_ge_u32 s{sQ}, 12")
    E.e(f"s_cbranch_scc1 {lw2}")
    srd(E, 64, wptr, wptr+1, 192*768*2)
    E.e(f"s_add_u32 s{sC2}, s{sJ}, 1")
    E.e(f"s_cmp_eq_u32 s{sC2}, 24")
    E.e(f"s_cselect_b32 s{sC2}, 0, s{sC2}")
    E.e(f"s_cmp_ge_u32 s{sQ}, 6")
    E.e(f"s_cselect_b32 s{sTmp}, 1, 0")
    E.e(f"s_mul_i32 s{sTmp2}, s{sTmp}, 6")
    E.e(f"s_sub_u32 s{sTmp2}, s{sQ}, s{sTmp2}")
    E.e(f"s_mul_i32 s{sTmp2}, s{sTmp2}, 49152")
    E.e(f"s_lshl_b32 s{sTmp}, s{sTmp}, 5")
    E.e(f"s_add_u32 s{sTmp2}, s{sTmp2}, s{sTmp}")
    E.e(f"s_lshl_b32 s{sTmp}, s{sC2}, 6")
    E.e(f"s_add_u32 s{sPb}, s{sTmp2}, s{sTmp}")
    E.e(f"v_mul_u32_u24 v{t0}, 12288, v{vG}")
    E.e(f"v_lshl_add_u32 v{t0}, v{vN}, 1, v{t0}")
    E.e("s_mov_b32 s69, 1536")
    E.e("s_mov_b32 s70, 1536")
    E.e(f"s_branch {lst}")
    E.label(lw2)
    srd(E, 64, wptr+2, wptr+3, 192*768*2)
    E.e(f"s_add_u32 s{sC2}, s{sJ}, 23")
    E.e(f"s_cmp_ge_u32 s{sC2}, 24")
    E.e(f"s_cselect_b32 s{sTmp}, 24, 0")
    E.e(f"s_sub_u32 s{sC2}, s{sC2}, s{sTmp}")
    E.e(f"s_sub_u32 s{sTmp}, s{sQ}, 12")
    E.e(f"s_lshr_b32 s{sTmp2}, s{sTmp}, 1")
    E.e(f"s_lshl_b32 s{sTmp2}, s{sTmp2}, 6")
    E.e(f"s_and_b32 s{sTmp}, s{sTmp}, 1")
    E.e(f"s_lshl_b32 s{sTmp}, s{sTmp}, 3")
    E.e(f"s_add_u32 s{sTmp2}, s{sTmp2}, s{sTmp}")
    E.e(f"s_mul_i32 s{sTmp}, s{sC2}, 12288")
    E.e(f"s_add_u32 s{sPb}, s{sTmp2}, s{sTmp}")
    E.e(f"v_lshrrev_b32 v{t1}, 2, v{vN}")
    E.e(f"v_and_b32 v{t2}, 3, v{vN}")
    E.e(f"v_lshl_add_u32 v{t1}, v{t1}, 3, v{t2}")
    E.e(f"v_mul_u32_u24 v{t0}, 1536, v{vG}")
    E.e(f"v_lshl_add_u32 v{t0}, v{t1}, 1, v{t0}")
    E.e("s_mov_b32 s69, 384")
    E.e(f"s_mov_b32 s70, {6144 - 3*384}")
    E.label(lst)
    E.e(f"s_cmp_lt_u32 s{sGw}, 576")
    E.e("s_cselect_b32 s66, s66, 0")
    last = None
    for e in range(8):
        last = E.vm(f"buffer_load_ushort v{PW+e}, v{t0}, s[64:67], s{sPb} offen")
        if e < 7: E.e(f"s_add_u32 s{sPb}, s{sPb}, s{70 if e == 3 else 69}")
    return last

if __name__ == "__main__":
    print(gen_f1("f1_kernel"))
```

```python
def vr(n, c=1):
    return f"v{n}" if c == 1 else f"v[{n}:{n+c-1}]"
def sr(n, c=1):
    return f"s{n}" if c == 1 else f"s[{n}:{n+c-1}]"

class Em:
    def __init__(self):
        self.L = []
        self.nl = 0; self.dl = 0
        self.nv = 0; self.dv = 0
        self.skip = set()
    def e(self, s):
        for ln in s.split("\n"):
            ln = ln.strip()
            if ln: self.L.append("  " + ln)
    def c(self, s): self.L.append("  ; " + s)
    def label(self, s): self.L.append(s + ":")
    def ds(self, s):
        self.e(s); self.nl += 1; return self.nl
    def vm(self, s, skippable=False):
        self.e(s); self.nv += 1
        if skippable: self.skip.add(self.nv)
        else: self.skip.discard(self.nv)
        return self.nv
    def wait(self, l=None, v=None):
        parts = []
        if v is not None and v > self.dv:
            n = min(sum(1 for i in range(v + 1, self.nv + 1) if i not in self.skip), 63)
            parts.append(f"vmcnt({n})")
            k = 0; i = self.nv
            while i > 0 and k < n:
                if i not in self.skip: k += 1
                i -= 1
            self.dv = max(self.dv, i)
        if l is not None and l > self.dl:
            n = min(self.nl - l, 15); parts.append(f"lgkmcnt({n})"); self.dl = self.nl - n
        if parts: self.e("s_waitcnt " + " ".join(parts))
    def wait_all_lds(self, force=False):
        if force or self.dl < self.nl:
            self.e("s_waitcnt lgkmcnt(0)"); self.dl = self.nl
    def wait_all_vm(self, force=False):
        if force or self.dv < self.nv:
            self.e("s_waitcnt vmcnt(0)"); self.dv = self.nv
    def text(self): return "\n".join(self.L) + "\n"

def srd(E, d, lo, hi, nbytes):
    E.e(f"s_mov_b32 s{d}, s{lo}")
    E.e(f"s_and_b32 s{d+1}, s{hi}, 0xffff")
    E.e(f"s_mov_b32 s{d+2}, {nbytes}")
    E.e(f"s_mov_b32 s{d+3}, 0x00020000")

def descriptor(name, vgpr, sgpr=102, accum=None):
    accum = accum or ((vgpr + 3)//4*4)
    return f""".section .rodata,"a"
.p2align 6
.amdhsa_kernel {name}
  .amdhsa_next_free_vgpr {vgpr}
  .amdhsa_next_free_sgpr {sgpr}
  .amdhsa_accum_offset {accum}
  .amdhsa_group_segment_fixed_size 0
  .amdhsa_kernarg_size 56
  .amdhsa_user_sgpr_count 2
  .amdhsa_user_sgpr_kernarg_segment_ptr 1
  .amdhsa_system_sgpr_workgroup_id_x 1
  .amdhsa_float_denorm_mode_32 3
.end_amdhsa_kernel
.text
"""
def header(name):
    return f""".globl {name}
.p2align 8
.type {name},@function
{name}:
"""
import struct
def f2u(x): return struct.unpack("<I", struct.pack("<f", x))[0]
```

```python
from em import *
import math
A_ = 2*math.sqrt(2/math.pi)*math.log2(math.e); B_ = A_*0.044715; S_ = B_**(1/3)
XBYTES = 384*384*384
SLOT = 24576; NS = 3
GBUF = NS*SLOT
PBUF = GBUF + 24576
XA, XB = PBUF, 0
T1LOC, T0LOC = 57344, GBUF
HLOC = GBUF
STLOC = 147456
F1_LDS = 163840
NROUND = 3
D = 3

def mfma(d, a, b, c=None):
    src = "0" if c is None else f"v[{c}:{c+3}]"
    return f"v_mfma_f32_16x16x32_bf16 v[{d}:{d+3}], v[{a}:{a+3}], v[{b}:{b+3}], {src}"

def gen_f1(name, stamp=False, f16=False, psched={9: 3, 5: 2, 7: 1, 8: 0}, wsite=(10, 0, 2), rsite=4, xsite=3, wait2=True, strip=(), inprep=True, pkln=True, pf=(14, 17), nprod=72, fine=False, sp=2, cprio=True, dbgout=False, dbgshift=0, stflag=' sc1', xflag='', rflag='', halfw=True, wlate=True, pfstart=False, inv=False, band=True):
    E = Em()
    sW, sPair, sHb = 3, 33, 35
    sTmp, sTmp2, sTmp3 = 24, 25, 28
    sSelLo, sSelHi = 26, 27
    sNegA, sS, sAh, sSh = 29, 30, 92, 93
    sR0, sC0 = 44, 45
    sBase = 31
    sTileRow = 32
    sRowP, sRowC, sRound = 54, 55, 56
    sDw, sSo, sM0w, sDwo = 57, 34, 58, 59
    vL16 = 1; vDS = 2; vXa, vXa3 = 9, 10; vT = 11; vHw = 15
    vA0, vA2, vGr, vGw, vDo = 16, 17, 18, 19, 20
    vPx = 21; ID = 24; t0, t1 = 30, 31
    TT, GT, RS, AR, GI, S, X, O = 32, 36, 40, 52, 68, 80, 104, 176
    RAW2 = 248
    STAMP = 255
    RAW0, RAW1 = X, X + 8
    def Oreg(i, nt): return O + (((i >> 1)*3 + nt)*2 + (i & 1))*4
    packed = [Oreg(2*u, nt) for u in range(3) for nt in range(3)]
    free = [q for q in range(32, 248, 4) if q not in packed]
    ACC = free[:24]; Bq = free[24:32]; EOq = free[32:36]; Tq = free[36:40]
    CT = free[40:45]
    assert all(EOq[i+1] == EOq[i] + 4 for i in (0, 2)) or True

    stamps = []
    def st(tag, dyn=False):
        if not stamp: return
        if fine and dyn: dyn = False
        if dyn:
            base = len(stamps)
            for r in range(NROUND): stamps.append(f"{tag} r{r}")
            E.e(f"s_add_u32 m0, s{sRound}, {base}")
            E.e("s_memtime s[96:97]"); E.e("s_waitcnt lgkmcnt(0)")
            E.e(f"v_writelane_b32 v{STAMP}, s96, m0")
            E.e("s_add_u32 m0, m0, 32")
            E.e("s_memrealtime s[96:97]"); E.e("s_waitcnt lgkmcnt(0)")
            E.e(f"v_writelane_b32 v{STAMP}, s96, m0")
        else:
            i = len(stamps); stamps.append(tag)
            E.e("s_memtime s[96:97]"); E.e("s_waitcnt lgkmcnt(0)")
            E.e(f"v_writelane_b32 v{STAMP}, s96, {i}")
            E.e("s_memrealtime s[96:97]"); E.e("s_waitcnt lgkmcnt(0)")
            E.e(f"v_writelane_b32 v{STAMP}, s96, {32+i}")
        E.dl = E.nl

    E.e("s_cmp_ge_u32 s2, 256")
    E.e(f"s_cbranch_scc1 {name}_end")
    E.e("s_load_dwordx4 s[36:39], s[0:1], 0")
    E.e("s_load_dwordx2 s[40:41], s[0:1], 32")
    E.e("s_load_dwordx2 s[42:43], s[0:1], 48")
    if inprep:
        E.e("s_load_dwordx4 s[72:75], s[0:1], 16")
        E.e("s_load_dwordx2 s[76:77], s[0:1], 40")
    vL, vN, vG = 32, 33, 34
    a, b, c, d_, e_, f_, g_ = 35, 36, 37, 38, 39, 40, 41
    E.e(f"v_lshrrev_b32 v{a}, 6, v0")
    E.e(f"v_and_b32 v{vL}, 63, v0")
    E.e(f"v_readfirstlane_b32 s{sW}, v{a}")
    E.e(f"v_and_b32 v{vN}, 15, v{vL}")
    E.e(f"v_lshrrev_b32 v{vG}, 4, v{vL}")
    E.e(f"v_lshlrev_b32 v{vL16}, 4, v{vL}")
    E.e(f"s_and_b32 s{sPair}, s{sW}, 3")
    E.e(f"s_lshr_b32 s{sHb}, s{sW}, 2")
    E.e(f"s_mov_b32 s{sSelLo}, 0x05040100")
    E.e(f"s_mov_b32 s{sSelHi}, 0x07060302")
    E.e(f"s_mov_b32 s{sNegA}, {f2u(-A_/S_):#x}")
    E.e(f"s_mov_b32 s{sS}, {f2u(S_):#x}")
    if f16:
        import numpy as np
        h16 = lambda x: int(np.array([x], np.float16).view(np.uint16)[0])
        E.e(f"s_mov_b32 s{sAh}, {h16(A_/S_)*0x10001:#x}")
        E.e(f"s_mov_b32 s{sSh}, {h16(S_)*0x10001:#x}")
    E.e(f"s_and_b32 s{sTmp}, s2, 7")
    E.e(f"s_lshl_b32 s{sTmp}, s{sTmp}, 5")
    E.e(f"s_lshr_b32 s{sTmp2}, s2, 3")
    E.e(f"s_add_u32 s{sTmp}, s{sTmp}, s{sTmp2}")
    if band:
        E.e(f"s_lshr_b32 s{sR0}, s{sTmp}, 5")
        E.e(f"s_mul_i32 s{sR0}, s{sR0}, 48")
        E.e(f"s_bfe_u32 s{sTmp2}, s{sTmp}, 0x10004")
        E.e(f"s_lshl_b32 s{sTmp2}, s{sTmp2}, 3")
        E.e(f"s_add_u32 s{sR0}, s{sR0}, s{sTmp2}")
    else:
        E.e(f"s_lshr_b32 s{sR0}, s{sTmp}, 4")
        E.e(f"s_mul_i32 s{sR0}, s{sR0}, 24")
    RSTEP = 16 if band else 8
    E.e(f"s_and_b32 s{sC0}, s{sTmp}, 15")
    E.e(f"s_mul_i32 s{sC0}, s{sC0}, 24")
    E.e(f"s_mul_i32 s{sM0w}, s{sW}, 7168")
    E.e(f"s_mul_i32 s{sDw}, s{sW}, 3072")
    E.e(f"s_mul_i32 s{sDwo}, s{sW}, 2688")
    E.e(f"s_cmp_eq_u32 s{sW}, 7")
    E.e(f"s_cselect_b32 s{sDwo}, 0x100000, s{sDwo}")
    E.e("s_waitcnt lgkmcnt(0)")
    srd(E, 4, 36, 37, XBYTES)
    srd(E, 16, 36, 37, XBYTES)
    srd(E, 12, 38, 39, 7*7*192*2)
    srd(E, 8, 42, 43, 24*SLOT)
    srd(E, 20, 40, 41, XBYTES)
    E.e("s_mov_b32 s22, 0")
    if stamp: E.e(f"v_mov_b32 v{STAMP}, 0")
    st("start")

    dwl = {}
    def dw_load1(cb, j, first=False):
        base = (RAW0, RAW1, RAW2)[cb]
        if first: E.e(f"v_lshrrev_b32 v{t0}, 3, v{vL16}")
        if j == 0 or first: E.e(f"s_add_u32 s71, s{sDwo}, {128*cb}")
        dwl[cb] = E.vm(f"buffer_load_ushort v{base+j}, v{t0}, s[12:15], s71 offen offset:{384*j}")
    def dw_loads():
        for cb in range(3):
            for j in range(7): dw_load1(cb, j, first=(cb == 0 and j == 0))
    def t_write(raw, loc, u, t0=t0, t1=t1):
        u0, u1 = u
        E.e(f"v_lshl_or_b32 v{u0+0}, v{raw+1}, 16, v{raw+0}")
        E.e(f"v_lshl_or_b32 v{u0+1}, v{raw+3}, 16, v{raw+2}")
        E.e(f"v_lshl_or_b32 v{u0+2}, v{raw+5}, 16, v{raw+4}")
        E.e(f"v_mov_b32 v{u0+3}, v{raw+6}")
        E.e(f"v_lshlrev_b32 v{u1+0}, 16, v{raw+0}")
        E.e(f"v_lshl_or_b32 v{u1+1}, v{raw+2}, 16, v{raw+1}")
        E.e(f"v_lshl_or_b32 v{u1+2}, v{raw+4}, 16, v{raw+3}")
        E.e(f"v_lshl_or_b32 v{u1+3}, v{raw+6}, 16, v{raw+5}")
        E.e(f"v_mul_u32_u24 v{t0}, 15, v{vL16}")
        E.e(f"s_lshl_b32 s{sTmp}, s{sW}, 5")
        E.e(f"s_add_u32 s{sTmp}, s{sTmp}, {loc}")
        E.e(f"v_add_u32 v{t0}, s{sTmp}, v{t0}")
        E.e(f"s_cmp_eq_u32 s{sW}, 7")
        E.e(f"s_cselect_b32 s{sTmp}, 0, 16")
        E.e(f"v_add_u32 v{t1}, s{sTmp}, v{t0}")
        E.ds(f"ds_write_b128 v{t0}, v[{u0}:{u0+3}]")
        E.ds(f"ds_write_b128 v{t1}, v[{u1}:{u1+3}]")

    PW = 60
    if inprep:
        pld = emit_prep_loads(E, name, sW, vN, vG, a, b, c, sTmp, sTmp2, PW, 72)
        srd(E, 80, 76, 77, 256)
        srd(E, 84, 76, 77, 256)
        E.e(f"s_cmp_lt_u32 s2, {nprod}")
        E.e("s_cselect_b32 s86, s86, 0")
        srd(E, 88, 42, 43, 24*SLOT)
        E.e(f"s_cmp_lt_u32 s2, {nprod}")
        E.e("s_cselect_b32 s90, s90, 0")
    xd = {}
    E.e(f"s_mov_b32 s{sTileRow}, s{sR0}")
    E.e(f"s_sub_u32 s{sBase}, s{sTileRow}, 3")
    E.e(f"s_mul_i32 s{sBase}, s{sBase}, 384")
    E.e(f"s_add_u32 s{sBase}, s{sBase}, s{sC0}")
    E.e(f"s_sub_u32 s{sBase}, s{sBase}, 3")
    E.e(f"s_mul_i32 s{sBase}, s{sBase}, 384")
    E.e(f"s_mul_i32 s{sTmp}, s{sW}, 448")
    E.e(f"s_sub_u32 s{sTmp2}, s{sC0}, 3")
    for q in range(7):
        P, r, rem, sl, n_, dx, tt = a, b, c, d_, e_, f_, g_
        E.e(f"v_add_u32 v{P}, s{sTmp}, v{vL}")
        if q: E.e(f"v_add_u32 v{P}, {64*q}, v{P}")
        E.e(f"v_mul_u32_u24 v{r}, 4370, v{P}")
        E.e(f"v_lshrrev_b32 v{r}, 20, v{r}")
        E.e(f"v_mul_u32_u24 v{rem}, 240, v{r}")
        E.e(f"v_sub_u32 v{rem}, v{P}, v{rem}")
        E.e(f"v_lshrrev_b32 v{sl}, 3, v{rem}")
        E.e(f"v_and_b32 v{rem}, 7, v{rem}")
        E.e(f"v_cmp_le_u32 vcc, 15, v{sl}")
        E.e(f"v_mov_b32 v{dx}, 0")
        E.e("s_nop 0")
        E.e(f"v_addc_co_u32 v{dx}, vcc, 0, v{dx}, vcc")
        E.e(f"v_mul_u32_u24 v{n_}, 15, v{dx}")
        E.e(f"v_sub_u32 v{n_}, v{sl}, v{n_}")
        E.e(f"v_lshrrev_b32 v{sl}, 1, v{n_}")
        E.e(f"v_sub_u32 v{rem}, v{rem}, v{sl}")
        E.e(f"v_and_b32 v{rem}, 7, v{rem}")
        E.e(f"v_lshl_add_u32 v{n_}, v{n_}, 1, v{dx}")
        dd = vDS + q
        E.e(f"s_mov_b32 s{sTmp3}, 147456")
        E.e(f"v_mul_lo_u32 v{dd}, v{r}, s{sTmp3}")
        E.e(f"v_mul_u32_u24 v{tt}, 384, v{n_}")
        E.e(f"v_add_u32 v{dd}, v{dd}, v{tt}")
        E.e(f"v_lshl_add_u32 v{dd}, v{rem}, 4, v{dd}")
        E.e(f"v_add_u32 v{tt}, s{sTmp2}, v{n_}")
        E.e(f"v_cmp_gt_u32 vcc, 384, v{tt}")
        E.e(f"s_movk_i32 s{sTmp3}, 3360")
        E.e(f"v_cmp_gt_u32 s[48:49], s{sTmp3}, v{P}")
        E.e("s_nop 1")
        E.e("s_and_b64 vcc, vcc, s[48:49]")
        E.e(f"v_mov_b32 v{tt}, 0x40000000")
        E.e("s_nop 0")
        E.e(f"v_cndmask_b32 v{dd}, v{tt}, v{dd}, vcc")
        E.e(f"s_add_u32 m0, s{sM0w}, {XA + 1024*q}")
        E.e(f"v_add_u32 v{t0}, s{sBase}, v{dd}")
        xd[0] = E.vm(f"buffer_load_dwordx4 v{t0}, s[4:7], 0 offen lds")
    def x_base(s):
        E.e(f"s_sub_u32 s{sBase}, s{sTileRow}, 3")
        E.e(f"s_mul_i32 s{sBase}, s{sBase}, 384")
        E.e(f"s_add_u32 s{sBase}, s{sBase}, s{sC0}")
        E.e(f"s_sub_u32 s{sBase}, s{sBase}, 3")
        E.e(f"s_mul_i32 s{sBase}, s{sBase}, 384")
        if s: E.e(f"s_add_u32 s{sBase}, s{sBase}, {128*s}")
    def x_dma(s, q, loc, tmp=None):
        tv = (t0 if (q & 1) == 0 else t1) if tmp is None else tmp + (q & 1)
        E.e(f"s_add_u32 m0, s{sM0w}, {loc + 1024*q}")
        E.e(f"v_add_u32 v{tv}, s{sBase}, v{vDS+q}")
        xd[s] = E.vm(f"buffer_load_dwordx4 v{tv}, s[4:7], 0 offen{xflag} lds")
    dw_loads()
    x_base(1)
    for q in range(7): x_dma(1, q, XB)
    pst = None
    if inprep:
        E.wait(v=pld)
        for d in range(4): E.e(f"v_lshl_or_b32 v{68+d}, v{PW+2*d+1}, 16, v{PW+2*d}")
        E.e(f"s_mul_i32 s{sTmp}, s51, 24576")
        E.e(f"s_lshl_b32 s{sTmp2}, s52, 10")
        E.e(f"s_add_u32 s{sTmp}, s{sTmp}, s{sTmp2}")
        pst = E.vm(f"buffer_store_dwordx4 v[68:71], v{vL16}, s[88:91], s{sTmp} offen sc1")
    E.e(f"s_mul_i32 s{sTmp}, s{sW}, 53")
    E.e(f"v_add_u32 v{a}, s{sTmp}, v{vL}")
    E.e(f"v_mul_u32_u24 v{b}, 2185, v{a}")
    E.e(f"v_lshrrev_b32 v{b}, 16, v{b}")
    E.e(f"v_mul_u32_u24 v{c}, 30, v{b}")
    E.e(f"v_sub_u32 v{c}, v{a}, v{c}")
    E.e(f"s_mov_b32 s{sTmp3}, 147456")
    E.e(f"v_mul_lo_u32 v{d_}, v{b}, s{sTmp3}")
    E.e(f"v_mul_u32_u24 v{e_}, 384, v{c}")
    E.e(f"v_add_u32 v{d_}, v{d_}, v{e_}")
    E.e(f"s_sub_u32 s{sTmp2}, s{sC0}, 3")
    E.e(f"v_add_u32 v{e_}, s{sTmp2}, v{c}")
    E.e(f"v_cmp_gt_u32 vcc, 384, v{e_}")
    E.e(f"s_movk_i32 s{sTmp3}, 420")
    E.e(f"v_cmp_gt_u32 s[48:49], s{sTmp3}, v{a}")
    E.e("s_nop 1")
    E.e("s_and_b64 vcc, vcc, s[48:49]")
    E.e(f"v_cmp_gt_u32 s[48:49], 53, v{vL}")
    E.e("s_nop 1")
    E.e("s_and_b64 vcc, vcc, s[48:49]")
    E.e(f"v_mov_b32 v{e_}, 0x40000000")
    E.e("s_nop 0")
    E.e(f"v_cndmask_b32 v0, v{e_}, v{d_}, vcc")
    pf0 = None
    if pf and pfstart:
        x_base(2)
        E.e(f"v_add_u32 v{t0}, s{sBase}, v0")
        pf0 = E.vm(f"buffer_load_dword v{RAW2+7 if not stamp else 72}, v{t0}, s[4:7], 0 offen")
    E.e(f"v_lshrrev_b32 v{a}, 1, v{vN}")
    E.e(f"v_add_u32 v{a}, s{sW}, v{a}")
    E.e(f"v_and_b32 v{a}, 7, v{a}")
    E.e(f"v_lshlrev_b32 v{a}, 4, v{a}")
    E.e(f"v_lshl_add_u32 v{a}, v{vN}, 7, v{a}")
    E.e(f"v_mul_u32_u24 v{b}, 3840, v{vG}")
    E.e(f"v_add_u32 v{vXa}, v{a}, v{b}")
    E.e(f"v_add_u32 v{b}, 12, v{vG}")
    E.e(f"v_min_u32 v{b}, 13, v{b}")
    E.e(f"v_mul_u32_u24 v{b}, 3840, v{b}")
    E.e(f"v_add_u32 v{vXa3}, v{a}, v{b}")
    E.e(f"v_lshrrev_b32 v{a}, 1, v{vN}")
    E.e(f"v_and_b32 v{b}, 1, v{vN}")
    E.e(f"v_sub_u32 v{a}, v{vG}, v{a}")
    E.e(f"s_mul_i32 s{sTmp}, s{sW}, 1920")
    E.e(f"s_add_u32 s{sTmp}, s{sTmp}, {T1LOC}")
    for f in range(4):
        E.e(f"v_add_u32 v{c}, {4*f}, v{a}")
        E.e(f"v_lshl_add_u32 v{d_}, v{c}, 1, v{b}")
        E.e(f"v_cmp_gt_u32 vcc, 7, v{c}")
        E.e(f"v_mov_b32 v{e_}, 14")
        E.e("s_nop 0")
        E.e(f"v_cndmask_b32 v{d_}, v{e_}, v{d_}, vcc")
        E.e(f"v_lshlrev_b32 v{d_}, 4, v{d_}")
        E.e(f"v_add_u32 v{vT+f}, s{sTmp}, v{d_}")
    E.e(f"v_mul_u32_u24 v{a}, 12, v{vG}")
    E.e(f"v_add_u32 v{a}, v{a}, v{vN}")
    E.e(f"v_lshrrev_b32 v{b}, 4, v{a}")
    E.e(f"v_and_b32 v{a}, 15, v{a}")
    E.e(f"v_lshlrev_b32 v{a}, 4, v{a}")
    E.e(f"v_lshl_add_u32 v{a}, v{b}, 10, v{a}")
    E.e(f"s_mul_i32 s{sTmp}, s{sHb}, 3072")
    E.e(f"s_lshl_b32 s{sTmp2}, s{sPair}, 8")
    E.e(f"s_add_u32 s{sTmp}, s{sTmp}, s{sTmp2}")
    E.e(f"s_add_u32 s{sTmp}, s{sTmp}, {HLOC}")
    E.e(f"v_add_u32 v{vHw}, s{sTmp}, v{a}")
    E.e(f"v_cmp_gt_u32 s[60:61], 12, v{vN}")
    E.e(f"s_mul_i32 s{sTmp}, s{sHb}, 6144")
    E.e(f"v_add_u32 v{vA0}, s{sTmp}, v{vL16}")
    E.e(f"v_add_u32 v{vA2}, {2*SLOT}, v{vA0}")
    E.e(f"s_mul_i32 s{sTmp}, s{sPair}, 3072")
    E.e(f"s_add_u32 s{sTmp}, s{sTmp}, {GBUF}")
    E.e(f"v_add_u32 v{vGr}, s{sTmp}, v{vL16}")
    E.e(f"s_lshl_b32 s{sTmp2}, s{sHb}, 3")
    E.e(f"v_add_u32 v{vGw}, s{sTmp2}, v{vGr}")
    E.e(f"v_add_u32 v{vDo}, s{sDw}, v{vL16}")
    E.e(f"s_lshr_b32 s{sTmp}, s{sPair}, 1")
    E.e(f"s_add_u32 s46, s{sR0}, s{sTmp}")
    E.e(f"s_and_b32 s{sTmp}, s{sPair}, 1")
    E.e(f"s_add_u32 s47, s{sC0}, s{sTmp}")
    E.e(f"s_mul_i32 s{sTmp3}, s{sHb}, 192")
    for nt in range(3):
        E.e(f"v_add_u32 v{a}, {16*nt}, v{vN}")
        E.e(f"v_mul_u32_u24 v{b}, 43, v{a}")
        E.e(f"v_lshrrev_b32 v{b}, 9, v{b}")
        E.e(f"v_mul_u32_u24 v{c}, 12, v{b}")
        E.e(f"v_sub_u32 v{c}, v{a}, v{c}")
        E.e(f"v_lshl_add_u32 v{b}, v{b}, 1, s46")
        E.e(f"v_lshl_add_u32 v{c}, v{c}, 1, s47")
        E.e(f"v_mul_u32_u24 v{b}, 384, v{b}")
        E.e(f"v_add_u32 v{b}, v{b}, v{c}")
        E.e(f"v_mul_u32_u24 v{b}, 384, v{b}")
        E.e(f"v_lshl_add_u32 v{b}, v{vG}, 4, v{b}")
        E.e(f"v_add_u32 v{vPx+nt}, s{sTmp3}, v{b}")
    E.e(f"v_lshrrev_b32 v{a}, 2, v{vN}")
    E.e(f"v_and_b32 v{b}, 3, v{vN}")
    E.e(f"v_and_b32 v{c}, 1, v{b}")
    E.e(f"v_lshlrev_b32 v{c}, 4, v{c}")
    E.e(f"v_mov_b32 v{d_}, 0x3f80")
    E.e(f"v_lshlrev_b32 v{d_}, v{c}, v{d_}")
    E.e(f"v_cmp_eq_u32 vcc, v{a}, v{vG}")
    E.e(f"v_mov_b32 v{c}, 0")
    E.e("s_nop 0")
    E.e(f"v_cndmask_b32 v{d_}, v{c}, v{d_}, vcc")
    E.e(f"v_cmp_gt_u32 vcc, 2, v{b}")
    E.e("s_nop 1")
    E.e(f"v_cndmask_b32 v{ID+2}, v{c}, v{d_}, vcc")
    E.e(f"v_cndmask_b32 v{ID+3}, v{d_}, v{c}, vcc")
    for i in (0, 1, 4, 5): E.e(f"v_mov_b32 v{ID+i}, 0")
    E.wait(v=dwl[2])
    t_write(RAW0, T0LOC, (44, 48))
    t_write(RAW1, T1LOC, (52, 56))
    E.e("s_mov_b32 s95, 12288")
    E.e(f"s_mov_b32 s{sRound}, 0")
    E.e(f"s_mov_b32 s{sRowP}, 0")
    E.e(f"s_mov_b32 s{sRowC}, 0")
    E.wait(v=xd[0] if not (stamp and pf0) else max(xd[0], pf0))
    E.wait_all_lds(force=True)
    E.e("s_barrier")
    extra = E.nv - xd[1]
    E.nv -= extra; E.dv = min(E.dv, E.nv)
    st("prologue")

    dma = {}; rd = {}; gi = {}; resid = {}
    RL, RN = 3, 3
    def out_store(q):
        u, nt = divmod(q, 3); o = Oreg(2*u, nt)
        E.vm(f"buffer_store_dwordx4 v[{o}:{o+3}], v{vPx+nt}, s[20:23], s{sRowP} offen offset:{u*64}{stflag}")

    def conv_step(s, side=()):
        side = list(side)
        loc = XB if s == 1 else XA
        toff = 0 if s == 1 else T0LOC - T1LOC
        E.c(f"==== conv step {s}")
        E.e(f"v_add_u32 v{t0}, {loc}, v{vXa}")
        E.e(f"v_add_u32 v{t1}, {loc}, v{vXa3}")
        def rd_eo(f):
            e4, o4 = EOq[2*(f & 1)], EOq[2*(f & 1)+1]
            adr = t1 if f == 3 else t0
            off = 0 if f == 3 else f*15360
            E.ds(f"ds_read_b128 v[{e4}:{e4+3}], v{adr} offset:{off}")
            return E.ds(f"ds_read_b128 v[{o4}:{o4+3}], v{adr} offset:{off+1920}")
        def rd_t(idx):
            f, c_ = divmod(idx, 8); r = Tq[idx & 3]
            return E.ds(f"ds_read_b128 v[{r}:{r+3}], v{vT+f} offset:{toff + c_*240}")
        eo = {0: rd_eo(0)}; tt = {}
        for i in range(3): tt[i] = rd_t(i)
        eo[1] = rd_eo(1)
        def mf(f, c_):
            idx = f*8 + c_
            E.wait(l=tt[idx])
            acc = ACC[8*s + c_]
            E.e(mfma(acc, Tq[idx & 3], Bq[c_], None if f == 0 else acc))
            if idx + 3 < 32: tt[idx+3] = rd_t(idx+3)
            if side and c_ != 6 and idx % sp == 0: side.pop(0)()
        for f in range(4):
            e4, o4 = EOq[2*(f & 1)], EOq[2*(f & 1)+1]
            if cprio: E.e(f"s_setprio {3-f}")
            E.wait(l=eo[f])
            for cp in range(4):
                E.e(f"v_perm_b32 v{Bq[2*cp]}, v{o4+cp}, v{e4+cp}, s{sSelLo}")
                E.e(f"v_perm_b32 v{Bq[2*cp+1]}, v{o4+cp}, v{e4+cp}, s{sSelHi}")
            if f + 2 < 4: eo[f+2] = rd_eo(f+2)
            for c_ in range(8):
                bb = Bq[c_]
                for dd in (1, 2, 3):
                    E.e(f"v_mov_b32_dpp v{bb+dd}, v{bb} row_shl:{dd} row_mask:0xf bank_mask:0xf bound_ctrl:1")
                if c_ > 0: mf(f, c_-1)
            E.e("s_nop 1")
            mf(f, 7)
        while side: side.pop(0)()

    def poll():
        if not inprep: return
        lp = f"{name}_poll"
        E.e(f"s_cmp_lg_u32 s{sRound}, 0")
        E.e(f"s_cbranch_scc1 {lp}_done")
        E.e(f"s_cmp_lg_u32 s{sW}, 0")
        E.e(f"s_cbranch_scc1 {lp}_bar")
        E.e(f"s_mov_b32 s{sTmp2}, 0")
        E.e(f"v_mov_b32 v{t0}, 0")
        E.label(f"{lp}")
        E.e(f"buffer_load_dword v{t1}, v{t0}, s[80:83], 0 offen sc1")
        E.e("s_waitcnt vmcnt(0)")
        E.e(f"v_readfirstlane_b32 s{sTmp}, v{t1}")
        E.e(f"s_add_u32 s{sTmp2}, s{sTmp2}, 1")
        E.e(f"s_cmp_ge_u32 s{sTmp2}, 0x40000")
        E.e(f"s_cbranch_scc1 {lp}_acq")
        E.e(f"s_cmp_lt_u32 s{sTmp}, {nprod}")
        E.e(f"s_cbranch_scc1 {lp}")
        E.label(f"{lp}_acq")
        if inv:
            E.e("buffer_inv sc1")
            E.e("s_waitcnt vmcnt(0)")
        E.label(f"{lp}_bar")
        E.e("s_barrier")
        E.label(f"{lp}_done")

    def layernorm():
        E.c("==== layernorm")
        ST = CT[0]; ST2 = CT[1]; RHO = CT[2]; BETA = CT[3]
        wl = []
        if wlate:
            poll()
            wl = [(J, i) for J in (-1, 0, 1) for i in range(3)]
        E.e("s_nop 7")
        if pkln:
            for h in (0, 2):
                E.e(f"v_pk_add_f32 v[{ST+h}:{ST+h+1}], v[{ACC[0]+h}:{ACC[0]+h+1}], v[{ACC[1]+h}:{ACC[1]+h+1}]")
                E.e(f"v_pk_mul_f32 v[{ST2+h}:{ST2+h+1}], v[{ACC[0]+h}:{ACC[0]+h+1}], v[{ACC[0]+h}:{ACC[0]+h+1}]")
            for ch in range(1, 24):
                for h in (0, 2):
                    x_ = f"v[{ACC[ch]+h}:{ACC[ch]+h+1}]"
                    if ch > 1: E.e(f"v_pk_add_f32 v[{ST+h}:{ST+h+1}], v[{ST+h}:{ST+h+1}], {x_}")
                    E.e(f"v_pk_fma_f32 v[{ST2+h}:{ST2+h+1}], {x_}, {x_}, v[{ST2+h}:{ST2+h+1}]")
                if wl and ch % 2 == 0: issue_w(*wl.pop(0))
        else:
            for r in range(4):
                E.e(f"v_mov_b32 v{ST+r}, v{ACC[0]+r}")
                E.e(f"v_mul_f32 v{ST2+r}, v{ACC[0]+r}, v{ACC[0]+r}")
            for ch in range(1, 24):
                for r in range(4):
                    x_ = ACC[ch] + r
                    E.e(f"v_add_f32 v{ST+r}, v{ST+r}, v{x_}")
                    E.e(f"v_fmac_f32 v{ST2+r}, v{x_}, v{x_}")
        while wl: issue_w(*wl.pop(0))
        if halfw:
            E.e(f"v_lshrrev_b32 v{t0}, 8, v{vL16}")
            E.e(f"v_mul_u32_u24 v{t0}, 192, v{t0}")
            E.e(f"v_and_b32 v{t1}, 0xf0, v{vL16}")
            E.e(f"v_add3_u32 v{t0}, v{t0}, v{t1}, s95")
            E.e(f"s_mul_i32 s{sTmp}, s{sW}, 1536")
            E.e(f"v_add_u32 v{t1}, s{sTmp}, v{t0}")
            E.e("s_mov_b64 s[62:63], exec")
            E.e("s_mov_b64 exec, s[60:61]")
            E.ds(f"ds_write_b128 v{t1}, v[{ST}:{ST+3}]")
            E.ds(f"ds_write_b128 v{t1}, v[{ST2}:{ST2+3}] offset:768")
            E.e("s_mov_b64 exec, s[62:63]")
            sstride, soff = 1536, 768
        else:
            E.e(f"v_add_u32 v{t0}, {STLOC}, v{vL16}")
            E.e(f"s_lshl_b32 s{sTmp}, s{sW}, 11")
            E.e(f"v_add_u32 v{t1}, s{sTmp}, v{t0}")
            E.wait_all_lds(force=True)
            if fine: st("ln stats")
            E.e("s_barrier")
            if fine: st("BA")
            E.ds(f"ds_write_b128 v{t1}, v[{ST}:{ST+3}]")
            E.ds(f"ds_write_b128 v{t1}, v[{ST2}:{ST2+3}] offset:1024")
            sstride, soff = 2048, 1024
        E.wait_all_lds(force=True)
        E.e("s_barrier")
        if fine: st("BB")
        RB = Bq + EOq + Tq
        for w in range(8):
            E.ds(f"ds_read_b128 v[{RB[2*w]}:{RB[2*w]+3}], v{t0} offset:{sstride*w}")
            E.ds(f"ds_read_b128 v[{RB[2*w+1]}:{RB[2*w+1]+3}], v{t0} offset:{sstride*w+soff}")
        base_id = E.nl - 16
        for w in range(1, 8):
            E.wait(l=base_id + 2*w + 2)
            for h in (0, 2):
                for k, dst in enumerate((ST, ST2)):
                    src = RB[2*w + k]
                    s0 = RB[k] if w == 1 else dst
                    E.e(f"v_pk_add_f32 v[{dst+h}:{dst+h+1}], v[{s0+h}:{s0+h+1}], v[{src+h}:{src+h+1}]")
        E.e(f"v_mov_b32 v{RHO}, {f2u(1.0/192):#x}")
        E.e(f"v_mov_b32 v{RHO+1}, {f2u(1.0/192):#x}")
        E.e(f"v_mov_b32 v{RHO+2}, {f2u(1e-5):#x}")
        for h in (0, 2):
            E.e(f"v_pk_mul_f32 v[{ST+h}:{ST+h+1}], v[{ST+h}:{ST+h+1}], v[{RHO}:{RHO+1}]")
            E.e(f"v_pk_mul_f32 v[{ST2+h}:{ST2+h+1}], v[{ST2+h}:{ST2+h+1}], v[{RHO}:{RHO+1}]")
        for h in (0, 2):
            E.e(f"v_pk_fma_f32 v[{ST2+h}:{ST2+h+1}], v[{ST+h}:{ST+h+1}], v[{ST+h}:{ST+h+1}], v[{ST2+h}:{ST2+h+1}] neg_lo:[1,0,0] neg_hi:[1,0,0]")
        for r in range(4): E.e(f"v_max_f32 v{ST2+r}, 0, v{ST2+r}")
        for r in range(4): E.e(f"v_add_f32 v{ST2+r}, v{RHO+2}, v{ST2+r}")
        for r in range(4): E.e(f"v_rsq_f32 v{RHO+r}, v{ST2+r}")
        E.e("s_nop 0")
        for r in range(4): E.e(f"v_mul_f32 v{RHO+r}, s{sS}, v{RHO+r}")
        for h in (0, 2):
            E.e(f"v_pk_mul_f32 v[{BETA+h}:{BETA+h+1}], v[{ST+h}:{ST+h+1}], v[{RHO+h}:{RHO+h+1}]")
        if fine: st("ln rho")
        E.e(f"v_add_u32 v{t0}, 32768, v{vHw}")
        E.e("s_mov_b64 s[62:63], exec")
        E.e("s_mov_b64 exec, s[60:61]")
        ta, tb = EOq[0], EOq[0] + 1
        if pkln:
            for ch in range(24):
                for h in (0, 2):
                    x_ = f"v[{ACC[ch]+h}:{ACC[ch]+h+1}]"
                    E.e(f"v_pk_fma_f32 {x_}, {x_}, v[{RHO+h}:{RHO+h+1}], v[{BETA+h}:{BETA+h+1}] neg_lo:[0,0,1] neg_hi:[0,0,1]")
        for cg in range(3):
            for r in range(4):
                o = Bq[(cg*4 + r) & 7]
                for cp in range(4):
                    a0 = ACC[8*cg + 2*cp] + r; a1 = ACC[8*cg + 2*cp + 1] + r
                    if pkln:
                        E.e(f"v_cvt_pk_bf16_f32 v{o+cp}, v{a0}, v{a1}")
                    else:
                        E.e(f"v_fma_f32 v{ta}, v{a0}, v{RHO+r}, -v{BETA+r}")
                        E.e(f"v_fma_f32 v{tb}, v{a1}, v{RHO+r}, -v{BETA+r}")
                        E.e(f"v_cvt_pk_bf16_f32 v{o+cp}, v{ta}, v{tb}")
                off = r*18432 + cg*6144
                adr = vHw
                if off >= 32768: adr, off = t0, off - 32768
                E.ds(f"ds_write_b128 v{adr}, v[{o}:{o+3}] offset:{off}")
        E.e("s_mov_b64 exec, s[62:63]")

    wuid = [0]
    def issue_w(J, i):
        j = J % 24; slot = (J % NS)*SLOT
        skip = None
        if halfw and J in (-1, 0): skip = 1
        if halfw and J in (23, 24): skip = 0
        if skip is not None:
            lbl = f"{name}_ws{J % 100}_{i}".replace("-", "m")
            E.e(f"s_cmp_eq_u32 s{sHb}, {skip}")
            E.e(f"s_cbranch_scc1 {lbl}")
        E.e(f"s_add_u32 m0, s{sDw}, {slot + i*1024}")
        E.e(f"s_mov_b32 s{sSo}, {j*SLOT + i*1024}")
        dma[J] = E.vm(f"buffer_load_dwordx4 v{vDo}, s[8:11], s{sSo} offen lds", skippable=skip is not None)
        if skip is not None: E.label(lbl)
    def a_read(J, f):
        slot = J % NS
        base, off = (vA2, (slot-2)*SLOT) if slot >= 2 else (vA0, slot*SLOT)
        o = off + (f*1024 if f < 6 else 12288 + (f-6)*1024)
        r = AR + 4*(((J+1)*12 + f) & 3)
        rd[(J, f)] = E.ds(f"ds_read_b128 v[{r}:{r+3}], v{base} offset:{o}")
    def gelu_half(c_, p, hf2):
        nt, hf = divmod(p, 2)
        uA = S + 12*(c_ & 1) + 4*nt + 2*hf; uB = uA + 1
        ta = TT + 2*(p & 1); tb = ta + 1
        gd = GT + 2*(nt & 1) + hf
        if f16:
            if hf2 == 0:
                return [f"v_cvt_pk_f16_f32 v{ta}, v{uA}, v{uB}",
                        f"v_pk_fma_f16 v{tb}, v{ta}, v{ta}, s{sAh}",
                        f"v_pk_mul_f16 v{tb}, v{tb}, v{ta} neg_lo:[1,0] neg_hi:[1,0]",
                        f"v_exp_f16_sdwa v{ta}, v{tb} dst_sel:WORD_0 dst_unused:UNUSED_PAD src0_sel:WORD_0",
                        f"v_exp_f16_sdwa v{ta}, v{tb} dst_sel:WORD_1 dst_unused:UNUSED_PRESERVE src0_sel:WORD_1"]
            return [f"v_pk_fma_f16 v{ta}, v{ta}, s{sSh}, s{sSh}",
                    f"v_rcp_f16_sdwa v{tb}, v{ta} dst_sel:WORD_0 dst_unused:UNUSED_PAD src0_sel:WORD_0",
                    f"v_rcp_f16_sdwa v{tb}, v{ta} dst_sel:WORD_1 dst_unused:UNUSED_PRESERVE src0_sel:WORD_1",
                    f"v_fma_mix_f32 v{ta}, v{uA}, v{tb}, 0 op_sel_hi:[0,1,0]",
                    f"v_fma_mix_f32 v{tb}, v{uB}, v{tb}, 0 op_sel:[0,1,0] op_sel_hi:[0,1,0]",
                    f"v_cvt_pk_bf16_f32 v{gd}, v{ta}, v{tb}"]
        if hf2 == 0:
            return [f"v_fma_f32 v{ta}, -v{uA}, v{uA}, s{sNegA}", f"v_fma_f32 v{tb}, -v{uB}, v{uB}, s{sNegA}",
                    f"v_mul_f32 v{ta}, v{ta}, v{uA}", f"v_mul_f32 v{tb}, v{tb}, v{uB}",
                    f"v_exp_f32 v{ta}, v{ta}", f"v_exp_f32 v{tb}, v{tb}"]
        return [f"v_fma_f32 v{ta}, v{ta}, s{sS}, s{sS}", f"v_fma_f32 v{tb}, v{tb}, s{sS}, s{sS}",
                f"v_rcp_f32 v{ta}, v{ta}", f"v_rcp_f32 v{tb}, v{tb}",
                f"v_mul_f32 v{ta}, v{uA}, v{ta}", f"v_mul_f32 v{tb}, v{uB}, v{tb}",
                f"v_cvt_pk_bf16_f32 v{gd}, v{ta}, v{tb}"]

    def stage(J):
        g1 = 0 <= J + 1 <= 23; g2 = 0 <= J - 1 <= 23
        last = J == 24
        E.c(f"---- stage {J}")
        def needs_frag(JJ, f): return (0 <= JJ + 1 <= 23) if f < 6 else (0 <= JJ - 1 <= 23)
        for g in range(12):
            gg = (g - 8) % 12
            c_ = (J + 1) if g >= 8 else J
            p, hf2 = divmod(gg, 2)
            dog = 0 <= c_ <= 23
            ops = gelu_half(c_, p, hf2) if dog else []
            if f16 and ops: segs = [ops[0:2], ops[2:3], ops[3:]] if hf2 == 1 else [ops[0:2], ops[2:4], ops[4:]]
            else: segs = [ops[0:2], ops[2:4], ops[4:]]
            ar = AR + 4*(((J+1)*12 + g) & 3)
            domf = g1 if g < 6 else g2
            if psched and g in psched and g != 9 and not last: E.e(f"s_setprio {psched[g]}")
            if domf:
                need = rd[(J, g)]
                if wait2 and g % 2 == 0 and (J, g+1) in rd and needs_frag(J, g+1): need = max(need, rd[(J, g+1)])
                if g == 6: need = max(need, gi[2])
                if J == -1 and g < 6: need = max(need, xrd[3*g+2])
                E.wait(l=need)
            for nt in range(3):
                if domf:
                    if g < 6:
                        dd = S + 12*((J+1) & 1) + 4*nt
                        E.e(mfma(dd, ar, X + (g*3+nt)*4, None if g == 0 else dd))
                    else:
                        o = Oreg(g-6, nt)
                        E.e(mfma(o, ar, GI + 4*nt, None if J == 1 else o))
                elif f16 and ops and nt > 0: E.e("s_nop 0")
                if nt == 0:
                    if g == 9:
                        if not last and (J + 1) <= 24 and (J+1) in dma: E.wait(v=dma[J+1])
                        E.wait_all_lds(force=True)
                        E.e("s_barrier")
                        if psched and 9 in psched and not last: E.e(f"s_setprio {psched[9]}")
                        if last: x_base(1)
                    if g + D < 12:
                        if needs_frag(J, g + D) and (J, g + D) not in rd: a_read(J, g + D)
                    elif not last:
                        f2 = g + D - 12
                        if needs_frag(J+1, f2): a_read(J+1, f2)
                    if g < 3 and g2:
                        gi[g] = E.ds(f"ds_read_b128 v[{GI+4*g}:{GI+4*g+3}], v{vGr} offset:{((J-1) & 1)*12288 + g*1024}")
                for o_ in segs[nt]: E.e(o_)
            if dog and hf2 == 1 and (p & 1) == 1:
                nt = p >> 1; gd = GT + 2*(nt & 1)
                E.ds(f"ds_write_b64 v{vGw}, v[{gd}:{gd+1}] offset:{(c_ & 1)*12288 + nt*1024}")
            if last:
                if g >= 9:
                    for q in {9: (0, 1, 2), 10: (3, 4), 11: (5, 6)}[g]: x_dma(1, q, XB)
                if g == 11: prep_next_c(1)
                continue
            for i, gq in enumerate(wsite):
                if g == gq:
                    JJ = J + NS if gq >= 9 else J + NS - 1
                    if 2 <= JJ <= 24: issue_w(JJ, i)
            if g == xsite and 3 <= J < 10:
                if J == 3: x_base(0)
                x_dma(0, J - 3, XA)
            if g == rsite and 2 <= J < 11:
                q = J - 2; u, nt = divmod(q, 3); r = RS + 4*(q % RN)
                resid[q] = E.vm(f"buffer_load_dwordx4 v[{r}:{r+3}], v{vPx+nt}, s[16:19], s{sRowC} offen offset:{u*64}{rflag}")
            if g == rsite - 1 and 2 + RL <= J < 11 + RL:
                q = J - 2 - RL; u, nt = divmod(q, 3)
                E.wait(v=resid[q])
                for p2 in range(2):
                    o = Oreg(2*u + p2, nt)
                    E.e(mfma(o, ID + (2 if p2 == 0 else 0), RS + 4*(q % RN), o))
            if pf and g == xsite and J in pf:
                sp = 1 + pf.index(J)
                x_base(sp)
                E.e(f"v_add_u32 v{t0}, s{sBase}, v0")
                E.vm(f"buffer_load_dword v{RAW2}, v{t0}, s[4:7], 0 offen")
            if J == 19 and 1 <= g <= 7: dw_load1(2, g - 1, first=(g == 1))
            if J == 22 and g >= 6: dw_load1(0, g - 6, first=(g == 6))
            if J == 23 and g <= 7:
                if g == 0: dw_load1(0, 6)
                else: dw_load1(1, g - 1)
            if J == 0 and g == 6:
                E.e(f"s_add_u32 s{sTileRow}, s{sTileRow}, {RSTEP}")
                E.e(f"s_cmp_eq_u32 s{sRound}, {NROUND-1}")
                E.e(f"s_cselect_b32 s6, 0, s6")
                E.e(f"s_mov_b32 s22, {XBYTES}")

    def prep_next_c(part):
        if part == 0:
            x_base(1)
            for q in range(7): x_dma(1, q, XB)
        else:
            E.wait(v=dwl[1])
            t_write(RAW0, T0LOC, (S, S+4))
            t_write(RAW1, T1LOC, (S+8, S+12))

    xrd = {}
    state = {"round0": None}
    def round_body():
        conv_step(0, [lambda q=q: out_store(q) for q in range(3)])
        if fine: st("c0 compute")
        E.wait(v=xd[1]); E.wait_all_lds(force=True); E.e("s_barrier")
        if fine: st("B0")
        DT = CT[4]
        def signal():
            lbl = f"{name}_nosig"
            E.e(f"s_cmp_lg_u32 s{sRound}, 0")
            E.e(f"s_cbranch_scc1 {lbl}")
            E.e(f"s_cmp_eq_u32 s{sW}, 0")
            E.e(f"s_cselect_b32 s86, s86, 0")
            E.e(f"v_mov_b32 v{DT+2}, 0")
            E.e(f"v_mov_b32 v{DT+3}, 1")
            E.e("s_mov_b64 s[62:63], exec")
            E.e("s_mov_b64 exec, 1")
            E.vm(f"buffer_atomic_add v{DT+3}, v{DT+2}, s[84:87], 0 offen sc1", skippable=True)
            E.e("s_mov_b64 exec, s[62:63]")
            E.label(lbl)
        side = []
        if inprep: side.append(signal)
        x_base(2)
        side += [lambda q=q: x_dma(2, q, XA, tmp=DT) for q in range(7)]
        side += [lambda: t_write(RAW2, T0LOC, (CT[0], CT[1]), DT+2, DT+3)]
        side += [lambda q=q: out_store(q) for q in range(3, 6)]
        st("conv0", dyn=True)
        conv_step(1, side)
        if fine: st("c1 compute")
        E.wait(v=xd[2]); E.wait_all_lds(force=True); E.e("s_barrier")
        if fine: st("B1")
        side = []
        if not wlate:
            poll()
            side = [lambda J=J, i=i: issue_w(J, i) for J in (-1, 0, 1) for i in range(3)]
        side += [lambda q=q: out_store(q) for q in range(6, 9)]
        st("conv1", dyn=True)
        conv_step(2, side)
        st("conv2", dyn=True)
        layernorm()
        if fine: st("ln hwrite")
        E.wait(v=dma[1]); E.wait_all_lds(force=True); E.e("s_barrier")
        if fine: st("BD")
        E.e(f"s_mul_i32 s{sTmp}, s{sPair}, 18432")
        E.e(f"s_add_u32 s{sTmp}, s{sTmp}, {HLOC}")
        E.e(f"v_add_u32 v{t0}, s{sTmp}, v{vL16}")
        for f in range(D): a_read(-1, f)
        for fi in range(18):
            xrd[fi] = E.ds(f"ds_read_b128 v[{X+4*fi}:{X+4*fi+3}], v{t0} offset:{fi*1024}")
        st("ln", dyn=True)
        for J in range(-1, 25):
            stage(J)
            if fine and J in (-1, 0, 1, 2, 12, 22, 23): st(f"stage {J}")
        if fine: st("stage 24")
        E.e("s_setprio 0")
        E.e("s_nop 7")
        for q in range(9):
            u, nt = divmod(q, 3); o = Oreg(2*u, nt)
            for dd in range(4): E.e(f"v_cvt_pk_bf16_f32 v{o+dd}, v{o+2*dd}, v{o+2*dd+1}")
        E.e(f"s_mov_b32 s{sRowP}, s{sRowC}")
        E.e(f"s_add_u32 s{sRowC}, s{sRowC}, {RSTEP*147456}")
        E.wait_all_lds(force=True)
        E.e("s_barrier")
        st("mlp", dyn=True)
        rd.clear(); gi.clear(); dma.clear()

    nst = len(stamps)
    E.L.append(".p2align 6")
    E.label(f"{name}_L")
    b0 = len(E.L)
    round_body()
    body = list(E.L[b0:])
    E.e(f"s_add_u32 s{sRound}, s{sRound}, 1")
    E.e(f"s_cmp_lt_u32 s{sRound}, {NROUND}")
    E.e(f"s_cbranch_scc1 {name}_L")
    if not stamp:
        save = len(E.L); sv = (E.nl, E.dl, E.nv, E.dv)
        round_body()
        b2 = E.L[save:]
        if b2 != body:
            for x1, x2 in zip(body, b2):
                if x1 != x2: print("DIFF", x1, "|", x2); break
        assert b2 == body, "not steady"
        del E.L[save:]
    for q in range(9): out_store(q)
    if stamp:
        E.e("s_waitcnt vmcnt(0)")
        st("done")
        E.e(f"s_add_u32 s46, s42, {240<<20}")
        E.e(f"s_addc_u32 s47, s43, 0")
        srd(E, 48, 46, 47, 1 << 20)
        E.e(f"s_lshl_b32 s{sTmp}, s2, 3")
        E.e(f"s_add_u32 s{sTmp}, s{sTmp}, s{sW}")
        E.e(f"s_lshl_b32 s{sTmp}, s{sTmp}, 8")
        E.e(f"v_lshrrev_b32 v{t0}, 2, v{vL16}")
        E.e(f"buffer_store_dword v{STAMP}, v{t0}, s[48:51], s{sTmp} offen")
        if dbgout:
            E.e(f"s_cmp_lg_u32 s2, {dbgout}")
            E.e(f"s_cbranch_scc1 {name}_end")
            E.e(f"s_cmp_lg_u32 s{sW}, 0")
            E.e(f"s_cbranch_scc1 {name}_end")
            E.e(f"v_readlane_b32 s{sTmp}, v{STAMP}, 32")
            E.e("s_nop 3")
            E.e(f"v_subrev_u32 v{t1}, s{sTmp}, v{STAMP}")
            E.e(f"v_lshrrev_b32 v{t0}, 2, v{vL16}")
            E.e(f"v_subrev_u32 v{t0}, {(32+dbgshift)*4 - 4}, v{t0}")
            E.e(f"buffer_store_dword v{t1}, v{t0}, s[80:83], 0 offen")
        global STAMPS; STAMPS = stamps
    E.label(f"{name}_end")
    E.e("s_endpgm")
    return header(name) + E.text() + descriptor(name, 256)

def gen_k0(name):
    E = Em()
    vL, vN, vG, vL16, t0, t1, t2 = 1, 2, 3, 4, 5, 6, 7
    sW, sTmp, sTmp2, sGw, sJ, sQ, sC2, sPb = 3, 24, 25, 50, 51, 52, 53, 58
    E.e("s_cmp_ge_u32 s2, 72")
    E.e(f"s_cbranch_scc1 {name}_end")
    E.e("s_load_dwordx4 s[40:43], s[0:1], 16")
    E.e("s_load_dwordx2 s[44:45], s[0:1], 48")
    E.e(f"v_lshrrev_b32 v{t0}, 6, v0")
    E.e(f"v_and_b32 v{vL}, 63, v0")
    E.e(f"v_readfirstlane_b32 s{sW}, v{t0}")
    E.e(f"v_and_b32 v{vN}, 15, v{vL}")
    E.e(f"v_lshrrev_b32 v{vG}, 4, v{vL}")
    E.e(f"v_lshlrev_b32 v{vL16}, 4, v{vL}")
    E.e("s_waitcnt lgkmcnt(0)")
    srd(E, 20, 44, 45, 24*24576)
    emit_prep_loads(E, name, sW, vN, vG, t0, t1, t2, sTmp, sTmp2, 8, 40)
    E.e("s_waitcnt vmcnt(0)")
    for d in range(4): E.e(f"v_lshl_or_b32 v{16+d}, v{8+2*d+1}, 16, v{8+2*d}")
    E.e(f"s_mul_i32 s{sTmp}, s51, 24576")
    E.e(f"s_lshl_b32 s{sTmp2}, s52, 10")
    E.e(f"s_add_u32 s{sTmp}, s{sTmp}, s{sTmp2}")
    E.e(f"buffer_store_dwordx4 v[16:19], v{vL16}, s[20:23], s{sTmp} offen")
    E.label(f"{name}_end")
    E.e("s_endpgm")
    return header(name) + E.text() + descriptor(name, 32)

def emit_prep_loads(E, name, sW, vN, vG, t0, t1, t2, sTmp, sTmp2, PW, wptr):
    lw2 = f"{name}_pw2"; lst = f"{name}_pst"
    sGw, sJ, sQ, sC2, sPb = 50, 51, 52, 53, 68
    E.e(f"s_lshl_b32 s{sGw}, s2, 3")
    E.e(f"s_add_u32 s{sGw}, s{sGw}, s{sW}")
    E.e(f"s_mul_i32 s{sJ}, s{sGw}, 2731")
    E.e(f"s_lshr_b32 s{sJ}, s{sJ}, 16")
    E.e(f"s_mul_i32 s{sTmp}, s{sJ}, 24")
    E.e(f"s_sub_u32 s{sQ}, s{sGw}, s{sTmp}")
    E.e(f"s_cmp_ge_u32 s{sQ}, 12")
    E.e(f"s_cbranch_scc1 {lw2}")
    srd(E, 64, wptr, wptr+1, 192*768*2)
    E.e(f"s_add_u32 s{sC2}, s{sJ}, 1")
    E.e(f"s_cmp_eq_u32 s{sC2}, 24")
    E.e(f"s_cselect_b32 s{sC2}, 0, s{sC2}")
    E.e(f"s_cmp_ge_u32 s{sQ}, 6")
    E.e(f"s_cselect_b32 s{sTmp}, 1, 0")
    E.e(f"s_mul_i32 s{sTmp2}, s{sTmp}, 6")
    E.e(f"s_sub_u32 s{sTmp2}, s{sQ}, s{sTmp2}")
    E.e(f"s_mul_i32 s{sTmp2}, s{sTmp2}, 49152")
    E.e(f"s_lshl_b32 s{sTmp}, s{sTmp}, 5")
    E.e(f"s_add_u32 s{sTmp2}, s{sTmp2}, s{sTmp}")
    E.e(f"s_lshl_b32 s{sTmp}, s{sC2}, 6")
    E.e(f"s_add_u32 s{sPb}, s{sTmp2}, s{sTmp}")
    E.e(f"v_mul_u32_u24 v{t0}, 12288, v{vG}")
    E.e(f"v_lshl_add_u32 v{t0}, v{vN}, 1, v{t0}")
    E.e("s_mov_b32 s69, 1536")
    E.e("s_mov_b32 s70, 1536")
    E.e(f"s_branch {lst}")
    E.label(lw2)
    srd(E, 64, wptr+2, wptr+3, 192*768*2)
    E.e(f"s_add_u32 s{sC2}, s{sJ}, 23")
    E.e(f"s_cmp_ge_u32 s{sC2}, 24")
    E.e(f"s_cselect_b32 s{sTmp}, 24, 0")
    E.e(f"s_sub_u32 s{sC2}, s{sC2}, s{sTmp}")
    E.e(f"s_sub_u32 s{sTmp}, s{sQ}, 12")
    E.e(f"s_lshr_b32 s{sTmp2}, s{sTmp}, 1")
    E.e(f"s_lshl_b32 s{sTmp2}, s{sTmp2}, 6")
    E.e(f"s_and_b32 s{sTmp}, s{sTmp}, 1")
    E.e(f"s_lshl_b32 s{sTmp}, s{sTmp}, 3")
    E.e(f"s_add_u32 s{sTmp2}, s{sTmp2}, s{sTmp}")
    E.e(f"s_mul_i32 s{sTmp}, s{sC2}, 12288")
    E.e(f"s_add_u32 s{sPb}, s{sTmp2}, s{sTmp}")
    E.e(f"v_lshrrev_b32 v{t1}, 2, v{vN}")
    E.e(f"v_and_b32 v{t2}, 3, v{vN}")
    E.e(f"v_lshl_add_u32 v{t1}, v{t1}, 3, v{t2}")
    E.e(f"v_mul_u32_u24 v{t0}, 1536, v{vG}")
    E.e(f"v_lshl_add_u32 v{t0}, v{t1}, 1, v{t0}")
    E.e("s_mov_b32 s69, 384")
    E.e(f"s_mov_b32 s70, {6144 - 3*384}")
    E.label(lst)
    E.e(f"s_cmp_lt_u32 s{sGw}, 576")
    E.e("s_cselect_b32 s66, s66, 0")
    last = None
    for e in range(8):
        last = E.vm(f"buffer_load_ushort v{PW+e}, v{t0}, s[64:67], s{sPb} offen")
        if e < 7: E.e(f"s_add_u32 s{sPb}, s{sPb}, s{70 if e == 3 else 69}")
    return last

if __name__ == "__main__":
    print(gen_f1("f1_kernel"))
```

```python
from em import *
import math
A_ = 2*math.sqrt(2/math.pi)*math.log2(math.e); B_ = A_*0.044715; S_ = B_**(1/3)
XBYTES = 384*384*384
SLOT = 24576; NS = 3
GBUF = NS*SLOT
PBUF = GBUF + 24576
XA, XB = PBUF, 0
T1LOC, T0LOC = 57344, GBUF
HLOC = GBUF
STLOC = 147456
F1_LDS = 163840
NROUND = 3
D = 3

def mfma(d, a, b, c=None):
    src = "0" if c is None else f"v[{c}:{c+3}]"
    return f"v_mfma_f32_16x16x32_bf16 v[{d}:{d+3}], v[{a}:{a+3}], v[{b}:{b+3}], {src}"

def gen_f1(name, stamp=False, f16=True, psched={9: 3, 5: 2, 7: 1, 8: 0}, wsite=(10, 0, 2), rsite=4, xsite=3, wait2=True, strip=(), inprep=True, pkln=True, pf=(14, 17), nprod=72, fine=False, sp=3, cprio=True, dbgout=False, dbgshift=0, stflag=' sc1', xflag='', rflag='', halfw=True, wlate=True, pfstart=False, inv=False, band=True, pf2=False, normil=False):
    E = Em()
    sW, sPair, sHb = 3, 33, 35
    sTmp, sTmp2, sTmp3 = 24, 25, 28
    sSelLo, sSelHi = 26, 27
    sNegA, sS, sAh, sSh = 29, 30, 92, 93
    sR0, sC0 = 44, 45
    sBase = 31
    sTileRow = 32
    sRowP, sRowC, sRound = 54, 55, 56
    sDw, sSo, sM0w, sDwo = 57, 34, 58, 59
    vL16 = 1; vDS = 2; vXa, vXa3 = 9, 10; vT = 11; vHw = 15
    vA0, vA2, vGr, vGw, vDo = 16, 17, 18, 19, 20
    vPx = 21; ID = 24; t0, t1 = 30, 31
    TT, GT, RS, AR, GI, S, X, O = 32, 36, 40, 52, 68, 80, 104, 176
    RAW2 = 248
    STAMP = 255
    RAW0, RAW1 = X, X + 8
    def Oreg(i, nt): return O + (((i >> 1)*3 + nt)*2 + (i & 1))*4
    packed = [Oreg(2*u, nt) for u in range(3) for nt in range(3)]
    free = [q for q in range(32, 248, 4) if q not in packed]
    ACC = free[:24]; Bq = free[24:32]; EOq = free[32:36]; Tq = free[36:40]
    CT = free[40:45]
    assert all(EOq[i+1] == EOq[i] + 4 for i in (0, 2)) or True

    stamps = []
    def st(tag, dyn=False):
        if not stamp: return
        if fine and dyn: dyn = False
        if dyn:
            base = len(stamps)
            for r in range(NROUND): stamps.append(f"{tag} r{r}")
            E.e(f"s_add_u32 m0, s{sRound}, {base}")
            E.e("s_memtime s[96:97]"); E.e("s_waitcnt lgkmcnt(0)")
            E.e(f"v_writelane_b32 v{STAMP}, s96, m0")
            E.e("s_add_u32 m0, m0, 32")
            E.e("s_memrealtime s[96:97]"); E.e("s_waitcnt lgkmcnt(0)")
            E.e(f"v_writelane_b32 v{STAMP}, s96, m0")
        else:
            i = len(stamps); stamps.append(tag)
            E.e("s_memtime s[96:97]"); E.e("s_waitcnt lgkmcnt(0)")
            E.e(f"v_writelane_b32 v{STAMP}, s96, {i}")
            E.e("s_memrealtime s[96:97]"); E.e("s_waitcnt lgkmcnt(0)")
            E.e(f"v_writelane_b32 v{STAMP}, s96, {32+i}")
        E.dl = E.nl

    E.e("s_cmp_ge_u32 s2, 256")
    E.e(f"s_cbranch_scc1 {name}_end")
    E.e("s_load_dwordx4 s[36:39], s[0:1], 0")
    E.e("s_load_dwordx2 s[40:41], s[0:1], 32")
    E.e("s_load_dwordx2 s[42:43], s[0:1], 48")
    if inprep:
        E.e("s_load_dwordx4 s[72:75], s[0:1], 16")
        E.e("s_load_dwordx2 s[76:77], s[0:1], 40")
    vL, vN, vG = 32, 33, 34
    a, b, c, d_, e_, f_, g_ = 35, 36, 37, 38, 39, 40, 41
    E.e(f"v_lshrrev_b32 v{a}, 6, v0")
    E.e(f"v_and_b32 v{vL}, 63, v0")
    E.e(f"v_readfirstlane_b32 s{sW}, v{a}")
    E.e(f"v_and_b32 v{vN}, 15, v{vL}")
    E.e(f"v_lshrrev_b32 v{vG}, 4, v{vL}")
    E.e(f"v_lshlrev_b32 v{vL16}, 4, v{vL}")
    E.e(f"s_and_b32 s{sPair}, s{sW}, 3")
    E.e(f"s_lshr_b32 s{sHb}, s{sW}, 2")
    E.e(f"s_mov_b32 s{sSelLo}, 0x05040100")
    E.e(f"s_mov_b32 s{sSelHi}, 0x07060302")
    E.e(f"s_mov_b32 s{sNegA}, {f2u(-A_/S_):#x}")
    E.e(f"s_mov_b32 s{sS}, {f2u(S_):#x}")
    if f16:
        import numpy as np
        h16 = lambda x: int(np.array([x], np.float16).view(np.uint16)[0])
        E.e(f"s_mov_b32 s{sAh}, {h16(A_/S_)*0x10001:#x}")
        E.e(f"s_mov_b32 s{sSh}, {h16(S_)*0x10001:#x}")
    E.e(f"s_and_b32 s{sTmp}, s2, 7")
    E.e(f"s_lshl_b32 s{sTmp}, s{sTmp}, 5")
    E.e(f"s_lshr_b32 s{sTmp2}, s2, 3")
    E.e(f"s_add_u32 s{sTmp}, s{sTmp}, s{sTmp2}")
    if band:
        E.e(f"s_lshr_b32 s{sR0}, s{sTmp}, 5")
        E.e(f"s_mul_i32 s{sR0}, s{sR0}, 48")
        E.e(f"s_bfe_u32 s{sTmp2}, s{sTmp}, 0x10004")
        E.e(f"s_lshl_b32 s{sTmp2}, s{sTmp2}, 3")
        E.e(f"s_add_u32 s{sR0}, s{sR0}, s{sTmp2}")
    else:
        E.e(f"s_lshr_b32 s{sR0}, s{sTmp}, 4")
        E.e(f"s_mul_i32 s{sR0}, s{sR0}, 24")
    RSTEP = 16 if band else 8
    E.e(f"s_and_b32 s{sC0}, s{sTmp}, 15")
    E.e(f"s_mul_i32 s{sC0}, s{sC0}, 24")
    E.e(f"s_mul_i32 s{sM0w}, s{sW}, 7168")
    E.e(f"s_mul_i32 s{sDw}, s{sW}, 3072")
    E.e(f"s_mul_i32 s{sDwo}, s{sW}, 2688")
    E.e(f"s_cmp_eq_u32 s{sW}, 7")
    E.e(f"s_cselect_b32 s{sDwo}, 0x100000, s{sDwo}")
    E.e("s_waitcnt lgkmcnt(0)")
    srd(E, 4, 36, 37, XBYTES)
    srd(E, 16, 36, 37, XBYTES)
    srd(E, 12, 38, 39, 7*7*192*2)
    srd(E, 8, 42, 43, 24*SLOT)
    srd(E, 20, 40, 41, XBYTES)
    E.e("s_mov_b32 s22, 0")
    if stamp: E.e(f"v_mov_b32 v{STAMP}, 0")
    st("start")

    dwl = {}
    def dw_load1(cb, j, first=False):
        base = (RAW0, RAW1, RAW2)[cb]
        if first: E.e(f"v_lshrrev_b32 v{t0}, 3, v{vL16}")
        if j == 0 or first: E.e(f"s_add_u32 s71, s{sDwo}, {128*cb}")
        dwl[cb] = E.vm(f"buffer_load_ushort v{base+j}, v{t0}, s[12:15], s71 offen offset:{384*j}")
    def dw_loads():
        for cb in range(3):
            for j in range(7): dw_load1(cb, j, first=(cb == 0 and j == 0))
    def t_write(raw, loc, u, t0=t0, t1=t1):
        u0, u1 = u
        E.e(f"v_lshl_or_b32 v{u0+0}, v{raw+1}, 16, v{raw+0}")
        E.e(f"v_lshl_or_b32 v{u0+1}, v{raw+3}, 16, v{raw+2}")
        E.e(f"v_lshl_or_b32 v{u0+2}, v{raw+5}, 16, v{raw+4}")
        E.e(f"v_mov_b32 v{u0+3}, v{raw+6}")
        E.e(f"v_lshlrev_b32 v{u1+0}, 16, v{raw+0}")
        E.e(f"v_lshl_or_b32 v{u1+1}, v{raw+2}, 16, v{raw+1}")
        E.e(f"v_lshl_or_b32 v{u1+2}, v{raw+4}, 16, v{raw+3}")
        E.e(f"v_lshl_or_b32 v{u1+3}, v{raw+6}, 16, v{raw+5}")
        E.e(f"v_mul_u32_u24 v{t0}, 15, v{vL16}")
        E.e(f"s_lshl_b32 s{sTmp}, s{sW}, 5")
        E.e(f"s_add_u32 s{sTmp}, s{sTmp}, {loc}")
        E.e(f"v_add_u32 v{t0}, s{sTmp}, v{t0}")
        E.e(f"s_cmp_eq_u32 s{sW}, 7")
        E.e(f"s_cselect_b32 s{sTmp}, 0, 16")
        E.e(f"v_add_u32 v{t1}, s{sTmp}, v{t0}")
        E.ds(f"ds_write_b128 v{t0}, v[{u0}:{u0+3}]")
        E.ds(f"ds_write_b128 v{t1}, v[{u1}:{u1+3}]")

    PW = 60
    if inprep:
        pld = emit_prep_loads(E, name, sW, vN, vG, a, b, c, sTmp, sTmp2, PW, 72)
        srd(E, 80, 76, 77, 256)
        srd(E, 84, 76, 77, 256)
        E.e(f"s_cmp_lt_u32 s2, {nprod}")
        E.e("s_cselect_b32 s86, s86, 0")
        srd(E, 88, 42, 43, 24*SLOT)
        E.e(f"s_cmp_lt_u32 s2, {nprod}")
        E.e("s_cselect_b32 s90, s90, 0")
    xd = {}
    E.e(f"s_mov_b32 s{sTileRow}, s{sR0}")
    E.e(f"s_sub_u32 s{sBase}, s{sTileRow}, 3")
    E.e(f"s_mul_i32 s{sBase}, s{sBase}, 384")
    E.e(f"s_add_u32 s{sBase}, s{sBase}, s{sC0}")
    E.e(f"s_sub_u32 s{sBase}, s{sBase}, 3")
    E.e(f"s_mul_i32 s{sBase}, s{sBase}, 384")
    E.e(f"s_mul_i32 s{sTmp}, s{sW}, 448")
    E.e(f"s_sub_u32 s{sTmp2}, s{sC0}, 3")
    for q in range(7):
        P, r, rem, sl, n_, dx, tt = a, b, c, d_, e_, f_, g_
        E.e(f"v_add_u32 v{P}, s{sTmp}, v{vL}")
        if q: E.e(f"v_add_u32 v{P}, {64*q}, v{P}")
        E.e(f"v_mul_u32_u24 v{r}, 4370, v{P}")
        E.e(f"v_lshrrev_b32 v{r}, 20, v{r}")
        E.e(f"v_mul_u32_u24 v{rem}, 240, v{r}")
        E.e(f"v_sub_u32 v{rem}, v{P}, v{rem}")
        E.e(f"v_lshrrev_b32 v{sl}, 3, v{rem}")
        E.e(f"v_and_b32 v{rem}, 7, v{rem}")
        E.e(f"v_cmp_le_u32 vcc, 15, v{sl}")
        E.e(f"v_mov_b32 v{dx}, 0")
        E.e("s_nop 0")
        E.e(f"v_addc_co_u32 v{dx}, vcc, 0, v{dx}, vcc")
        E.e(f"v_mul_u32_u24 v{n_}, 15, v{dx}")
        E.e(f"v_sub_u32 v{n_}, v{sl}, v{n_}")
        E.e(f"v_lshrrev_b32 v{sl}, 1, v{n_}")
        E.e(f"v_sub_u32 v{rem}, v{rem}, v{sl}")
        E.e(f"v_and_b32 v{rem}, 7, v{rem}")
        E.e(f"v_lshl_add_u32 v{n_}, v{n_}, 1, v{dx}")
        dd = vDS + q
        E.e(f"s_mov_b32 s{sTmp3}, 147456")
        E.e(f"v_mul_lo_u32 v{dd}, v{r}, s{sTmp3}")
        E.e(f"v_mul_u32_u24 v{tt}, 384, v{n_}")
        E.e(f"v_add_u32 v{dd}, v{dd}, v{tt}")
        E.e(f"v_lshl_add_u32 v{dd}, v{rem}, 4, v{dd}")
        E.e(f"v_add_u32 v{tt}, s{sTmp2}, v{n_}")
        E.e(f"v_cmp_gt_u32 vcc, 384, v{tt}")
        E.e(f"s_movk_i32 s{sTmp3}, 3360")
        E.e(f"v_cmp_gt_u32 s[48:49], s{sTmp3}, v{P}")
        E.e("s_nop 1")
        E.e("s_and_b64 vcc, vcc, s[48:49]")
        E.e(f"v_mov_b32 v{tt}, 0x40000000")
        E.e("s_nop 0")
        E.e(f"v_cndmask_b32 v{dd}, v{tt}, v{dd}, vcc")
        E.e(f"s_add_u32 m0, s{sM0w}, {XA + 1024*q}")
        E.e(f"v_add_u32 v{t0}, s{sBase}, v{dd}")
        xd[0] = E.vm(f"buffer_load_dwordx4 v{t0}, s[4:7], 0 offen lds")
    def x_base(s):
        E.e(f"s_sub_u32 s{sBase}, s{sTileRow}, 3")
        E.e(f"s_mul_i32 s{sBase}, s{sBase}, 384")
        E.e(f"s_add_u32 s{sBase}, s{sBase}, s{sC0}")
        E.e(f"s_sub_u32 s{sBase}, s{sBase}, 3")
        E.e(f"s_mul_i32 s{sBase}, s{sBase}, 384")
        if s: E.e(f"s_add_u32 s{sBase}, s{sBase}, {128*s}")
    def x_dma(s, q, loc, tmp=None):
        tv = (t0 if (q & 1) == 0 else t1) if tmp is None else tmp + (q & 1)
        E.e(f"s_add_u32 m0, s{sM0w}, {loc + 1024*q}")
        E.e(f"v_add_u32 v{tv}, s{sBase}, v{vDS+q}")
        xd[s] = E.vm(f"buffer_load_dwordx4 v{tv}, s[4:7], 0 offen{xflag} lds")
    dw_loads()
    x_base(1)
    for q in range(7): x_dma(1, q, XB)
    pst = None
    if inprep:
        E.wait(v=pld)
        for d in range(4): E.e(f"v_lshl_or_b32 v{68+d}, v{PW+2*d+1}, 16, v{PW+2*d}")
        E.e(f"s_mul_i32 s{sTmp}, s51, 24576")
        E.e(f"s_lshl_b32 s{sTmp2}, s52, 10")
        E.e(f"s_add_u32 s{sTmp}, s{sTmp}, s{sTmp2}")
        pst = E.vm(f"buffer_store_dwordx4 v[68:71], v{vL16}, s[88:91], s{sTmp} offen sc1")
    E.e(f"s_mul_i32 s{sTmp}, s{sW}, 53")
    E.e(f"v_add_u32 v{a}, s{sTmp}, v{vL}")
    E.e(f"v_mul_u32_u24 v{b}, 2185, v{a}")
    E.e(f"v_lshrrev_b32 v{b}, 16, v{b}")
    E.e(f"v_mul_u32_u24 v{c}, 30, v{b}")
    E.e(f"v_sub_u32 v{c}, v{a}, v{c}")
    E.e(f"s_mov_b32 s{sTmp3}, 147456")
    E.e(f"v_mul_lo_u32 v{d_}, v{b}, s{sTmp3}")
    E.e(f"v_mul_u32_u24 v{e_}, 384, v{c}")
    E.e(f"v_add_u32 v{d_}, v{d_}, v{e_}")
    E.e(f"s_sub_u32 s{sTmp2}, s{sC0}, 3")
    E.e(f"v_add_u32 v{e_}, s{sTmp2}, v{c}")
    E.e(f"v_cmp_gt_u32 vcc, 384, v{e_}")
    E.e(f"s_movk_i32 s{sTmp3}, 420")
    E.e(f"v_cmp_gt_u32 s[48:49], s{sTmp3}, v{a}")
    E.e("s_nop 1")
    E.e("s_and_b64 vcc, vcc, s[48:49]")
    E.e(f"v_cmp_gt_u32 s[48:49], 53, v{vL}")
    E.e("s_nop 1")
    E.e("s_and_b64 vcc, vcc, s[48:49]")
    E.e(f"v_mov_b32 v{e_}, 0x40000000")
    E.e("s_nop 0")
    E.e(f"v_cndmask_b32 v0, v{e_}, v{d_}, vcc")
    pf0 = None
    if pf and pfstart:
        x_base(2)
        E.e(f"v_add_u32 v{t0}, s{sBase}, v0")
        pf0 = E.vm(f"buffer_load_dword v{RAW2+7 if not stamp else 72}, v{t0}, s[4:7], 0 offen")
    E.e(f"v_lshrrev_b32 v{a}, 1, v{vN}")
    E.e(f"v_add_u32 v{a}, s{sW}, v{a}")
    E.e(f"v_and_b32 v{a}, 7, v{a}")
    E.e(f"v_lshlrev_b32 v{a}, 4, v{a}")
    E.e(f"v_lshl_add_u32 v{a}, v{vN}, 7, v{a}")
    E.e(f"v_mul_u32_u24 v{b}, 3840, v{vG}")
    E.e(f"v_add_u32 v{vXa}, v{a}, v{b}")
    E.e(f"v_add_u32 v{b}, 12, v{vG}")
    E.e(f"v_min_u32 v{b}, 13, v{b}")
    E.e(f"v_mul_u32_u24 v{b}, 3840, v{b}")
    E.e(f"v_add_u32 v{vXa3}, v{a}, v{b}")
    E.e(f"v_lshrrev_b32 v{a}, 1, v{vN}")
    E.e(f"v_and_b32 v{b}, 1, v{vN}")
    E.e(f"v_sub_u32 v{a}, v{vG}, v{a}")
    E.e(f"s_mul_i32 s{sTmp}, s{sW}, 1920")
    E.e(f"s_add_u32 s{sTmp}, s{sTmp}, {T1LOC}")
    for f in range(4):
        E.e(f"v_add_u32 v{c}, {4*f}, v{a}")
        E.e(f"v_lshl_add_u32 v{d_}, v{c}, 1, v{b}")
        E.e(f"v_cmp_gt_u32 vcc, 7, v{c}")
        E.e(f"v_mov_b32 v{e_}, 14")
        E.e("s_nop 0")
        E.e(f"v_cndmask_b32 v{d_}, v{e_}, v{d_}, vcc")
        E.e(f"v_lshlrev_b32 v{d_}, 4, v{d_}")
        E.e(f"v_add_u32 v{vT+f}, s{sTmp}, v{d_}")
    E.e(f"v_mul_u32_u24 v{a}, 12, v{vG}")
    E.e(f"v_add_u32 v{a}, v{a}, v{vN}")
    E.e(f"v_lshrrev_b32 v{b}, 4, v{a}")
    E.e(f"v_and_b32 v{a}, 15, v{a}")
    E.e(f"v_lshlrev_b32 v{a}, 4, v{a}")
    E.e(f"v_lshl_add_u32 v{a}, v{b}, 10, v{a}")
    E.e(f"s_mul_i32 s{sTmp}, s{sHb}, 3072")
    E.e(f"s_lshl_b32 s{sTmp2}, s{sPair}, 8")
    E.e(f"s_add_u32 s{sTmp}, s{sTmp}, s{sTmp2}")
    E.e(f"s_add_u32 s{sTmp}, s{sTmp}, {HLOC}")
    E.e(f"v_add_u32 v{vHw}, s{sTmp}, v{a}")
    E.e(f"v_cmp_gt_u32 s[60:61], 12, v{vN}")
    E.e(f"s_mul_i32 s{sTmp}, s{sHb}, 6144")
    E.e(f"v_add_u32 v{vA0}, s{sTmp}, v{vL16}")
    E.e(f"v_add_u32 v{vA2}, {2*SLOT}, v{vA0}")
    E.e(f"s_mul_i32 s{sTmp}, s{sPair}, 3072")
    E.e(f"s_add_u32 s{sTmp}, s{sTmp}, {GBUF}")
    E.e(f"v_add_u32 v{vGr}, s{sTmp}, v{vL16}")
    E.e(f"s_lshl_b32 s{sTmp2}, s{sHb}, 3")
    E.e(f"v_add_u32 v{vGw}, s{sTmp2}, v{vGr}")
    E.e(f"v_add_u32 v{vDo}, s{sDw}, v{vL16}")
    E.e(f"s_lshr_b32 s{sTmp}, s{sPair}, 1")
    E.e(f"s_add_u32 s46, s{sR0}, s{sTmp}")
    E.e(f"s_and_b32 s{sTmp}, s{sPair}, 1")
    E.e(f"s_add_u32 s47, s{sC0}, s{sTmp}")
    E.e(f"s_mul_i32 s{sTmp3}, s{sHb}, 192")
    for nt in range(3):
        E.e(f"v_add_u32 v{a}, {16*nt}, v{vN}")
        E.e(f"v_mul_u32_u24 v{b}, 43, v{a}")
        E.e(f"v_lshrrev_b32 v{b}, 9, v{b}")
        E.e(f"v_mul_u32_u24 v{c}, 12, v{b}")
        E.e(f"v_sub_u32 v{c}, v{a}, v{c}")
        E.e(f"v_lshl_add_u32 v{b}, v{b}, 1, s46")
        E.e(f"v_lshl_add_u32 v{c}, v{c}, 1, s47")
        E.e(f"v_mul_u32_u24 v{b}, 384, v{b}")
        E.e(f"v_add_u32 v{b}, v{b}, v{c}")
        E.e(f"v_mul_u32_u24 v{b}, 384, v{b}")
        E.e(f"v_lshl_add_u32 v{b}, v{vG}, 4, v{b}")
        E.e(f"v_add_u32 v{vPx+nt}, s{sTmp3}, v{b}")
    E.e(f"v_lshrrev_b32 v{a}, 2, v{vN}")
    E.e(f"v_and_b32 v{b}, 3, v{vN}")
    E.e(f"v_and_b32 v{c}, 1, v{b}")
    E.e(f"v_lshlrev_b32 v{c}, 4, v{c}")
    E.e(f"v_mov_b32 v{d_}, 0x3f80")
    E.e(f"v_lshlrev_b32 v{d_}, v{c}, v{d_}")
    E.e(f"v_cmp_eq_u32 vcc, v{a}, v{vG}")
    E.e(f"v_mov_b32 v{c}, 0")
    E.e("s_nop 0")
    E.e(f"v_cndmask_b32 v{d_}, v{c}, v{d_}, vcc")
    E.e(f"v_cmp_gt_u32 vcc, 2, v{b}")
    E.e("s_nop 1")
    E.e(f"v_cndmask_b32 v{ID+2}, v{c}, v{d_}, vcc")
    E.e(f"v_cndmask_b32 v{ID+3}, v{d_}, v{c}, vcc")
    for i in (0, 1, 4, 5): E.e(f"v_mov_b32 v{ID+i}, 0")
    E.wait(v=dwl[2])
    t_write(RAW0, T0LOC, (44, 48))
    t_write(RAW1, T1LOC, (52, 56))
    E.e("s_mov_b32 s95, 12288")
    E.e(f"s_mov_b32 s{sRound}, 0")
    E.e(f"s_mov_b32 s{sRowP}, 0")
    E.e(f"s_mov_b32 s{sRowC}, 0")
    E.wait(v=xd[0] if not (stamp and pf0) else max(xd[0], pf0))
    E.wait_all_lds(force=True)
    E.e("s_barrier")
    if pf2:
        x_base(2)
        E.e(f"v_add_u32 v{t0}, s{sBase}, v0")
        E.vm(f"buffer_load_dword v{CT[3]}, v{t0}, s[4:7], 0 offen")
    extra = E.nv - xd[1]
    E.nv -= extra; E.dv = min(E.dv, E.nv)
    st("prologue")

    dma = {}; rd = {}; gi = {}; resid = {}
    RL, RN = 3, 3
    def out_store(q):
        u, nt = divmod(q, 3); o = Oreg(2*u, nt)
        E.vm(f"buffer_store_dwordx4 v[{o}:{o+3}], v{vPx+nt}, s[20:23], s{sRowP} offen offset:{u*64}{stflag}")

    def conv_step(s, side=()):
        side = list(side)
        loc = XB if s == 1 else XA
        toff = 0 if s == 1 else T0LOC - T1LOC
        E.c(f"==== conv step {s}")
        E.e(f"v_add_u32 v{t0}, {loc}, v{vXa}")
        E.e(f"v_add_u32 v{t1}, {loc}, v{vXa3}")
        def rd_eo(f):
            e4, o4 = EOq[2*(f & 1)], EOq[2*(f & 1)+1]
            adr = t1 if f == 3 else t0
            off = 0 if f == 3 else f*15360
            E.ds(f"ds_read_b128 v[{e4}:{e4+3}], v{adr} offset:{off}")
            return E.ds(f"ds_read_b128 v[{o4}:{o4+3}], v{adr} offset:{off+1920}")
        def rd_t(idx):
            f, c_ = divmod(idx, 8); r = Tq[idx & 3]
            return E.ds(f"ds_read_b128 v[{r}:{r+3}], v{vT+f} offset:{toff + c_*240}")
        eo = {0: rd_eo(0)}; tt = {}
        for i in range(3): tt[i] = rd_t(i)
        eo[1] = rd_eo(1)
        def mf(f, c_):
            idx = f*8 + c_
            E.wait(l=tt[idx])
            acc = ACC[8*s + c_]
            E.e(mfma(acc, Tq[idx & 3], Bq[c_], None if f == 0 else acc))
            if idx + 3 < 32: tt[idx+3] = rd_t(idx+3)
            if side and c_ != 6 and idx % sp == 0: side.pop(0)()
        for f in range(4):
            e4, o4 = EOq[2*(f & 1)], EOq[2*(f & 1)+1]
            if cprio: E.e(f"s_setprio {3-f}")
            E.wait(l=eo[f])
            for cp in range(4):
                E.e(f"v_perm_b32 v{Bq[2*cp]}, v{o4+cp}, v{e4+cp}, s{sSelLo}")
                E.e(f"v_perm_b32 v{Bq[2*cp+1]}, v{o4+cp}, v{e4+cp}, s{sSelHi}")
            if f + 2 < 4: eo[f+2] = rd_eo(f+2)
            for c_ in range(8):
                bb = Bq[c_]
                for dd in (1, 2, 3):
                    E.e(f"v_mov_b32_dpp v{bb+dd}, v{bb} row_shl:{dd} row_mask:0xf bank_mask:0xf bound_ctrl:1")
                if c_ > 0: mf(f, c_-1)
            E.e("s_nop 1")
            mf(f, 7)
        while side: side.pop(0)()

    def poll():
        if not inprep: return
        lp = f"{name}_poll"
        E.e(f"s_cmp_lg_u32 s{sRound}, 0")
        E.e(f"s_cbranch_scc1 {lp}_done")
        E.e(f"s_cmp_lg_u32 s{sW}, 0")
        E.e(f"s_cbranch_scc1 {lp}_bar")
        E.e(f"s_mov_b32 s{sTmp2}, 0")
        E.e(f"v_mov_b32 v{t0}, 0")
        E.label(f"{lp}")
        E.e(f"buffer_load_dword v{t1}, v{t0}, s[80:83], 0 offen sc1")
        E.e("s_waitcnt vmcnt(0)")
        E.e(f"v_readfirstlane_b32 s{sTmp}, v{t1}")
        E.e(f"s_add_u32 s{sTmp2}, s{sTmp2}, 1")
        E.e(f"s_cmp_ge_u32 s{sTmp2}, 0x40000")
        E.e(f"s_cbranch_scc1 {lp}_acq")
        E.e(f"s_cmp_lt_u32 s{sTmp}, {nprod}")
        E.e(f"s_cbranch_scc1 {lp}")
        E.label(f"{lp}_acq")
        if inv:
            E.e("buffer_inv sc1")
            E.e("s_waitcnt vmcnt(0)")
        E.label(f"{lp}_bar")
        E.e("s_barrier")
        E.label(f"{lp}_done")

    def layernorm():
        E.c("==== layernorm")
        ST = CT[0]; ST2 = CT[1]; RHO = CT[2]; BETA = CT[3]
        wl = []
        if wlate:
            poll()
            wl = [(J, i) for J in (-1, 0, 1) for i in range(3)]
        E.e("s_nop 7")
        if pkln:
            for h in (0, 2):
                E.e(f"v_pk_add_f32 v[{ST+h}:{ST+h+1}], v[{ACC[0]+h}:{ACC[0]+h+1}], v[{ACC[1]+h}:{ACC[1]+h+1}]")
                E.e(f"v_pk_mul_f32 v[{ST2+h}:{ST2+h+1}], v[{ACC[0]+h}:{ACC[0]+h+1}], v[{ACC[0]+h}:{ACC[0]+h+1}]")
            for ch in range(1, 24):
                for h in (0, 2):
                    x_ = f"v[{ACC[ch]+h}:{ACC[ch]+h+1}]"
                    if ch > 1: E.e(f"v_pk_add_f32 v[{ST+h}:{ST+h+1}], v[{ST+h}:{ST+h+1}], {x_}")
                    E.e(f"v_pk_fma_f32 v[{ST2+h}:{ST2+h+1}], {x_}, {x_}, v[{ST2+h}:{ST2+h+1}]")
                if wl and ch % 2 == 0: issue_w(*wl.pop(0))
        else:
            for r in range(4):
                E.e(f"v_mov_b32 v{ST+r}, v{ACC[0]+r}")
                E.e(f"v_mul_f32 v{ST2+r}, v{ACC[0]+r}, v{ACC[0]+r}")
            for ch in range(1, 24):
                for r in range(4):
                    x_ = ACC[ch] + r
                    E.e(f"v_add_f32 v{ST+r}, v{ST+r}, v{x_}")
                    E.e(f"v_fmac_f32 v{ST2+r}, v{x_}, v{x_}")
        while wl: issue_w(*wl.pop(0))
        if halfw:
            E.e(f"v_lshrrev_b32 v{t0}, 8, v{vL16}")
            E.e(f"v_mul_u32_u24 v{t0}, 192, v{t0}")
            E.e(f"v_and_b32 v{t1}, 0xf0, v{vL16}")
            E.e(f"v_add3_u32 v{t0}, v{t0}, v{t1}, s95")
            E.e(f"s_mul_i32 s{sTmp}, s{sW}, 1536")
            E.e(f"v_add_u32 v{t1}, s{sTmp}, v{t0}")
            E.e("s_mov_b64 s[62:63], exec")
            E.e("s_mov_b64 exec, s[60:61]")
            E.ds(f"ds_write_b128 v{t1}, v[{ST}:{ST+3}]")
            E.ds(f"ds_write_b128 v{t1}, v[{ST2}:{ST2+3}] offset:768")
            E.e("s_mov_b64 exec, s[62:63]")
            sstride, soff = 1536, 768
        else:
            E.e(f"v_add_u32 v{t0}, {STLOC}, v{vL16}")
            E.e(f"s_lshl_b32 s{sTmp}, s{sW}, 11")
            E.e(f"v_add_u32 v{t1}, s{sTmp}, v{t0}")
            E.wait_all_lds(force=True)
            if fine: st("ln stats")
            E.e("s_barrier")
            if fine: st("BA")
            E.ds(f"ds_write_b128 v{t1}, v[{ST}:{ST+3}]")
            E.ds(f"ds_write_b128 v{t1}, v[{ST2}:{ST2+3}] offset:1024")
            sstride, soff = 2048, 1024
        E.wait_all_lds(force=True)
        E.e("s_barrier")
        if fine: st("BB")
        RB = Bq + EOq + Tq
        for w in range(8):
            E.ds(f"ds_read_b128 v[{RB[2*w]}:{RB[2*w]+3}], v{t0} offset:{sstride*w}")
            E.ds(f"ds_read_b128 v[{RB[2*w+1]}:{RB[2*w+1]+3}], v{t0} offset:{sstride*w+soff}")
        base_id = E.nl - 16
        for w in range(1, 8):
            E.wait(l=base_id + 2*w + 2)
            for h in (0, 2):
                for k, dst in enumerate((ST, ST2)):
                    src = RB[2*w + k]
                    s0 = RB[k] if w == 1 else dst
                    E.e(f"v_pk_add_f32 v[{dst+h}:{dst+h+1}], v[{s0+h}:{s0+h+1}], v[{src+h}:{src+h+1}]")
        E.e(f"v_mov_b32 v{RHO}, {f2u(1.0/192):#x}")
        E.e(f"v_mov_b32 v{RHO+1}, {f2u(1.0/192):#x}")
        E.e(f"v_mov_b32 v{RHO+2}, {f2u(1e-5):#x}")
        for h in (0, 2):
            E.e(f"v_pk_mul_f32 v[{ST+h}:{ST+h+1}], v[{ST+h}:{ST+h+1}], v[{RHO}:{RHO+1}]")
            E.e(f"v_pk_mul_f32 v[{ST2+h}:{ST2+h+1}], v[{ST2+h}:{ST2+h+1}], v[{RHO}:{RHO+1}]")
        for h in (0, 2):
            E.e(f"v_pk_fma_f32 v[{ST2+h}:{ST2+h+1}], v[{ST+h}:{ST+h+1}], v[{ST+h}:{ST+h+1}], v[{ST2+h}:{ST2+h+1}] neg_lo:[1,0,0] neg_hi:[1,0,0]")
        for r in range(4): E.e(f"v_max_f32 v{ST2+r}, 0, v{ST2+r}")
        for r in range(4): E.e(f"v_add_f32 v{ST2+r}, v{RHO+2}, v{ST2+r}")
        for r in range(4): E.e(f"v_rsq_f32 v{RHO+r}, v{ST2+r}")
        E.e("s_nop 0")
        for r in range(4): E.e(f"v_mul_f32 v{RHO+r}, s{sS}, v{RHO+r}")
        for h in (0, 2):
            E.e(f"v_pk_mul_f32 v[{BETA+h}:{BETA+h+1}], v[{ST+h}:{ST+h+1}], v[{RHO+h}:{RHO+h+1}]")
        if fine: st("ln rho")
        E.e(f"v_add_u32 v{t0}, 32768, v{vHw}")
        E.e("s_mov_b64 s[62:63], exec")
        E.e("s_mov_b64 exec, s[60:61]")
        ta, tb = EOq[0], EOq[0] + 1
        for cg in range(3):
            if pkln and (normil or cg == 0):
                for ch in (range(8*cg, 8*cg + 8) if normil else range(24)):
                    for h in (0, 2):
                        x_ = f"v[{ACC[ch]+h}:{ACC[ch]+h+1}]"
                        E.e(f"v_pk_fma_f32 {x_}, {x_}, v[{RHO+h}:{RHO+h+1}], v[{BETA+h}:{BETA+h+1}] neg_lo:[0,0,1] neg_hi:[0,0,1]")
            for r in range(4):
                o = Bq[(cg*4 + r) & 7]
                for cp in range(4):
                    a0 = ACC[8*cg + 2*cp] + r; a1 = ACC[8*cg + 2*cp + 1] + r
                    if pkln:
                        E.e(f"v_cvt_pk_bf16_f32 v{o+cp}, v{a0}, v{a1}")
                    else:
                        E.e(f"v_fma_f32 v{ta}, v{a0}, v{RHO+r}, -v{BETA+r}")
                        E.e(f"v_fma_f32 v{tb}, v{a1}, v{RHO+r}, -v{BETA+r}")
                        E.e(f"v_cvt_pk_bf16_f32 v{o+cp}, v{ta}, v{tb}")
                off = r*18432 + cg*6144
                adr = vHw
                if off >= 32768: adr, off = t0, off - 32768
                E.ds(f"ds_write_b128 v{adr}, v[{o}:{o+3}] offset:{off}")
        E.e("s_mov_b64 exec, s[62:63]")

    wuid = [0]
    def issue_w(J, i):
        j = J % 24; slot = (J % NS)*SLOT
        skip = None
        if halfw and J in (-1, 0): skip = 1
        if halfw and J in (23, 24): skip = 0
        if skip is not None:
            lbl = f"{name}_ws{J % 100}_{i}".replace("-", "m")
            E.e(f"s_cmp_eq_u32 s{sHb}, {skip}")
            E.e(f"s_cbranch_scc1 {lbl}")
        E.e(f"s_add_u32 m0, s{sDw}, {slot + i*1024}")
        E.e(f"s_mov_b32 s{sSo}, {j*SLOT + i*1024}")
        dma[J] = E.vm(f"buffer_load_dwordx4 v{vDo}, s[8:11], s{sSo} offen lds", skippable=skip is not None)
        if skip is not None: E.label(lbl)
    def a_read(J, f):
        slot = J % NS
        base, off = (vA2, (slot-2)*SLOT) if slot >= 2 else (vA0, slot*SLOT)
        o = off + (f*1024 if f < 6 else 12288 + (f-6)*1024)
        r = AR + 4*(((J+1)*12 + f) & 3)
        rd[(J, f)] = E.ds(f"ds_read_b128 v[{r}:{r+3}], v{base} offset:{o}")
    def gelu_half(c_, p, hf2):
        nt, hf = divmod(p, 2)
        uA = S + 12*(c_ & 1) + 4*nt + 2*hf; uB = uA + 1
        ta = TT + 2*(p & 1); tb = ta + 1
        gd = GT + 2*(nt & 1) + hf
        if f16:
            if hf2 == 0:
                return [f"v_cvt_pk_f16_f32 v{ta}, v{uA}, v{uB}",
                        f"v_pk_fma_f16 v{tb}, v{ta}, v{ta}, s{sAh}",
                        f"v_pk_mul_f16 v{tb}, v{tb}, v{ta} neg_lo:[1,0] neg_hi:[1,0]",
                        f"v_exp_f16_sdwa v{ta}, v{tb} dst_sel:WORD_0 dst_unused:UNUSED_PAD src0_sel:WORD_0",
                        f"v_exp_f16_sdwa v{ta}, v{tb} dst_sel:WORD_1 dst_unused:UNUSED_PRESERVE src0_sel:WORD_1"]
            return [f"v_pk_fma_f16 v{ta}, v{ta}, s{sSh}, s{sSh}",
                    f"v_rcp_f16_sdwa v{tb}, v{ta} dst_sel:WORD_0 dst_unused:UNUSED_PAD src0_sel:WORD_0",
                    f"v_rcp_f16_sdwa v{tb}, v{ta} dst_sel:WORD_1 dst_unused:UNUSED_PRESERVE src0_sel:WORD_1",
                    f"v_fma_mix_f32 v{ta}, v{uA}, v{tb}, 0 op_sel_hi:[0,1,0]",
                    f"v_fma_mix_f32 v{tb}, v{uB}, v{tb}, 0 op_sel:[0,1,0] op_sel_hi:[0,1,0]",
                    f"v_cvt_pk_bf16_f32 v{gd}, v{ta}, v{tb}"]
        if hf2 == 0:
            return [f"v_fma_f32 v{ta}, -v{uA}, v{uA}, s{sNegA}", f"v_fma_f32 v{tb}, -v{uB}, v{uB}, s{sNegA}",
                    f"v_mul_f32 v{ta}, v{ta}, v{uA}", f"v_mul_f32 v{tb}, v{tb}, v{uB}",
                    f"v_exp_f32 v{ta}, v{ta}", f"v_exp_f32 v{tb}, v{tb}"]
        return [f"v_fma_f32 v{ta}, v{ta}, s{sS}, s{sS}", f"v_fma_f32 v{tb}, v{tb}, s{sS}, s{sS}",
                f"v_rcp_f32 v{ta}, v{ta}", f"v_rcp_f32 v{tb}, v{tb}",
                f"v_mul_f32 v{ta}, v{uA}, v{ta}", f"v_mul_f32 v{tb}, v{uB}, v{tb}",
                f"v_cvt_pk_bf16_f32 v{gd}, v{ta}, v{tb}"]

    def stage(J):
        g1 = 0 <= J + 1 <= 23; g2 = 0 <= J - 1 <= 23
        last = J == 24
        E.c(f"---- stage {J}")
        def needs_frag(JJ, f): return (0 <= JJ + 1 <= 23) if f < 6 else (0 <= JJ - 1 <= 23)
        for g in range(12):
            gg = (g - 8) % 12
            c_ = (J + 1) if g >= 8 else J
            p, hf2 = divmod(gg, 2)
            dog = 0 <= c_ <= 23
            ops = gelu_half(c_, p, hf2) if dog else []
            if f16 and ops: segs = [ops[0:2], ops[2:3], ops[3:]] if hf2 == 1 else [ops[0:2], ops[2:4], ops[4:]]
            else: segs = [ops[0:2], ops[2:4], ops[4:]]
            ar = AR + 4*(((J+1)*12 + g) & 3)
            domf = g1 if g < 6 else g2
            if psched and g in psched and g != 9 and not last: E.e(f"s_setprio {psched[g]}")
            if J == -1 and g == 8: E.e("s_nop 7")
            if domf:
                need = rd[(J, g)]
                if wait2 and g % 2 == 0 and (J, g+1) in rd and needs_frag(J, g+1): need = max(need, rd[(J, g+1)])
                if g == 6: need = max(need, gi[2])
                if J == -1 and g < 6: need = max(need, xrd[3*g+2])
                E.wait(l=need)
            for nt in range(3):
                if domf:
                    if g < 6:
                        dd = S + 12*((J+1) & 1) + 4*nt
                        E.e(mfma(dd, ar, X + (g*3+nt)*4, None if g == 0 else dd))
                    else:
                        o = Oreg(g-6, nt)
                        E.e(mfma(o, ar, GI + 4*nt, None if J == 1 else o))
                elif f16 and ops and nt > 0: E.e("s_nop 0")
                if nt == 0:
                    if g == 9:
                        if not last and (J + 1) <= 24 and (J+1) in dma: E.wait(v=dma[J+1])
                        E.wait_all_lds(force=True)
                        E.e("s_barrier")
                        if psched and 9 in psched and not last: E.e(f"s_setprio {psched[9]}")
                        if last: x_base(1)
                    if g + D < 12:
                        if needs_frag(J, g + D) and (J, g + D) not in rd: a_read(J, g + D)
                    elif not last:
                        f2 = g + D - 12
                        if needs_frag(J+1, f2): a_read(J+1, f2)
                    if g < 3 and g2:
                        gi[g] = E.ds(f"ds_read_b128 v[{GI+4*g}:{GI+4*g+3}], v{vGr} offset:{((J-1) & 1)*12288 + g*1024}")
                for o_ in segs[nt]: E.e(o_)
            if dog and hf2 == 1 and (p & 1) == 1:
                nt = p >> 1; gd = GT + 2*(nt & 1)
                E.ds(f"ds_write_b64 v{vGw}, v[{gd}:{gd+1}] offset:{(c_ & 1)*12288 + nt*1024}")
            if last:
                if g >= 9:
                    for q in {9: (0, 1, 2), 10: (3, 4), 11: (5, 6)}[g]: x_dma(1, q, XB)
                if g == 11: prep_next_c(1)
                continue
            for i, gq in enumerate(wsite):
                if g == gq:
                    JJ = J + NS if gq >= 9 else J + NS - 1
                    if 2 <= JJ <= 24: issue_w(JJ, i)
            if g == xsite and 3 <= J < 10:
                if J == 3: x_base(0)
                x_dma(0, J - 3, XA)
            if g == rsite and 2 <= J < 11:
                q = J - 2; u, nt = divmod(q, 3); r = RS + 4*(q % RN)
                resid[q] = E.vm(f"buffer_load_dwordx4 v[{r}:{r+3}], v{vPx+nt}, s[16:19], s{sRowC} offen offset:{u*64}{rflag}")
            if g == rsite - 1 and 2 + RL <= J < 11 + RL:
                q = J - 2 - RL; u, nt = divmod(q, 3)
                E.wait(v=resid[q])
                for p2 in range(2):
                    o = Oreg(2*u + p2, nt)
                    E.e(mfma(o, ID + (2 if p2 == 0 else 0), RS + 4*(q % RN), o))
            if pf and g == xsite and J in pf:
                sp = 1 + pf.index(J)
                x_base(sp)
                E.e(f"v_add_u32 v{t0}, s{sBase}, v0")
                E.vm(f"buffer_load_dword v{RAW2}, v{t0}, s[4:7], 0 offen")
            if J == 19 and 1 <= g <= 7: dw_load1(2, g - 1, first=(g == 1))
            if J == 22 and g >= 6: dw_load1(0, g - 6, first=(g == 6))
            if J == 23 and g <= 7:
                if g == 0: dw_load1(0, 6)
                else: dw_load1(1, g - 1)
            if J == 0 and g == 6:
                E.e(f"s_add_u32 s{sTileRow}, s{sTileRow}, {RSTEP}")
                E.e(f"s_cmp_eq_u32 s{sRound}, {NROUND-1}")
                E.e(f"s_cselect_b32 s6, 0, s6")
                E.e(f"s_mov_b32 s22, {XBYTES}")

    def prep_next_c(part):
        if part == 0:
            x_base(1)
            for q in range(7): x_dma(1, q, XB)
        else:
            E.wait(v=dwl[1])
            t_write(RAW0, T0LOC, (S, S+4))
            t_write(RAW1, T1LOC, (S+8, S+12))

    xrd = {}
    state = {"round0": None}
    def round_body():
        conv_step(0, [lambda q=q: out_store(q) for q in range(3)])
        if fine: st("c0 compute")
        E.wait(v=xd[1]); E.wait_all_lds(force=True); E.e("s_barrier")
        if fine: st("B0")
        DT = CT[4]
        def signal():
            lbl = f"{name}_nosig"
            E.e(f"s_cmp_lg_u32 s{sRound}, 0")
            E.e(f"s_cbranch_scc1 {lbl}")
            E.e(f"s_cmp_eq_u32 s{sW}, 0")
            E.e(f"s_cselect_b32 s86, s86, 0")
            E.e(f"v_mov_b32 v{DT+2}, 0")
            E.e(f"v_mov_b32 v{DT+3}, 1")
            E.e("s_mov_b64 s[62:63], exec")
            E.e("s_mov_b64 exec, 1")
            E.vm(f"buffer_atomic_add v{DT+3}, v{DT+2}, s[84:87], 0 offen sc1", skippable=True)
            E.e("s_mov_b64 exec, s[62:63]")
            E.label(lbl)
        side = []
        if inprep: side.append(signal)
        x_base(2)
        side += [lambda q=q: x_dma(2, q, XA, tmp=DT) for q in range(7)]
        side += [lambda: t_write(RAW2, T0LOC, (CT[0], CT[1]), DT+2, DT+3)]
        side += [lambda q=q: out_store(q) for q in range(3, 6)]
        st("conv0", dyn=True)
        conv_step(1, side)
        if fine: st("c1 compute")
        E.wait(v=xd[2]); E.wait_all_lds(force=True); E.e("s_barrier")
        if fine: st("B1")
        side = []
        if not wlate:
            poll()
            side = [lambda J=J, i=i: issue_w(J, i) for J in (-1, 0, 1) for i in range(3)]
        side += [lambda q=q: out_store(q) for q in range(6, 9)]
        st("conv1", dyn=True)
        conv_step(2, side)
        st("conv2", dyn=True)
        layernorm()
        if fine: st("ln hwrite")
        E.wait(v=dma[1]); E.wait_all_lds(force=True); E.e("s_barrier")
        if fine: st("BD")
        E.e(f"s_mul_i32 s{sTmp}, s{sPair}, 18432")
        E.e(f"s_add_u32 s{sTmp}, s{sTmp}, {HLOC}")
        E.e(f"v_add_u32 v{t0}, s{sTmp}, v{vL16}")
        for f in range(D): a_read(-1, f)
        for fi in range(18):
            xrd[fi] = E.ds(f"ds_read_b128 v[{X+4*fi}:{X+4*fi+3}], v{t0} offset:{fi*1024}")
        st("ln", dyn=True)
        for J in range(-1, 25):
            stage(J)
            if fine and J in (-1, 0, 1, 2, 12, 22, 23): st(f"stage {J}")
        if fine: st("stage 24")
        E.e("s_setprio 0")
        E.e("s_nop 7")
        for q in range(9):
            u, nt = divmod(q, 3); o = Oreg(2*u, nt)
            for dd in range(4): E.e(f"v_cvt_pk_bf16_f32 v{o+dd}, v{o+2*dd}, v{o+2*dd+1}")
        E.e(f"s_mov_b32 s{sRowP}, s{sRowC}")
        E.e(f"s_add_u32 s{sRowC}, s{sRowC}, {RSTEP*147456}")
        E.wait_all_lds(force=True)
        E.e("s_barrier")
        st("mlp", dyn=True)
        rd.clear(); gi.clear(); dma.clear()

    nst = len(stamps)
    E.L.append(".p2align 6")
    E.label(f"{name}_L")
    b0 = len(E.L)
    round_body()
    body = list(E.L[b0:])
    E.e(f"s_add_u32 s{sRound}, s{sRound}, 1")
    E.e(f"s_cmp_lt_u32 s{sRound}, {NROUND}")
    E.e(f"s_cbranch_scc1 {name}_L")
    if not stamp:
        save = len(E.L); sv = (E.nl, E.dl, E.nv, E.dv)
        round_body()
        b2 = E.L[save:]
        if b2 != body:
            for x1, x2 in zip(body, b2):
                if x1 != x2: print("DIFF", x1, "|", x2); break
        assert b2 == body, "not steady"
        del E.L[save:]
    for q in range(9): out_store(q)
    if stamp:
        E.e("s_waitcnt vmcnt(0)")
        st("done")
        E.e(f"s_add_u32 s46, s42, {240<<20}")
        E.e(f"s_addc_u32 s47, s43, 0")
        srd(E, 48, 46, 47, 1 << 20)
        E.e(f"s_lshl_b32 s{sTmp}, s2, 3")
        E.e(f"s_add_u32 s{sTmp}, s{sTmp}, s{sW}")
        E.e(f"s_lshl_b32 s{sTmp}, s{sTmp}, 8")
        E.e(f"v_lshrrev_b32 v{t0}, 2, v{vL16}")
        E.e(f"buffer_store_dword v{STAMP}, v{t0}, s[48:51], s{sTmp} offen")
        if dbgout:
            E.e(f"s_cmp_lg_u32 s2, {dbgout}")
            E.e(f"s_cbranch_scc1 {name}_end")
            E.e(f"s_cmp_lg_u32 s{sW}, 0")
            E.e(f"s_cbranch_scc1 {name}_end")
            E.e(f"v_readlane_b32 s{sTmp}, v{STAMP}, 32")
            E.e("s_nop 3")
            E.e(f"v_subrev_u32 v{t1}, s{sTmp}, v{STAMP}")
            E.e(f"v_lshrrev_b32 v{t0}, 2, v{vL16}")
            E.e(f"v_subrev_u32 v{t0}, {(32+dbgshift)*4 - 4}, v{t0}")
            E.e(f"buffer_store_dword v{t1}, v{t0}, s[80:83], 0 offen")
        global STAMPS; STAMPS = stamps
    E.label(f"{name}_end")
    E.e("s_endpgm")
    return header(name) + E.text() + descriptor(name, 256)

def gen_k0(name):
    E = Em()
    vL, vN, vG, vL16, t0, t1, t2 = 1, 2, 3, 4, 5, 6, 7
    sW, sTmp, sTmp2, sGw, sJ, sQ, sC2, sPb = 3, 24, 25, 50, 51, 52, 53, 58
    E.e("s_cmp_ge_u32 s2, 72")
    E.e(f"s_cbranch_scc1 {name}_end")
    E.e("s_load_dwordx4 s[40:43], s[0:1], 16")
    E.e("s_load_dwordx2 s[44:45], s[0:1], 48")
    E.e(f"v_lshrrev_b32 v{t0}, 6, v0")
    E.e(f"v_and_b32 v{vL}, 63, v0")
    E.e(f"v_readfirstlane_b32 s{sW}, v{t0}")
    E.e(f"v_and_b32 v{vN}, 15, v{vL}")
    E.e(f"v_lshrrev_b32 v{vG}, 4, v{vL}")
    E.e(f"v_lshlrev_b32 v{vL16}, 4, v{vL}")
    E.e("s_waitcnt lgkmcnt(0)")
    srd(E, 20, 44, 45, 24*24576)
    emit_prep_loads(E, name, sW, vN, vG, t0, t1, t2, sTmp, sTmp2, 8, 40)
    E.e("s_waitcnt vmcnt(0)")
    for d in range(4): E.e(f"v_lshl_or_b32 v{16+d}, v{8+2*d+1}, 16, v{8+2*d}")
    E.e(f"s_mul_i32 s{sTmp}, s51, 24576")
    E.e(f"s_lshl_b32 s{sTmp2}, s52, 10")
    E.e(f"s_add_u32 s{sTmp}, s{sTmp}, s{sTmp2}")
    E.e(f"buffer_store_dwordx4 v[16:19], v{vL16}, s[20:23], s{sTmp} offen")
    E.label(f"{name}_end")
    E.e("s_endpgm")
    return header(name) + E.text() + descriptor(name, 32)

def emit_prep_loads(E, name, sW, vN, vG, t0, t1, t2, sTmp, sTmp2, PW, wptr):
    lw2 = f"{name}_pw2"; lst = f"{name}_pst"
    sGw, sJ, sQ, sC2, sPb = 50, 51, 52, 53, 68
    E.e(f"s_lshl_b32 s{sGw}, s2, 3")
    E.e(f"s_add_u32 s{sGw}, s{sGw}, s{sW}")
    E.e(f"s_mul_i32 s{sJ}, s{sGw}, 2731")
    E.e(f"s_lshr_b32 s{sJ}, s{sJ}, 16")
    E.e(f"s_mul_i32 s{sTmp}, s{sJ}, 24")
    E.e(f"s_sub_u32 s{sQ}, s{sGw}, s{sTmp}")
    E.e(f"s_cmp_ge_u32 s{sQ}, 12")
    E.e(f"s_cbranch_scc1 {lw2}")
    srd(E, 64, wptr, wptr+1, 192*768*2)
    E.e(f"s_add_u32 s{sC2}, s{sJ}, 1")
    E.e(f"s_cmp_eq_u32 s{sC2}, 24")
    E.e(f"s_cselect_b32 s{sC2}, 0, s{sC2}")
    E.e(f"s_cmp_ge_u32 s{sQ}, 6")
    E.e(f"s_cselect_b32 s{sTmp}, 1, 0")
    E.e(f"s_mul_i32 s{sTmp2}, s{sTmp}, 6")
    E.e(f"s_sub_u32 s{sTmp2}, s{sQ}, s{sTmp2}")
    E.e(f"s_mul_i32 s{sTmp2}, s{sTmp2}, 49152")
    E.e(f"s_lshl_b32 s{sTmp}, s{sTmp}, 5")
    E.e(f"s_add_u32 s{sTmp2}, s{sTmp2}, s{sTmp}")
    E.e(f"s_lshl_b32 s{sTmp}, s{sC2}, 6")
    E.e(f"s_add_u32 s{sPb}, s{sTmp2}, s{sTmp}")
    E.e(f"v_mul_u32_u24 v{t0}, 12288, v{vG}")
    E.e(f"v_lshl_add_u32 v{t0}, v{vN}, 1, v{t0}")
    E.e("s_mov_b32 s69, 1536")
    E.e("s_mov_b32 s70, 1536")
    E.e(f"s_branch {lst}")
    E.label(lw2)
    srd(E, 64, wptr+2, wptr+3, 192*768*2)
    E.e(f"s_add_u32 s{sC2}, s{sJ}, 23")
    E.e(f"s_cmp_ge_u32 s{sC2}, 24")
    E.e(f"s_cselect_b32 s{sTmp}, 24, 0")
    E.e(f"s_sub_u32 s{sC2}, s{sC2}, s{sTmp}")
    E.e(f"s_sub_u32 s{sTmp}, s{sQ}, 12")
    E.e(f"s_lshr_b32 s{sTmp2}, s{sTmp}, 1")
    E.e(f"s_lshl_b32 s{sTmp2}, s{sTmp2}, 6")
    E.e(f"s_and_b32 s{sTmp}, s{sTmp}, 1")
    E.e(f"s_lshl_b32 s{sTmp}, s{sTmp}, 3")
    E.e(f"s_add_u32 s{sTmp2}, s{sTmp2}, s{sTmp}")
    E.e(f"s_mul_i32 s{sTmp}, s{sC2}, 12288")
    E.e(f"s_add_u32 s{sPb}, s{sTmp2}, s{sTmp}")
    E.e(f"v_lshrrev_b32 v{t1}, 2, v{vN}")
    E.e(f"v_and_b32 v{t2}, 3, v{vN}")
    E.e(f"v_lshl_add_u32 v{t1}, v{t1}, 3, v{t2}")
    E.e(f"v_mul_u32_u24 v{t0}, 1536, v{vG}")
    E.e(f"v_lshl_add_u32 v{t0}, v{t1}, 1, v{t0}")
    E.e("s_mov_b32 s69, 384")
    E.e(f"s_mov_b32 s70, {6144 - 3*384}")
    E.label(lst)
    E.e(f"s_cmp_lt_u32 s{sGw}, 576")
    E.e("s_cselect_b32 s66, s66, 0")
    last = None
    for e in range(8):
        last = E.vm(f"buffer_load_ushort v{PW+e}, v{t0}, s[64:67], s{sPb} offen")
        if e < 7: E.e(f"s_add_u32 s{sPb}, s{sPb}, s{70 if e == 3 else 69}")
    return last

if __name__ == "__main__":
    print(gen_f1("f1_kernel"))
```

```python
from em import *
import math
A_ = 2*math.sqrt(2/math.pi)*math.log2(math.e); B_ = A_*0.044715; S_ = B_**(1/3)
XBYTES = 384*384*384
SLOT = 24576; NS = 3
GBUF = NS*SLOT
PBUF = GBUF + 24576
XA, XB = PBUF, 0
T1LOC, T0LOC = 57344, GBUF
HLOC = GBUF
STLOC = 147456
F1_LDS = 163840
NROUND = 3
D = 3

def mfma(d, a, b, c=None):
    src = "0" if c is None else f"v[{c}:{c+3}]"
    return f"v_mfma_f32_16x16x32_bf16 v[{d}:{d+3}], v[{a}:{a+3}], v[{b}:{b+3}], {src}"

def gen_f1(name, stamp=False, f16=True, psched={9: 3, 4: 2, 7: 1, 8: 0}, wsite=(10, 0, 2), rsite=4, xsite=3, wait2=True, strip=(), inprep=True, pkln=True, pf=(14, 17), nprod=72, fine=False, sp=3, cprio=True, dbgout=False, dbgshift=0, stflag=' sc1', xflag='', rflag='', halfw=True, wlate=True, pfstart=False, inv=False, band=True, pf2=False, normil=False, m0once=True, wpf=True):
    E = Em()
    sW, sPair, sHb = 3, 33, 35
    sTmp, sTmp2, sTmp3 = 24, 25, 28
    sSelLo, sSelHi = 26, 27
    sNegA, sS, sAh, sSh = 29, 30, 92, 93
    sR0, sC0 = 44, 45
    sBase = 31
    sTileRow = 32
    sRowP, sRowC, sRound = 54, 55, 56
    sDw, sSo, sM0w, sDwo = 57, 34, 58, 59
    vL16 = 1; vDS = 2; vXa, vXa3 = 9, 10; vT = 11; vHw = 15
    vA0, vA2, vGr, vGw, vDo = 16, 17, 18, 19, 20
    vPx = 21; ID = 24; t0, t1 = 30, 31
    TT, GT, RS, AR, GI, S, X, O = 32, 36, 40, 52, 68, 80, 104, 176
    RAW2 = 248
    STAMP = 255
    RAW0, RAW1 = X, X + 8
    def Oreg(i, nt): return O + (((i >> 1)*3 + nt)*2 + (i & 1))*4
    packed = [Oreg(2*u, nt) for u in range(3) for nt in range(3)]
    free = [q for q in range(32, 248, 4) if q not in packed]
    ACC = free[:24]; Bq = free[24:32]; EOq = free[32:36]; Tq = free[36:40]
    CT = free[40:45]
    assert all(EOq[i+1] == EOq[i] + 4 for i in (0, 2)) or True

    stamps = []
    def st(tag, dyn=False):
        if not stamp: return
        if fine and dyn: dyn = False
        if dyn:
            base = len(stamps)
            for r in range(NROUND): stamps.append(f"{tag} r{r}")
            E.e(f"s_add_u32 m0, s{sRound}, {base}")
            E.e("s_memtime s[96:97]"); E.e("s_waitcnt lgkmcnt(0)")
            E.e(f"v_writelane_b32 v{STAMP}, s96, m0")
            E.e("s_add_u32 m0, m0, 32")
            E.e("s_memrealtime s[96:97]"); E.e("s_waitcnt lgkmcnt(0)")
            E.e(f"v_writelane_b32 v{STAMP}, s96, m0")
        else:
            i = len(stamps); stamps.append(tag)
            E.e("s_memtime s[96:97]"); E.e("s_waitcnt lgkmcnt(0)")
            E.e(f"v_writelane_b32 v{STAMP}, s96, {i}")
            E.e("s_memrealtime s[96:97]"); E.e("s_waitcnt lgkmcnt(0)")
            E.e(f"v_writelane_b32 v{STAMP}, s96, {32+i}")
        E.dl = E.nl

    E.e("s_cmp_ge_u32 s2, 256")
    E.e(f"s_cbranch_scc1 {name}_end")
    E.e("s_load_dwordx4 s[36:39], s[0:1], 0")
    E.e("s_load_dwordx2 s[40:41], s[0:1], 32")
    E.e("s_load_dwordx2 s[42:43], s[0:1], 48")
    if inprep:
        E.e("s_load_dwordx4 s[72:75], s[0:1], 16")
        E.e("s_load_dwordx2 s[76:77], s[0:1], 40")
    vL, vN, vG = 32, 33, 34
    a, b, c, d_, e_, f_, g_ = 35, 36, 37, 38, 39, 40, 41
    E.e(f"v_lshrrev_b32 v{a}, 6, v0")
    E.e(f"v_and_b32 v{vL}, 63, v0")
    E.e(f"v_readfirstlane_b32 s{sW}, v{a}")
    E.e(f"v_and_b32 v{vN}, 15, v{vL}")
    E.e(f"v_lshrrev_b32 v{vG}, 4, v{vL}")
    E.e(f"v_lshlrev_b32 v{vL16}, 4, v{vL}")
    E.e(f"s_and_b32 s{sPair}, s{sW}, 3")
    E.e(f"s_lshr_b32 s{sHb}, s{sW}, 2")
    E.e(f"s_mov_b32 s{sSelLo}, 0x05040100")
    E.e(f"s_mov_b32 s{sSelHi}, 0x07060302")
    E.e(f"s_mov_b32 s{sNegA}, {f2u(-A_/S_):#x}")
    E.e(f"s_mov_b32 s{sS}, {f2u(S_):#x}")
    if f16:
        import numpy as np
        h16 = lambda x: int(np.array([x], np.float16).view(np.uint16)[0])
        E.e(f"s_mov_b32 s{sAh}, {h16(A_/S_)*0x10001:#x}")
        E.e(f"s_mov_b32 s{sSh}, {h16(S_)*0x10001:#x}")
    E.e(f"s_and_b32 s{sTmp}, s2, 7")
    E.e(f"s_lshl_b32 s{sTmp}, s{sTmp}, 5")
    E.e(f"s_lshr_b32 s{sTmp2}, s2, 3")
    E.e(f"s_add_u32 s{sTmp}, s{sTmp}, s{sTmp2}")
    if band:
        E.e(f"s_lshr_b32 s{sR0}, s{sTmp}, 5")
        E.e(f"s_mul_i32 s{sR0}, s{sR0}, 48")
        E.e(f"s_bfe_u32 s{sTmp2}, s{sTmp}, 0x10004")
        E.e(f"s_lshl_b32 s{sTmp2}, s{sTmp2}, 3")
        E.e(f"s_add_u32 s{sR0}, s{sR0}, s{sTmp2}")
    else:
        E.e(f"s_lshr_b32 s{sR0}, s{sTmp}, 4")
        E.e(f"s_mul_i32 s{sR0}, s{sR0}, 24")
    RSTEP = 16 if band else 8
    E.e(f"s_and_b32 s{sC0}, s{sTmp}, 15")
    E.e(f"s_mul_i32 s{sC0}, s{sC0}, 24")
    E.e(f"s_mul_i32 s{sM0w}, s{sW}, 7168")
    E.e(f"s_mul_i32 s{sDw}, s{sW}, 3072")
    E.e(f"s_mul_i32 s{sDwo}, s{sW}, 2688")
    E.e(f"s_cmp_eq_u32 s{sW}, 7")
    E.e(f"s_cselect_b32 s{sDwo}, 0x100000, s{sDwo}")
    E.e("s_waitcnt lgkmcnt(0)")
    srd(E, 4, 36, 37, XBYTES)
    srd(E, 16, 36, 37, XBYTES)
    srd(E, 12, 38, 39, 7*7*192*2)
    srd(E, 8, 42, 43, 24*SLOT)
    srd(E, 20, 40, 41, XBYTES)
    E.e("s_mov_b32 s22, 0")
    if stamp: E.e(f"v_mov_b32 v{STAMP}, 0")
    st("start")

    dwl = {}
    def dw_load1(cb, j, first=False):
        base = (RAW0, RAW1, RAW2)[cb]
        if first: E.e(f"v_lshrrev_b32 v{t0}, 3, v{vL16}")
        if j == 0 or first: E.e(f"s_add_u32 s71, s{sDwo}, {128*cb}")
        dwl[cb] = E.vm(f"buffer_load_ushort v{base+j}, v{t0}, s[12:15], s71 offen offset:{384*j}")
    def dw_loads():
        for cb in range(3):
            for j in range(7): dw_load1(cb, j, first=(cb == 0 and j == 0))
    def t_write(raw, loc, u, t0=t0, t1=t1):
        u0, u1 = u
        E.e(f"v_lshl_or_b32 v{u0+0}, v{raw+1}, 16, v{raw+0}")
        E.e(f"v_lshl_or_b32 v{u0+1}, v{raw+3}, 16, v{raw+2}")
        E.e(f"v_lshl_or_b32 v{u0+2}, v{raw+5}, 16, v{raw+4}")
        E.e(f"v_mov_b32 v{u0+3}, v{raw+6}")
        E.e(f"v_lshlrev_b32 v{u1+0}, 16, v{raw+0}")
        E.e(f"v_lshl_or_b32 v{u1+1}, v{raw+2}, 16, v{raw+1}")
        E.e(f"v_lshl_or_b32 v{u1+2}, v{raw+4}, 16, v{raw+3}")
        E.e(f"v_lshl_or_b32 v{u1+3}, v{raw+6}, 16, v{raw+5}")
        E.e(f"v_mul_u32_u24 v{t0}, 15, v{vL16}")
        E.e(f"s_lshl_b32 s{sTmp}, s{sW}, 5")
        E.e(f"s_add_u32 s{sTmp}, s{sTmp}, {loc}")
        E.e(f"v_add_u32 v{t0}, s{sTmp}, v{t0}")
        E.e(f"s_cmp_eq_u32 s{sW}, 7")
        E.e(f"s_cselect_b32 s{sTmp}, 0, 16")
        E.e(f"v_add_u32 v{t1}, s{sTmp}, v{t0}")
        E.ds(f"ds_write_b128 v{t0}, v[{u0}:{u0+3}]")
        E.ds(f"ds_write_b128 v{t1}, v[{u1}:{u1+3}]")

    PW = 60
    if inprep:
        pld = emit_prep_loads(E, name, sW, vN, vG, a, b, c, sTmp, sTmp2, PW, 72)
        srd(E, 80, 76, 77, 256)
        srd(E, 84, 76, 77, 256)
        E.e(f"s_cmp_lt_u32 s2, {nprod}")
        E.e("s_cselect_b32 s86, s86, 0")
        srd(E, 88, 42, 43, 24*SLOT)
        E.e(f"s_cmp_lt_u32 s2, {nprod}")
        E.e("s_cselect_b32 s90, s90, 0")
    xd = {}
    E.e(f"s_mov_b32 s{sTileRow}, s{sR0}")
    E.e(f"s_sub_u32 s{sBase}, s{sTileRow}, 3")
    E.e(f"s_mul_i32 s{sBase}, s{sBase}, 384")
    E.e(f"s_add_u32 s{sBase}, s{sBase}, s{sC0}")
    E.e(f"s_sub_u32 s{sBase}, s{sBase}, 3")
    E.e(f"s_mul_i32 s{sBase}, s{sBase}, 384")
    E.e(f"s_mul_i32 s{sTmp}, s{sW}, 448")
    E.e(f"s_sub_u32 s{sTmp2}, s{sC0}, 3")
    for q in range(7):
        P, r, rem, sl, n_, dx, tt = a, b, c, d_, e_, f_, g_
        E.e(f"v_add_u32 v{P}, s{sTmp}, v{vL}")
        if q: E.e(f"v_add_u32 v{P}, {64*q}, v{P}")
        E.e(f"v_mul_u32_u24 v{r}, 4370, v{P}")
        E.e(f"v_lshrrev_b32 v{r}, 20, v{r}")
        E.e(f"v_mul_u32_u24 v{rem}, 240, v{r}")
        E.e(f"v_sub_u32 v{rem}, v{P}, v{rem}")
        E.e(f"v_lshrrev_b32 v{sl}, 3, v{rem}")
        E.e(f"v_and_b32 v{rem}, 7, v{rem}")
        E.e(f"v_cmp_le_u32 vcc, 15, v{sl}")
        E.e(f"v_mov_b32 v{dx}, 0")
        E.e("s_nop 0")
        E.e(f"v_addc_co_u32 v{dx}, vcc, 0, v{dx}, vcc")
        E.e(f"v_mul_u32_u24 v{n_}, 15, v{dx}")
        E.e(f"v_sub_u32 v{n_}, v{sl}, v{n_}")
        E.e(f"v_lshrrev_b32 v{sl}, 1, v{n_}")
        E.e(f"v_sub_u32 v{rem}, v{rem}, v{sl}")
        E.e(f"v_and_b32 v{rem}, 7, v{rem}")
        E.e(f"v_lshl_add_u32 v{n_}, v{n_}, 1, v{dx}")
        dd = vDS + q
        E.e(f"s_mov_b32 s{sTmp3}, 147456")
        E.e(f"v_mul_lo_u32 v{dd}, v{r}, s{sTmp3}")
        E.e(f"v_mul_u32_u24 v{tt}, 384, v{n_}")
        E.e(f"v_add_u32 v{dd}, v{dd}, v{tt}")
        E.e(f"v_lshl_add_u32 v{dd}, v{rem}, 4, v{dd}")
        E.e(f"v_add_u32 v{tt}, s{sTmp2}, v{n_}")
        E.e(f"v_cmp_gt_u32 vcc, 384, v{tt}")
        E.e(f"s_movk_i32 s{sTmp3}, 3360")
        E.e(f"v_cmp_gt_u32 s[48:49], s{sTmp3}, v{P}")
        E.e("s_nop 1")
        E.e("s_and_b64 vcc, vcc, s[48:49]")
        E.e(f"v_mov_b32 v{tt}, 0x40000000")
        E.e("s_nop 0")
        E.e(f"v_cndmask_b32 v{dd}, v{tt}, v{dd}, vcc")
        E.e(f"s_add_u32 m0, s{sM0w}, {XA + 1024*q}")
        E.e(f"v_add_u32 v{t0}, s{sBase}, v{dd}")
        xd[0] = E.vm(f"buffer_load_dwordx4 v{t0}, s[4:7], 0 offen lds")
    def x_base(s):
        E.e(f"s_sub_u32 s{sBase}, s{sTileRow}, 3")
        E.e(f"s_mul_i32 s{sBase}, s{sBase}, 384")
        E.e(f"s_add_u32 s{sBase}, s{sBase}, s{sC0}")
        E.e(f"s_sub_u32 s{sBase}, s{sBase}, 3")
        E.e(f"s_mul_i32 s{sBase}, s{sBase}, 384")
        if s: E.e(f"s_add_u32 s{sBase}, s{sBase}, {128*s}")
    def x_dma(s, q, loc, tmp=None):
        tv = (t0 if (q & 1) == 0 else t1) if tmp is None else tmp + (q & 1)
        E.e(f"s_add_u32 m0, s{sM0w}, {loc + 1024*q}")
        E.e(f"v_add_u32 v{tv}, s{sBase}, v{vDS+q}")
        xd[s] = E.vm(f"buffer_load_dwordx4 v{tv}, s[4:7], 0 offen{xflag} lds")
    dw_loads()
    x_base(1)
    for q in range(7): x_dma(1, q, XB)
    pst = None
    if inprep:
        E.wait(v=pld)
        for d in range(4): E.e(f"v_lshl_or_b32 v{68+d}, v{PW+2*d+1}, 16, v{PW+2*d}")
        E.e(f"s_mul_i32 s{sTmp}, s51, 24576")
        E.e(f"s_lshl_b32 s{sTmp2}, s52, 10")
        E.e(f"s_add_u32 s{sTmp}, s{sTmp}, s{sTmp2}")
        pst = E.vm(f"buffer_store_dwordx4 v[68:71], v{vL16}, s[88:91], s{sTmp} offen sc1")
    E.e(f"s_mul_i32 s{sTmp}, s{sW}, 53")
    E.e(f"v_add_u32 v{a}, s{sTmp}, v{vL}")
    E.e(f"v_mul_u32_u24 v{b}, 2185, v{a}")
    E.e(f"v_lshrrev_b32 v{b}, 16, v{b}")
    E.e(f"v_mul_u32_u24 v{c}, 30, v{b}")
    E.e(f"v_sub_u32 v{c}, v{a}, v{c}")
    E.e(f"s_mov_b32 s{sTmp3}, 147456")
    E.e(f"v_mul_lo_u32 v{d_}, v{b}, s{sTmp3}")
    E.e(f"v_mul_u32_u24 v{e_}, 384, v{c}")
    E.e(f"v_add_u32 v{d_}, v{d_}, v{e_}")
    E.e(f"s_sub_u32 s{sTmp2}, s{sC0}, 3")
    E.e(f"v_add_u32 v{e_}, s{sTmp2}, v{c}")
    E.e(f"v_cmp_gt_u32 vcc, 384, v{e_}")
    E.e(f"s_movk_i32 s{sTmp3}, 420")
    E.e(f"v_cmp_gt_u32 s[48:49], s{sTmp3}, v{a}")
    E.e("s_nop 1")
    E.e("s_and_b64 vcc, vcc, s[48:49]")
    E.e(f"v_cmp_gt_u32 s[48:49], 53, v{vL}")
    E.e("s_nop 1")
    E.e("s_and_b64 vcc, vcc, s[48:49]")
    E.e(f"v_mov_b32 v{e_}, 0x40000000")
    E.e("s_nop 0")
    E.e(f"v_cndmask_b32 v0, v{e_}, v{d_}, vcc")
    pf0 = None
    if pf and pfstart:
        x_base(2)
        E.e(f"v_add_u32 v{t0}, s{sBase}, v0")
        pf0 = E.vm(f"buffer_load_dword v{RAW2+7 if not stamp else 72}, v{t0}, s[4:7], 0 offen")
    E.e(f"v_lshrrev_b32 v{a}, 1, v{vN}")
    E.e(f"v_add_u32 v{a}, s{sW}, v{a}")
    E.e(f"v_and_b32 v{a}, 7, v{a}")
    E.e(f"v_lshlrev_b32 v{a}, 4, v{a}")
    E.e(f"v_lshl_add_u32 v{a}, v{vN}, 7, v{a}")
    E.e(f"v_mul_u32_u24 v{b}, 3840, v{vG}")
    E.e(f"v_add_u32 v{vXa}, v{a}, v{b}")
    E.e(f"v_add_u32 v{b}, 12, v{vG}")
    E.e(f"v_min_u32 v{b}, 13, v{b}")
    E.e(f"v_mul_u32_u24 v{b}, 3840, v{b}")
    E.e(f"v_add_u32 v{vXa3}, v{a}, v{b}")
    E.e(f"v_lshrrev_b32 v{a}, 1, v{vN}")
    E.e(f"v_and_b32 v{b}, 1, v{vN}")
    E.e(f"v_sub_u32 v{a}, v{vG}, v{a}")
    E.e(f"s_mul_i32 s{sTmp}, s{sW}, 1920")
    E.e(f"s_add_u32 s{sTmp}, s{sTmp}, {T1LOC}")
    for f in range(4):
        E.e(f"v_add_u32 v{c}, {4*f}, v{a}")
        E.e(f"v_lshl_add_u32 v{d_}, v{c}, 1, v{b}")
        E.e(f"v_cmp_gt_u32 vcc, 7, v{c}")
        E.e(f"v_mov_b32 v{e_}, 14")
        E.e("s_nop 0")
        E.e(f"v_cndmask_b32 v{d_}, v{e_}, v{d_}, vcc")
        E.e(f"v_lshlrev_b32 v{d_}, 4, v{d_}")
        E.e(f"v_add_u32 v{vT+f}, s{sTmp}, v{d_}")
    E.e(f"v_mul_u32_u24 v{a}, 12, v{vG}")
    E.e(f"v_add_u32 v{a}, v{a}, v{vN}")
    E.e(f"v_lshrrev_b32 v{b}, 4, v{a}")
    E.e(f"v_and_b32 v{a}, 15, v{a}")
    E.e(f"v_lshlrev_b32 v{a}, 4, v{a}")
    E.e(f"v_lshl_add_u32 v{a}, v{b}, 10, v{a}")
    E.e(f"s_mul_i32 s{sTmp}, s{sHb}, 3072")
    E.e(f"s_lshl_b32 s{sTmp2}, s{sPair}, 8")
    E.e(f"s_add_u32 s{sTmp}, s{sTmp}, s{sTmp2}")
    E.e(f"s_add_u32 s{sTmp}, s{sTmp}, {HLOC}")
    E.e(f"v_add_u32 v{vHw}, s{sTmp}, v{a}")
    E.e(f"v_cmp_gt_u32 s[60:61], 12, v{vN}")
    E.e(f"s_mul_i32 s{sTmp}, s{sHb}, 6144")
    E.e(f"v_add_u32 v{vA0}, s{sTmp}, v{vL16}")
    E.e(f"v_add_u32 v{vA2}, {2*SLOT}, v{vA0}")
    E.e(f"s_mul_i32 s{sTmp}, s{sPair}, 3072")
    E.e(f"s_add_u32 s{sTmp}, s{sTmp}, {GBUF}")
    E.e(f"v_add_u32 v{vGr}, s{sTmp}, v{vL16}")
    E.e(f"s_lshl_b32 s{sTmp2}, s{sHb}, 3")
    E.e(f"v_add_u32 v{vGw}, s{sTmp2}, v{vGr}")
    E.e(f"v_add_u32 v{vDo}, s{sDw}, v{vL16}")
    E.e(f"s_lshr_b32 s{sTmp}, s{sPair}, 1")
    E.e(f"s_add_u32 s46, s{sR0}, s{sTmp}")
    E.e(f"s_and_b32 s{sTmp}, s{sPair}, 1")
    E.e(f"s_add_u32 s47, s{sC0}, s{sTmp}")
    E.e(f"s_mul_i32 s{sTmp3}, s{sHb}, 192")
    for nt in range(3):
        E.e(f"v_add_u32 v{a}, {16*nt}, v{vN}")
        E.e(f"v_mul_u32_u24 v{b}, 43, v{a}")
        E.e(f"v_lshrrev_b32 v{b}, 9, v{b}")
        E.e(f"v_mul_u32_u24 v{c}, 12, v{b}")
        E.e(f"v_sub_u32 v{c}, v{a}, v{c}")
        E.e(f"v_lshl_add_u32 v{b}, v{b}, 1, s46")
        E.e(f"v_lshl_add_u32 v{c}, v{c}, 1, s47")
        E.e(f"v_mul_u32_u24 v{b}, 384, v{b}")
        E.e(f"v_add_u32 v{b}, v{b}, v{c}")
        E.e(f"v_mul_u32_u24 v{b}, 384, v{b}")
        E.e(f"v_lshl_add_u32 v{b}, v{vG}, 4, v{b}")
        E.e(f"v_add_u32 v{vPx+nt}, s{sTmp3}, v{b}")
    E.e(f"v_lshrrev_b32 v{a}, 2, v{vN}")
    E.e(f"v_and_b32 v{b}, 3, v{vN}")
    E.e(f"v_and_b32 v{c}, 1, v{b}")
    E.e(f"v_lshlrev_b32 v{c}, 4, v{c}")
    E.e(f"v_mov_b32 v{d_}, 0x3f80")
    E.e(f"v_lshlrev_b32 v{d_}, v{c}, v{d_}")
    E.e(f"v_cmp_eq_u32 vcc, v{a}, v{vG}")
    E.e(f"v_mov_b32 v{c}, 0")
    E.e("s_nop 0")
    E.e(f"v_cndmask_b32 v{d_}, v{c}, v{d_}, vcc")
    E.e(f"v_cmp_gt_u32 vcc, 2, v{b}")
    E.e("s_nop 1")
    E.e(f"v_cndmask_b32 v{ID+2}, v{c}, v{d_}, vcc")
    E.e(f"v_cndmask_b32 v{ID+3}, v{d_}, v{c}, vcc")
    for i in (0, 1, 4, 5): E.e(f"v_mov_b32 v{ID+i}, 0")
    E.wait(v=dwl[2])
    t_write(RAW0, T0LOC, (44, 48))
    t_write(RAW1, T1LOC, (52, 56))
    E.e("s_mov_b32 s95, 12288")
    E.e(f"s_mov_b32 s{sRound}, 0")
    E.e(f"s_mov_b32 s{sRowP}, 0")
    E.e(f"s_mov_b32 s{sRowC}, 0")
    E.wait(v=xd[0] if not (stamp and pf0) else max(xd[0], pf0))
    E.wait_all_lds(force=True)
    E.e("s_barrier")
    if pf2:
        x_base(2)
        E.e(f"v_add_u32 v{t0}, s{sBase}, v0")
        E.vm(f"buffer_load_dword v{CT[3]}, v{t0}, s[4:7], 0 offen")
    extra = E.nv - xd[1]
    E.nv -= extra; E.dv = min(E.dv, E.nv)
    st("prologue")

    dma = {}; rd = {}; gi = {}; resid = {}
    RL, RN = 3, 3
    def out_store(q):
        u, nt = divmod(q, 3); o = Oreg(2*u, nt)
        E.vm(f"buffer_store_dwordx4 v[{o}:{o+3}], v{vPx+nt}, s[20:23], s{sRowP} offen offset:{u*64}{stflag}")

    def conv_step(s, side=()):
        side = list(side)
        loc = XB if s == 1 else XA
        toff = 0 if s == 1 else T0LOC - T1LOC
        E.c(f"==== conv step {s}")
        E.e(f"v_add_u32 v{t0}, {loc}, v{vXa}")
        E.e(f"v_add_u32 v{t1}, {loc}, v{vXa3}")
        def rd_eo(f):
            e4, o4 = EOq[2*(f & 1)], EOq[2*(f & 1)+1]
            adr = t1 if f == 3 else t0
            off = 0 if f == 3 else f*15360
            E.ds(f"ds_read_b128 v[{e4}:{e4+3}], v{adr} offset:{off}")
            return E.ds(f"ds_read_b128 v[{o4}:{o4+3}], v{adr} offset:{off+1920}")
        def rd_t(idx):
            f, c_ = divmod(idx, 8); r = Tq[idx & 3]
            return E.ds(f"ds_read_b128 v[{r}:{r+3}], v{vT+f} offset:{toff + c_*240}")
        eo = {0: rd_eo(0)}; tt = {}
        for i in range(3): tt[i] = rd_t(i)
        eo[1] = rd_eo(1)
        def mf(f, c_):
            idx = f*8 + c_
            E.wait(l=tt[idx])
            acc = ACC[8*s + c_]
            E.e(mfma(acc, Tq[idx & 3], Bq[c_], None if f == 0 else acc))
            if idx + 3 < 32: tt[idx+3] = rd_t(idx+3)
            if side and c_ != 6 and idx % sp == 0: side.pop(0)()
        for f in range(4):
            e4, o4 = EOq[2*(f & 1)], EOq[2*(f & 1)+1]
            if cprio: E.e(f"s_setprio {3-f}")
            E.wait(l=eo[f])
            for cp in range(4):
                E.e(f"v_perm_b32 v{Bq[2*cp]}, v{o4+cp}, v{e4+cp}, s{sSelLo}")
                E.e(f"v_perm_b32 v{Bq[2*cp+1]}, v{o4+cp}, v{e4+cp}, s{sSelHi}")
            if f + 2 < 4: eo[f+2] = rd_eo(f+2)
            for c_ in range(8):
                bb = Bq[c_]
                for dd in (1, 2, 3):
                    E.e(f"v_mov_b32_dpp v{bb+dd}, v{bb} row_shl:{dd} row_mask:0xf bank_mask:0xf bound_ctrl:1")
                if c_ > 0: mf(f, c_-1)
            E.e("s_nop 1")
            mf(f, 7)
        while side: side.pop(0)()

    def poll():
        if not inprep: return
        lp = f"{name}_poll"
        E.e(f"s_cmp_lg_u32 s{sRound}, 0")
        E.e(f"s_cbranch_scc1 {lp}_done")
        E.e(f"s_cmp_lg_u32 s{sW}, 0")
        E.e(f"s_cbranch_scc1 {lp}_bar")
        E.e(f"s_mov_b32 s{sTmp2}, 0")
        E.e(f"v_mov_b32 v{t0}, 0")
        E.label(f"{lp}")
        E.e(f"buffer_load_dword v{t1}, v{t0}, s[80:83], 0 offen sc1")
        E.e("s_waitcnt vmcnt(0)")
        E.e(f"v_readfirstlane_b32 s{sTmp}, v{t1}")
        E.e(f"s_add_u32 s{sTmp2}, s{sTmp2}, 1")
        E.e(f"s_cmp_ge_u32 s{sTmp2}, 0x40000")
        E.e(f"s_cbranch_scc1 {lp}_acq")
        E.e(f"s_cmp_lt_u32 s{sTmp}, {nprod}")
        E.e(f"s_cbranch_scc1 {lp}")
        E.label(f"{lp}_acq")
        if inv:
            E.e("buffer_inv sc1")
            E.e("s_waitcnt vmcnt(0)")
        E.label(f"{lp}_bar")
        E.e("s_barrier")
        if wpf:
            E.e(f"s_lshr_b32 s{sTmp}, s2, 3")
            E.e(f"s_and_b32 s{sTmp}, s{sTmp}, 31")
            E.e(f"s_lshl_b32 s{sTmp}, s{sTmp}, 3")
            E.e(f"s_add_u32 s{sTmp}, s{sTmp}, s{sW}")
            E.e(f"s_mul_i32 s{sTmp}, s{sTmp}, {18*128}")
            E.e(f"v_lshlrev_b32 v{t0}, 3, v{vL16}")
            E.e(f"v_cmp_gt_u32 vcc, {18*128}, v{t0}")
            E.e(f"v_mov_b32 v{t1}, 0x40000000")
            E.e("s_nop 0")
            E.e(f"v_cndmask_b32 v{t0}, v{t1}, v{t0}, vcc")
            E.e(f"buffer_load_dword v{RAW2}, v{t0}, s[8:11], s{sTmp} offen")
        E.label(f"{lp}_done")

    def layernorm():
        E.c("==== layernorm")
        ST = CT[0]; ST2 = CT[1]; RHO = CT[2]; BETA = CT[3]
        wl = []
        if wlate:
            poll()
            wl = [(J, i) for J in (-1, 0, 1) for i in range(3)]
        E.e("s_nop 7")
        if pkln:
            for h in (0, 2):
                E.e(f"v_pk_add_f32 v[{ST+h}:{ST+h+1}], v[{ACC[0]+h}:{ACC[0]+h+1}], v[{ACC[1]+h}:{ACC[1]+h+1}]")
                E.e(f"v_pk_mul_f32 v[{ST2+h}:{ST2+h+1}], v[{ACC[0]+h}:{ACC[0]+h+1}], v[{ACC[0]+h}:{ACC[0]+h+1}]")
            for ch in range(1, 24):
                for h in (0, 2):
                    x_ = f"v[{ACC[ch]+h}:{ACC[ch]+h+1}]"
                    if ch > 1: E.e(f"v_pk_add_f32 v[{ST+h}:{ST+h+1}], v[{ST+h}:{ST+h+1}], {x_}")
                    E.e(f"v_pk_fma_f32 v[{ST2+h}:{ST2+h+1}], {x_}, {x_}, v[{ST2+h}:{ST2+h+1}]")
                if wl and ch % 2 == 0: issue_w(*wl.pop(0))
        else:
            for r in range(4):
                E.e(f"v_mov_b32 v{ST+r}, v{ACC[0]+r}")
                E.e(f"v_mul_f32 v{ST2+r}, v{ACC[0]+r}, v{ACC[0]+r}")
            for ch in range(1, 24):
                for r in range(4):
                    x_ = ACC[ch] + r
                    E.e(f"v_add_f32 v{ST+r}, v{ST+r}, v{x_}")
                    E.e(f"v_fmac_f32 v{ST2+r}, v{x_}, v{x_}")
        while wl: issue_w(*wl.pop(0))
        if halfw:
            E.e(f"v_lshrrev_b32 v{t0}, 8, v{vL16}")
            E.e(f"v_mul_u32_u24 v{t0}, 192, v{t0}")
            E.e(f"v_and_b32 v{t1}, 0xf0, v{vL16}")
            E.e(f"v_add3_u32 v{t0}, v{t0}, v{t1}, s95")
            E.e(f"s_mul_i32 s{sTmp}, s{sW}, 1536")
            E.e(f"v_add_u32 v{t1}, s{sTmp}, v{t0}")
            E.e("s_mov_b64 s[62:63], exec")
            E.e("s_mov_b64 exec, s[60:61]")
            E.ds(f"ds_write_b128 v{t1}, v[{ST}:{ST+3}]")
            E.ds(f"ds_write_b128 v{t1}, v[{ST2}:{ST2+3}] offset:768")
            E.e("s_mov_b64 exec, s[62:63]")
            sstride, soff = 1536, 768
        else:
            E.e(f"v_add_u32 v{t0}, {STLOC}, v{vL16}")
            E.e(f"s_lshl_b32 s{sTmp}, s{sW}, 11")
            E.e(f"v_add_u32 v{t1}, s{sTmp}, v{t0}")
            E.wait_all_lds(force=True)
            if fine: st("ln stats")
            E.e("s_barrier")
            if fine: st("BA")
            E.ds(f"ds_write_b128 v{t1}, v[{ST}:{ST+3}]")
            E.ds(f"ds_write_b128 v{t1}, v[{ST2}:{ST2+3}] offset:1024")
            sstride, soff = 2048, 1024
        E.wait_all_lds(force=True)
        E.e("s_barrier")
        if fine: st("BB")
        RB = Bq + EOq + Tq
        for w in range(8):
            E.ds(f"ds_read_b128 v[{RB[2*w]}:{RB[2*w]+3}], v{t0} offset:{sstride*w}")
            E.ds(f"ds_read_b128 v[{RB[2*w+1]}:{RB[2*w+1]+3}], v{t0} offset:{sstride*w+soff}")
        base_id = E.nl - 16
        for w in range(1, 8):
            E.wait(l=base_id + 2*w + 2)
            for h in (0, 2):
                for k, dst in enumerate((ST, ST2)):
                    src = RB[2*w + k]
                    s0 = RB[k] if w == 1 else dst
                    E.e(f"v_pk_add_f32 v[{dst+h}:{dst+h+1}], v[{s0+h}:{s0+h+1}], v[{src+h}:{src+h+1}]")
        E.e(f"v_mov_b32 v{RHO}, {f2u(1.0/192):#x}")
        E.e(f"v_mov_b32 v{RHO+1}, {f2u(1.0/192):#x}")
        E.e(f"v_mov_b32 v{RHO+2}, {f2u(1e-5):#x}")
        for h in (0, 2):
            E.e(f"v_pk_mul_f32 v[{ST+h}:{ST+h+1}], v[{ST+h}:{ST+h+1}], v[{RHO}:{RHO+1}]")
            E.e(f"v_pk_mul_f32 v[{ST2+h}:{ST2+h+1}], v[{ST2+h}:{ST2+h+1}], v[{RHO}:{RHO+1}]")
        for h in (0, 2):
            E.e(f"v_pk_fma_f32 v[{ST2+h}:{ST2+h+1}], v[{ST+h}:{ST+h+1}], v[{ST+h}:{ST+h+1}], v[{ST2+h}:{ST2+h+1}] neg_lo:[1,0,0] neg_hi:[1,0,0]")
        for r in range(4): E.e(f"v_max_f32 v{ST2+r}, 0, v{ST2+r}")
        for r in range(4): E.e(f"v_add_f32 v{ST2+r}, v{RHO+2}, v{ST2+r}")
        for r in range(4): E.e(f"v_rsq_f32 v{RHO+r}, v{ST2+r}")
        E.e("s_nop 0")
        for r in range(4): E.e(f"v_mul_f32 v{RHO+r}, s{sS}, v{RHO+r}")
        for h in (0, 2):
            E.e(f"v_pk_mul_f32 v[{BETA+h}:{BETA+h+1}], v[{ST+h}:{ST+h+1}], v[{RHO+h}:{RHO+h+1}]")
        if fine: st("ln rho")
        E.e(f"v_add_u32 v{t0}, 32768, v{vHw}")
        E.e("s_mov_b64 s[62:63], exec")
        E.e("s_mov_b64 exec, s[60:61]")
        ta, tb = EOq[0], EOq[0] + 1
        for cg in range(3):
            if pkln and (normil or cg == 0):
                for ch in (range(8*cg, 8*cg + 8) if normil else range(24)):
                    for h in (0, 2):
                        x_ = f"v[{ACC[ch]+h}:{ACC[ch]+h+1}]"
                        E.e(f"v_pk_fma_f32 {x_}, {x_}, v[{RHO+h}:{RHO+h+1}], v[{BETA+h}:{BETA+h+1}] neg_lo:[0,0,1] neg_hi:[0,0,1]")
            for r in range(4):
                o = Bq[(cg*4 + r) & 7]
                for cp in range(4):
                    a0 = ACC[8*cg + 2*cp] + r; a1 = ACC[8*cg + 2*cp + 1] + r
                    if pkln:
                        E.e(f"v_cvt_pk_bf16_f32 v{o+cp}, v{a0}, v{a1}")
                    else:
                        E.e(f"v_fma_f32 v{ta}, v{a0}, v{RHO+r}, -v{BETA+r}")
                        E.e(f"v_fma_f32 v{tb}, v{a1}, v{RHO+r}, -v{BETA+r}")
                        E.e(f"v_cvt_pk_bf16_f32 v{o+cp}, v{ta}, v{tb}")
                off = r*18432 + cg*6144
                adr = vHw
                if off >= 32768: adr, off = t0, off - 32768
                E.ds(f"ds_write_b128 v{adr}, v[{o}:{o+3}] offset:{off}")
        E.e("s_mov_b64 exec, s[62:63]")

    wuid = [0]
    def issue_w(J, i):
        j = J % 24; slot = (J % NS)*SLOT
        skip = None
        if halfw and J in (-1, 0): skip = 1
        if halfw and J in (23, 24): skip = 0
        if skip is not None:
            lbl = f"{name}_ws{J % 100}_{i}".replace("-", "m")
            E.e(f"s_cmp_eq_u32 s{sHb}, {skip}")
            E.e(f"s_cbranch_scc1 {lbl}")
        if m0once and J >= 2:
            if i == 0:
                E.e(f"s_add_u32 m0, s{sDw}, {slot}")
                E.e(f"s_mov_b32 s94, {j*SLOT}")
            dma[J] = E.vm(f"buffer_load_dwordx4 v{vDo}, s[8:11], s94 offen offset:{i*1024} lds", skippable=skip is not None)
        else:
            E.e(f"s_add_u32 m0, s{sDw}, {slot + i*1024}")
            E.e(f"s_mov_b32 s{sSo}, {j*SLOT + i*1024}")
            dma[J] = E.vm(f"buffer_load_dwordx4 v{vDo}, s[8:11], s{sSo} offen lds", skippable=skip is not None)
        if skip is not None: E.label(lbl)
    def a_read(J, f):
        slot = J % NS
        base, off = (vA2, (slot-2)*SLOT) if slot >= 2 else (vA0, slot*SLOT)
        o = off + (f*1024 if f < 6 else 12288 + (f-6)*1024)
        r = AR + 4*(((J+1)*12 + f) & 3)
        rd[(J, f)] = E.ds(f"ds_read_b128 v[{r}:{r+3}], v{base} offset:{o}")
    def gelu_half(c_, p, hf2):
        nt, hf = divmod(p, 2)
        uA = S + 12*(c_ & 1) + 4*nt + 2*hf; uB = uA + 1
        ta = TT + 2*(p & 1); tb = ta + 1
        gd = GT + 2*(nt & 1) + hf
        if f16:
            if hf2 == 0:
                return [f"v_cvt_pk_f16_f32 v{ta}, v{uA}, v{uB}",
                        f"v_pk_fma_f16 v{tb}, v{ta}, v{ta}, s{sAh}",
                        f"v_pk_mul_f16 v{tb}, v{tb}, v{ta} neg_lo:[1,0] neg_hi:[1,0]",
                        f"v_exp_f16_sdwa v{ta}, v{tb} dst_sel:WORD_0 dst_unused:UNUSED_PAD src0_sel:WORD_0",
                        f"v_exp_f16_sdwa v{ta}, v{tb} dst_sel:WORD_1 dst_unused:UNUSED_PRESERVE src0_sel:WORD_1"]
            return [f"v_pk_fma_f16 v{ta}, v{ta}, s{sSh}, s{sSh}",
                    f"v_rcp_f16_sdwa v{tb}, v{ta} dst_sel:WORD_0 dst_unused:UNUSED_PAD src0_sel:WORD_0",
                    f"v_rcp_f16_sdwa v{tb}, v{ta} dst_sel:WORD_1 dst_unused:UNUSED_PRESERVE src0_sel:WORD_1",
                    f"v_fma_mix_f32 v{ta}, v{uA}, v{tb}, 0 op_sel_hi:[0,1,0]",
                    f"v_fma_mix_f32 v{tb}, v{uB}, v{tb}, 0 op_sel:[0,1,0] op_sel_hi:[0,1,0]",
                    f"v_cvt_pk_bf16_f32 v{gd}, v{ta}, v{tb}"]
        if hf2 == 0:
            return [f"v_fma_f32 v{ta}, -v{uA}, v{uA}, s{sNegA}", f"v_fma_f32 v{tb}, -v{uB}, v{uB}, s{sNegA}",
                    f"v_mul_f32 v{ta}, v{ta}, v{uA}", f"v_mul_f32 v{tb}, v{tb}, v{uB}",
                    f"v_exp_f32 v{ta}, v{ta}", f"v_exp_f32 v{tb}, v{tb}"]
        return [f"v_fma_f32 v{ta}, v{ta}, s{sS}, s{sS}", f"v_fma_f32 v{tb}, v{tb}, s{sS}, s{sS}",
                f"v_rcp_f32 v{ta}, v{ta}", f"v_rcp_f32 v{tb}, v{tb}",
                f"v_mul_f32 v{ta}, v{uA}, v{ta}", f"v_mul_f32 v{tb}, v{uB}, v{tb}",
                f"v_cvt_pk_bf16_f32 v{gd}, v{ta}, v{tb}"]

    def stage(J):
        g1 = 0 <= J + 1 <= 23; g2 = 0 <= J - 1 <= 23
        last = J == 24
        E.c(f"---- stage {J}")
        def needs_frag(JJ, f): return (0 <= JJ + 1 <= 23) if f < 6 else (0 <= JJ - 1 <= 23)
        for g in range(12):
            gg = (g - 8) % 12
            c_ = (J + 1) if g >= 8 else J
            p, hf2 = divmod(gg, 2)
            dog = 0 <= c_ <= 23
            ops = gelu_half(c_, p, hf2) if dog else []
            if f16 and ops: segs = [ops[0:2], ops[2:3], ops[3:]] if hf2 == 1 else [ops[0:2], ops[2:4], ops[4:]]
            else: segs = [ops[0:2], ops[2:4], ops[4:]]
            ar = AR + 4*(((J+1)*12 + g) & 3)
            domf = g1 if g < 6 else g2
            if psched and g in psched and g != 9 and not last: E.e(f"s_setprio {psched[g]}")
            if J == -1 and g == 8: E.e("s_nop 7")
            if domf:
                need = rd[(J, g)]
                if wait2 and g % 2 == 0 and (J, g+1) in rd and needs_frag(J, g+1): need = max(need, rd[(J, g+1)])
                if g == 6: need = max(need, gi[2])
                if J == -1 and g < 6: need = max(need, xrd[3*g+2])
                E.wait(l=need)
            for nt in range(3):
                if domf:
                    if g < 6:
                        dd = S + 12*((J+1) & 1) + 4*nt
                        E.e(mfma(dd, ar, X + (g*3+nt)*4, None if g == 0 else dd))
                    else:
                        o = Oreg(g-6, nt)
                        E.e(mfma(o, ar, GI + 4*nt, None if J == 1 else o))
                elif f16 and ops and nt > 0: E.e("s_nop 0")
                if nt == 0:
                    if g == 9:
                        if not last and (J + 1) <= 24 and (J+1) in dma: E.wait(v=dma[J+1])
                        E.wait_all_lds(force=True)
                        E.e("s_barrier")
                        if psched and 9 in psched and not last: E.e(f"s_setprio {psched[9]}")
                        if last: x_base(1)
                    if g + D < 12:
                        if needs_frag(J, g + D) and (J, g + D) not in rd: a_read(J, g + D)
                    elif not last:
                        f2 = g + D - 12
                        if needs_frag(J+1, f2): a_read(J+1, f2)
                    if g < 3 and g2:
                        gi[g] = E.ds(f"ds_read_b128 v[{GI+4*g}:{GI+4*g+3}], v{vGr} offset:{((J-1) & 1)*12288 + g*1024}")
                for o_ in segs[nt]: E.e(o_)
            if dog and hf2 == 1 and (p & 1) == 1:
                nt = p >> 1; gd = GT + 2*(nt & 1)
                E.ds(f"ds_write_b64 v{vGw}, v[{gd}:{gd+1}] offset:{(c_ & 1)*12288 + nt*1024}")
            if last:
                if g >= 9:
                    for q in {9: (0, 1, 2), 10: (3, 4), 11: (5, 6)}[g]: x_dma(1, q, XB)
                if g == 11: prep_next_c(1)
                continue
            for i, gq in enumerate(wsite):
                if g == gq:
                    JJ = J + NS if gq >= 9 else J + NS - 1
                    if 2 <= JJ <= 24: issue_w(JJ, i)
            if g == xsite and 3 <= J < 10:
                if J == 3: x_base(0)
                x_dma(0, J - 3, XA)
            if g == rsite and 2 <= J < 11:
                q = J - 2; u, nt = divmod(q, 3); r = RS + 4*(q % RN)
                resid[q] = E.vm(f"buffer_load_dwordx4 v[{r}:{r+3}], v{vPx+nt}, s[16:19], s{sRowC} offen offset:{u*64}{rflag}")
            if g == rsite - 1 and 2 + RL <= J < 11 + RL:
                q = J - 2 - RL; u, nt = divmod(q, 3)
                E.wait(v=resid[q])
                for p2 in range(2):
                    o = Oreg(2*u + p2, nt)
                    E.e(mfma(o, ID + (2 if p2 == 0 else 0), RS + 4*(q % RN), o))
            if pf and g == xsite and J in pf:
                sp = 1 + pf.index(J)
                x_base(sp)
                E.e(f"v_add_u32 v{t0}, s{sBase}, v0")
                E.vm(f"buffer_load_dword v{RAW2}, v{t0}, s[4:7], 0 offen")
            if J == 19 and 1 <= g <= 7: dw_load1(2, g - 1, first=(g == 1))
            if J == 22 and g >= 6: dw_load1(0, g - 6, first=(g == 6))
            if J == 23 and g <= 7:
                if g == 0: dw_load1(0, 6)
                else: dw_load1(1, g - 1)
            if J == 0 and g == 6:
                E.e(f"s_add_u32 s{sTileRow}, s{sTileRow}, {RSTEP}")
                E.e(f"s_cmp_eq_u32 s{sRound}, {NROUND-1}")
                E.e(f"s_cselect_b32 s6, 0, s6")
                E.e(f"s_mov_b32 s22, {XBYTES}")

    def prep_next_c(part):
        if part == 0:
            x_base(1)
            for q in range(7): x_dma(1, q, XB)
        else:
            E.wait(v=dwl[1])
            t_write(RAW0, T0LOC, (S, S+4))
            t_write(RAW1, T1LOC, (S+8, S+12))

    xrd = {}
    state = {"round0": None}
    def round_body():
        conv_step(0, [lambda q=q: out_store(q) for q in range(3)])
        if fine: st("c0 compute")
        E.wait(v=xd[1]); E.wait_all_lds(force=True); E.e("s_barrier")
        if fine: st("B0")
        DT = CT[4]
        def signal():
            lbl = f"{name}_nosig"
            E.e(f"s_cmp_lg_u32 s{sRound}, 0")
            E.e(f"s_cbranch_scc1 {lbl}")
            E.e(f"s_cmp_eq_u32 s{sW}, 0")
            E.e(f"s_cselect_b32 s86, s86, 0")
            E.e(f"v_mov_b32 v{DT+2}, 0")
            E.e(f"v_mov_b32 v{DT+3}, 1")
            E.e("s_mov_b64 s[62:63], exec")
            E.e("s_mov_b64 exec, 1")
            E.vm(f"buffer_atomic_add v{DT+3}, v{DT+2}, s[84:87], 0 offen sc1", skippable=True)
            E.e("s_mov_b64 exec, s[62:63]")
            E.label(lbl)
        side = []
        if inprep: side.append(signal)
        x_base(2)
        side += [lambda q=q: x_dma(2, q, XA, tmp=DT) for q in range(7)]
        side += [lambda: t_write(RAW2, T0LOC, (CT[0], CT[1]), DT+2, DT+3)]
        side += [lambda q=q: out_store(q) for q in range(3, 6)]
        st("conv0", dyn=True)
        conv_step(1, side)
        if fine: st("c1 compute")
        E.wait(v=xd[2]); E.wait_all_lds(force=True); E.e("s_barrier")
        if fine: st("B1")
        side = []
        if not wlate:
            poll()
            side = [lambda J=J, i=i: issue_w(J, i) for J in (-1, 0, 1) for i in range(3)]
        side += [lambda q=q: out_store(q) for q in range(6, 9)]
        st("conv1", dyn=True)
        conv_step(2, side)
        st("conv2", dyn=True)
        layernorm()
        if fine: st("ln hwrite")
        E.wait(v=dma[1]); E.wait_all_lds(force=True); E.e("s_barrier")
        if fine: st("BD")
        E.e(f"s_mul_i32 s{sTmp}, s{sPair}, 18432")
        E.e(f"s_add_u32 s{sTmp}, s{sTmp}, {HLOC}")
        E.e(f"v_add_u32 v{t0}, s{sTmp}, v{vL16}")
        for f in range(D): a_read(-1, f)
        for fi in range(18):
            xrd[fi] = E.ds(f"ds_read_b128 v[{X+4*fi}:{X+4*fi+3}], v{t0} offset:{fi*1024}")
        st("ln", dyn=True)
        for J in range(-1, 25):
            stage(J)
            if fine and J in (-1, 0, 1, 2, 12, 22, 23): st(f"stage {J}")
        if fine: st("stage 24")
        E.e("s_setprio 0")
        E.e("s_nop 7")
        for q in range(9):
            u, nt = divmod(q, 3); o = Oreg(2*u, nt)
            for dd in range(4): E.e(f"v_cvt_pk_bf16_f32 v{o+dd}, v{o+2*dd}, v{o+2*dd+1}")
        E.e(f"s_mov_b32 s{sRowP}, s{sRowC}")
        E.e(f"s_add_u32 s{sRowC}, s{sRowC}, {RSTEP*147456}")
        E.wait_all_lds(force=True)
        E.e("s_barrier")
        st("mlp", dyn=True)
        rd.clear(); gi.clear(); dma.clear()

    nst = len(stamps)
    E.L.append(".p2align 6")
    E.label(f"{name}_L")
    b0 = len(E.L)
    round_body()
    body = list(E.L[b0:])
    E.e(f"s_add_u32 s{sRound}, s{sRound}, 1")
    E.e(f"s_cmp_lt_u32 s{sRound}, {NROUND}")
    E.e(f"s_cbranch_scc1 {name}_L")
    if not stamp:
        save = len(E.L); sv = (E.nl, E.dl, E.nv, E.dv)
        round_body()
        b2 = E.L[save:]
        if b2 != body:
            for x1, x2 in zip(body, b2):
                if x1 != x2: print("DIFF", x1, "|", x2); break
        assert b2 == body, "not steady"
        del E.L[save:]
    for q in range(9): out_store(q)
    if stamp:
        E.e("s_waitcnt vmcnt(0)")
        st("done")
        E.e(f"s_add_u32 s46, s42, {240<<20}")
        E.e(f"s_addc_u32 s47, s43, 0")
        srd(E, 48, 46, 47, 1 << 20)
        E.e(f"s_lshl_b32 s{sTmp}, s2, 3")
        E.e(f"s_add_u32 s{sTmp}, s{sTmp}, s{sW}")
        E.e(f"s_lshl_b32 s{sTmp}, s{sTmp}, 8")
        E.e(f"v_lshrrev_b32 v{t0}, 2, v{vL16}")
        E.e(f"buffer_store_dword v{STAMP}, v{t0}, s[48:51], s{sTmp} offen")
        if dbgout:
            E.e(f"s_cmp_lg_u32 s2, {dbgout}")
            E.e(f"s_cbranch_scc1 {name}_end")
            E.e(f"s_cmp_lg_u32 s{sW}, 0")
            E.e(f"s_cbranch_scc1 {name}_end")
            E.e(f"v_readlane_b32 s{sTmp}, v{STAMP}, 32")
            E.e("s_nop 3")
            E.e(f"v_subrev_u32 v{t1}, s{sTmp}, v{STAMP}")
            E.e(f"v_lshrrev_b32 v{t0}, 2, v{vL16}")
            E.e(f"v_subrev_u32 v{t0}, {(32+dbgshift)*4 - 4}, v{t0}")
            E.e(f"buffer_store_dword v{t1}, v{t0}, s[80:83], 0 offen")
        global STAMPS; STAMPS = stamps
    E.label(f"{name}_end")
    E.e("s_endpgm")
    if strip:
        out = []; inm = False
        for ln in E.L:
            t = ln.strip()
            if t.startswith("; ---- stage"):
                J = int(t.split()[-1]); inm = 1 <= J <= 22
            if t.startswith("; ==== conv step"): inm = False
            if inm:
                if "bar" in strip and t.startswith("s_barrier"): continue
                if "lgkm" in strip and t.startswith("s_waitcnt lgkmcnt"): continue
                if "vmw" in strip and t.startswith("s_waitcnt vmcnt"): continue
                if "vm" in strip and t.startswith("buffer_"): continue
                if "ds" in strip and t.startswith("ds_"): continue
                if "dsw" in strip and t.startswith("ds_write"): continue
                if "prio" in strip and t.startswith("s_setprio"): continue
                if "valu" in strip and t.startswith("v_") and not t.startswith("v_mfma") and not t.startswith("v_writelane"): continue
            out.append(ln)
        E.L = out
    return header(name) + E.text() + descriptor(name, 256)

def gen_k0(name):
    E = Em()
    vL, vN, vG, vL16, t0, t1, t2 = 1, 2, 3, 4, 5, 6, 7
    sW, sTmp, sTmp2, sGw, sJ, sQ, sC2, sPb = 3, 24, 25, 50, 51, 52, 53, 58
    E.e("s_cmp_ge_u32 s2, 72")
    E.e(f"s_cbranch_scc1 {name}_end")
    E.e("s_load_dwordx4 s[40:43], s[0:1], 16")
    E.e("s_load_dwordx2 s[44:45], s[0:1], 48")
    E.e(f"v_lshrrev_b32 v{t0}, 6, v0")
    E.e(f"v_and_b32 v{vL}, 63, v0")
    E.e(f"v_readfirstlane_b32 s{sW}, v{t0}")
    E.e(f"v_and_b32 v{vN}, 15, v{vL}")
    E.e(f"v_lshrrev_b32 v{vG}, 4, v{vL}")
    E.e(f"v_lshlrev_b32 v{vL16}, 4, v{vL}")
    E.e("s_waitcnt lgkmcnt(0)")
    srd(E, 20, 44, 45, 24*24576)
    emit_prep_loads(E, name, sW, vN, vG, t0, t1, t2, sTmp, sTmp2, 8, 40)
    E.e("s_waitcnt vmcnt(0)")
    for d in range(4): E.e(f"v_lshl_or_b32 v{16+d}, v{8+2*d+1}, 16, v{8+2*d}")
    E.e(f"s_mul_i32 s{sTmp}, s51, 24576")
    E.e(f"s_lshl_b32 s{sTmp2}, s52, 10")
    E.e(f"s_add_u32 s{sTmp}, s{sTmp}, s{sTmp2}")
    E.e(f"buffer_store_dwordx4 v[16:19], v{vL16}, s[20:23], s{sTmp} offen")
    E.label(f"{name}_end")
    E.e("s_endpgm")
    return header(name) + E.text() + descriptor(name, 32)

def emit_prep_loads(E, name, sW, vN, vG, t0, t1, t2, sTmp, sTmp2, PW, wptr):
    lw2 = f"{name}_pw2"; lst = f"{name}_pst"
    sGw, sJ, sQ, sC2, sPb = 50, 51, 52, 53, 68
    E.e(f"s_lshl_b32 s{sGw}, s2, 3")
    E.e(f"s_add_u32 s{sGw}, s{sGw}, s{sW}")
    E.e(f"s_mul_i32 s{sJ}, s{sGw}, 2731")
    E.e(f"s_lshr_b32 s{sJ}, s{sJ}, 16")
    E.e(f"s_mul_i32 s{sTmp}, s{sJ}, 24")
    E.e(f"s_sub_u32 s{sQ}, s{sGw}, s{sTmp}")
    E.e(f"s_cmp_ge_u32 s{sQ}, 12")
    E.e(f"s_cbranch_scc1 {lw2}")
    srd(E, 64, wptr, wptr+1, 192*768*2)
    E.e(f"s_add_u32 s{sC2}, s{sJ}, 1")
    E.e(f"s_cmp_eq_u32 s{sC2}, 24")
    E.e(f"s_cselect_b32 s{sC2}, 0, s{sC2}")
    E.e(f"s_cmp_ge_u32 s{sQ}, 6")
    E.e(f"s_cselect_b32 s{sTmp}, 1, 0")
    E.e(f"s_mul_i32 s{sTmp2}, s{sTmp}, 6")
    E.e(f"s_sub_u32 s{sTmp2}, s{sQ}, s{sTmp2}")
    E.e(f"s_mul_i32 s{sTmp2}, s{sTmp2}, 49152")
    E.e(f"s_lshl_b32 s{sTmp}, s{sTmp}, 5")
    E.e(f"s_add_u32 s{sTmp2}, s{sTmp2}, s{sTmp}")
    E.e(f"s_lshl_b32 s{sTmp}, s{sC2}, 6")
    E.e(f"s_add_u32 s{sPb}, s{sTmp2}, s{sTmp}")
    E.e(f"v_mul_u32_u24 v{t0}, 12288, v{vG}")
    E.e(f"v_lshl_add_u32 v{t0}, v{vN}, 1, v{t0}")
    E.e("s_mov_b32 s69, 1536")
    E.e("s_mov_b32 s70, 1536")
    E.e(f"s_branch {lst}")
    E.label(lw2)
    srd(E, 64, wptr+2, wptr+3, 192*768*2)
    E.e(f"s_add_u32 s{sC2}, s{sJ}, 23")
    E.e(f"s_cmp_ge_u32 s{sC2}, 24")
    E.e(f"s_cselect_b32 s{sTmp}, 24, 0")
    E.e(f"s_sub_u32 s{sC2}, s{sC2}, s{sTmp}")
    E.e(f"s_sub_u32 s{sTmp}, s{sQ}, 12")
    E.e(f"s_lshr_b32 s{sTmp2}, s{sTmp}, 1")
    E.e(f"s_lshl_b32 s{sTmp2}, s{sTmp2}, 6")
    E.e(f"s_and_b32 s{sTmp}, s{sTmp}, 1")
    E.e(f"s_lshl_b32 s{sTmp}, s{sTmp}, 3")
    E.e(f"s_add_u32 s{sTmp2}, s{sTmp2}, s{sTmp}")
    E.e(f"s_mul_i32 s{sTmp}, s{sC2}, 12288")
    E.e(f"s_add_u32 s{sPb}, s{sTmp2}, s{sTmp}")
    E.e(f"v_lshrrev_b32 v{t1}, 2, v{vN}")
    E.e(f"v_and_b32 v{t2}, 3, v{vN}")
    E.e(f"v_lshl_add_u32 v{t1}, v{t1}, 3, v{t2}")
    E.e(f"v_mul_u32_u24 v{t0}, 1536, v{vG}")
    E.e(f"v_lshl_add_u32 v{t0}, v{t1}, 1, v{t0}")
    E.e("s_mov_b32 s69, 384")
    E.e(f"s_mov_b32 s70, {6144 - 3*384}")
    E.label(lst)
    E.e(f"s_cmp_lt_u32 s{sGw}, 576")
    E.e("s_cselect_b32 s66, s66, 0")
    last = None
    for e in range(8):
        last = E.vm(f"buffer_load_ushort v{PW+e}, v{t0}, s[64:67], s{sPb} offen")
        if e < 7: E.e(f"s_add_u32 s{sPb}, s{sPb}, s{70 if e == 3 else 69}")
    return last

if __name__ == "__main__":
    print(gen_f1("f1_kernel"))
```

```python
from em import *
import math
A_ = 2*math.sqrt(2/math.pi)*math.log2(math.e); B_ = A_*0.044715; S_ = B_**(1/3)
XBYTES = 384*384*384
SLOT = 24576; NS = 3
GBUF = NS*SLOT
PBUF = GBUF + 24576
XA, XB = PBUF, 0
T1LOC, T0LOC = 57344, GBUF
HLOC = GBUF
STLOC = 147456
F1_LDS = 163840
NROUND = 3
D = 3
WS_T = 1 << 20

def mfma(d, a, b, c=None):
    src = "0" if c is None else f"v[{c}:{c+3}]"
    return f"v_mfma_f32_16x16x32_bf16 v[{d}:{d+3}], v[{a}:{a+3}], v[{b}:{b+3}], {src}"

def gen_f1(name, stamp=False, f16=True, psched={9: 3, 4: 2, 7: 1, 8: 0}, wsite=(10, 0, 2), rsite=4, xsite=3, wait2=True, strip=(), inprep=True, pkln=True, pf=(14, 17), nprod=72, fine=False, sp=3, cprio=True, dbgout=False, dbgshift=0, stflag=' sc1', xflag='', rflag='', halfw=True, wlate=True, pfstart=False, inv=False, band=True, pf2=False, normil=False, m0once=True, wpf=True, stearly=0, sttest=None, tdma=False, wfill=True, tring=4, fintail=True):
    E = Em()
    sW, sPair, sHb = 3, 33, 35
    sTmp, sTmp2, sTmp3 = 24, 25, 28
    sSelLo, sSelHi = 26, 27
    sNegA, sS, sAh, sSh = 29, 30, 92, 93
    sR0, sC0 = 44, 45
    sBase = 31
    sTileRow = 32
    sRowP, sRowC, sRound = 54, 55, 56
    sDw, sSo, sM0w, sDwo = 57, 34, 58, 59
    vL16 = 1; vDS = 2; vXa, vXa3 = 9, 10; vT = 11; vHw = 15
    vA0, vA2, vGr, vGw, vDo = 16, 17, 18, 19, 20
    vPx = 21; ID = 24; t0, t1 = 30, 31
    TT, GT, RS, AR, GI, S, X, O = 32, 36, 40, 52, 68, 80, 104, 176
    RAW2 = 248
    STAMP = 255
    RAW0, RAW1 = X, X + 8
    def Oreg(i, nt): return O + (((i >> 1)*3 + nt)*2 + (i & 1))*4
    packed = [Oreg(2*u, nt) for u in range(3) for nt in range(3)]
    free = [q for q in range(32, 248, 4) if q not in packed]
    ACC = free[:24]; Bq = free[24:32]; EOq = free[32:36]; Tq = free[36:40]
    CT = free[40:45]
    assert all(EOq[i+1] == EOq[i] + 4 for i in (0, 2)) or True

    stamps = []
    def st(tag, dyn=False):
        if not stamp: return
        if fine and dyn: dyn = False
        if dyn:
            base = len(stamps)
            for r in range(NROUND): stamps.append(f"{tag} r{r}")
            E.e(f"s_add_u32 m0, s{sRound}, {base}")
            E.e("s_memtime s[96:97]"); E.e("s_waitcnt lgkmcnt(0)")
            E.e(f"v_writelane_b32 v{STAMP}, s96, m0")
            E.e("s_add_u32 m0, m0, 32")
            E.e("s_memrealtime s[96:97]"); E.e("s_waitcnt lgkmcnt(0)")
            E.e(f"v_writelane_b32 v{STAMP}, s96, m0")
        else:
            i = len(stamps); stamps.append(tag)
            E.e("s_memtime s[96:97]"); E.e("s_waitcnt lgkmcnt(0)")
            E.e(f"v_writelane_b32 v{STAMP}, s96, {i}")
            E.e("s_memrealtime s[96:97]"); E.e("s_waitcnt lgkmcnt(0)")
            E.e(f"v_writelane_b32 v{STAMP}, s96, {32+i}")
        E.dl = E.nl

    E.e("s_cmp_ge_u32 s2, 256")
    E.e(f"s_cbranch_scc1 {name}_end")
    E.e("s_load_dwordx4 s[36:39], s[0:1], 0")
    E.e("s_load_dwordx2 s[40:41], s[0:1], 32")
    E.e("s_load_dwordx2 s[42:43], s[0:1], 48")
    if inprep:
        E.e("s_load_dwordx4 s[72:75], s[0:1], 16")
        E.e("s_load_dwordx2 s[76:77], s[0:1], 40")
    vL, vN, vG = 32, 33, 34
    a, b, c, d_, e_, f_, g_ = 35, 36, 37, 38, 39, 40, 41
    E.e(f"v_lshrrev_b32 v{a}, 6, v0")
    E.e(f"v_and_b32 v{vL}, 63, v0")
    E.e(f"v_readfirstlane_b32 s{sW}, v{a}")
    E.e(f"v_and_b32 v{vN}, 15, v{vL}")
    E.e(f"v_lshrrev_b32 v{vG}, 4, v{vL}")
    E.e(f"v_lshlrev_b32 v{vL16}, 4, v{vL}")
    E.e(f"s_and_b32 s{sPair}, s{sW}, 3")
    E.e(f"s_lshr_b32 s{sHb}, s{sW}, 2")
    E.e(f"s_mov_b32 s{sSelLo}, 0x05040100")
    E.e(f"s_mov_b32 s{sSelHi}, 0x07060302")
    E.e(f"s_mov_b32 s{sNegA}, {f2u(-A_/S_):#x}")
    E.e(f"s_mov_b32 s{sS}, {f2u(S_):#x}")
    if f16:
        import numpy as np
        h16 = lambda x: int(np.array([x], np.float16).view(np.uint16)[0])
        E.e(f"s_mov_b32 s{sAh}, {h16(A_/S_)*0x10001:#x}")
        E.e(f"s_mov_b32 s{sSh}, {h16(S_)*0x10001:#x}")
    E.e(f"s_and_b32 s{sTmp}, s2, 7")
    E.e(f"s_lshl_b32 s{sTmp}, s{sTmp}, 5")
    E.e(f"s_lshr_b32 s{sTmp2}, s2, 3")
    E.e(f"s_add_u32 s{sTmp}, s{sTmp}, s{sTmp2}")
    if band:
        E.e(f"s_lshr_b32 s{sR0}, s{sTmp}, 5")
        E.e(f"s_mul_i32 s{sR0}, s{sR0}, 48")
        E.e(f"s_bfe_u32 s{sTmp2}, s{sTmp}, 0x10004")
        E.e(f"s_lshl_b32 s{sTmp2}, s{sTmp2}, 3")
        E.e(f"s_add_u32 s{sR0}, s{sR0}, s{sTmp2}")
    else:
        E.e(f"s_lshr_b32 s{sR0}, s{sTmp}, 4")
        E.e(f"s_mul_i32 s{sR0}, s{sR0}, 24")
    RSTEP = 16 if band else 8
    E.e(f"s_and_b32 s{sC0}, s{sTmp}, 15")
    E.e(f"s_mul_i32 s{sC0}, s{sC0}, 24")
    E.e(f"s_mul_i32 s{sM0w}, s{sW}, 7168")
    E.e(f"s_mul_i32 s{sDw}, s{sW}, 3072")
    E.e(f"s_mul_i32 s{sDwo}, s{sW}, 2688")
    E.e(f"s_cmp_eq_u32 s{sW}, 7")
    E.e(f"s_cselect_b32 s{sDwo}, 0x100000, s{sDwo}")
    E.e("s_waitcnt lgkmcnt(0)")
    srd(E, 4, 36, 37, XBYTES)
    srd(E, 16, 36, 37, XBYTES)
    srd(E, 12, 38, 39, 7*7*192*2)
    srd(E, 8, 42, 43, 24*SLOT)
    srd(E, 20, 40, 41, XBYTES)
    E.e("s_mov_b32 s22, 0")
    if stamp: E.e(f"v_mov_b32 v{STAMP}, 0")
    st("start")

    dwl = {}
    def dw_load1(cb, j, first=False):
        base = (RAW0, RAW1, RAW2)[cb]
        if first: E.e(f"v_lshrrev_b32 v{t0}, 3, v{vL16}")
        if j == 0 or first: E.e(f"s_add_u32 s71, s{sDwo}, {128*cb}")
        dwl[cb] = E.vm(f"buffer_load_ushort v{base+j}, v{t0}, s[12:15], s71 offen offset:{384*j}")
    def dw_loads():
        for cb in range(3):
            for j in range(7): dw_load1(cb, j, first=(cb == 0 and j == 0))
    def t_write(raw, loc, u, t0=t0, t1=t1):
        u0, u1 = u
        E.e(f"v_lshl_or_b32 v{u0+0}, v{raw+1}, 16, v{raw+0}")
        E.e(f"v_lshl_or_b32 v{u0+1}, v{raw+3}, 16, v{raw+2}")
        E.e(f"v_lshl_or_b32 v{u0+2}, v{raw+5}, 16, v{raw+4}")
        E.e(f"v_mov_b32 v{u0+3}, v{raw+6}")
        E.e(f"v_lshlrev_b32 v{u1+0}, 16, v{raw+0}")
        E.e(f"v_lshl_or_b32 v{u1+1}, v{raw+2}, 16, v{raw+1}")
        E.e(f"v_lshl_or_b32 v{u1+2}, v{raw+4}, 16, v{raw+3}")
        E.e(f"v_lshl_or_b32 v{u1+3}, v{raw+6}, 16, v{raw+5}")
        E.e(f"v_mul_u32_u24 v{t0}, 15, v{vL16}")
        E.e(f"s_lshl_b32 s{sTmp}, s{sW}, 5")
        E.e(f"s_add_u32 s{sTmp}, s{sTmp}, {loc}")
        E.e(f"v_add_u32 v{t0}, s{sTmp}, v{t0}")
        E.e(f"s_cmp_eq_u32 s{sW}, 7")
        E.e(f"s_cselect_b32 s{sTmp}, 0, 16")
        E.e(f"v_add_u32 v{t1}, s{sTmp}, v{t0}")
        E.ds(f"ds_write_b128 v{t0}, v[{u0}:{u0+3}]")
        E.ds(f"ds_write_b128 v{t1}, v[{u1}:{u1+3}]")

    PW = 60
    if inprep:
        pld = emit_prep_loads(E, name, sW, vN, vG, a, b, c, sTmp, sTmp2, PW, 72)
        srd(E, 80, 76, 77, 256)
        srd(E, 84, 76, 77, 256)
        E.e(f"s_cmp_lt_u32 s2, {nprod + (1 if tdma else 0)}")
        E.e("s_cselect_b32 s86, s86, 0")
        srd(E, 88, 42, 43, 24*SLOT)
        E.e(f"s_cmp_lt_u32 s2, {nprod}")
        E.e("s_cselect_b32 s90, s90, 0")
    xd = {}
    E.e(f"s_mov_b32 s{sTileRow}, s{sR0}")
    E.e(f"s_sub_u32 s{sBase}, s{sTileRow}, 3")
    E.e(f"s_mul_i32 s{sBase}, s{sBase}, 384")
    E.e(f"s_add_u32 s{sBase}, s{sBase}, s{sC0}")
    E.e(f"s_sub_u32 s{sBase}, s{sBase}, 3")
    E.e(f"s_mul_i32 s{sBase}, s{sBase}, 384")
    E.e(f"s_mul_i32 s{sTmp}, s{sW}, 448")
    E.e(f"s_sub_u32 s{sTmp2}, s{sC0}, 3")
    for q in range(7):
        P, r, rem, sl, n_, dx, tt = a, b, c, d_, e_, f_, g_
        E.e(f"v_add_u32 v{P}, s{sTmp}, v{vL}")
        if q: E.e(f"v_add_u32 v{P}, {64*q}, v{P}")
        E.e(f"v_mul_u32_u24 v{r}, 4370, v{P}")
        E.e(f"v_lshrrev_b32 v{r}, 20, v{r}")
        E.e(f"v_mul_u32_u24 v{rem}, 240, v{r}")
        E.e(f"v_sub_u32 v{rem}, v{P}, v{rem}")
        E.e(f"v_lshrrev_b32 v{sl}, 3, v{rem}")
        E.e(f"v_and_b32 v{rem}, 7, v{rem}")
        E.e(f"v_cmp_le_u32 vcc, 15, v{sl}")
        E.e(f"v_mov_b32 v{dx}, 0")
        E.e("s_nop 0")
        E.e(f"v_addc_co_u32 v{dx}, vcc, 0, v{dx}, vcc")
        E.e(f"v_mul_u32_u24 v{n_}, 15, v{dx}")
        E.e(f"v_sub_u32 v{n_}, v{sl}, v{n_}")
        E.e(f"v_lshrrev_b32 v{sl}, 1, v{n_}")
        E.e(f"v_sub_u32 v{rem}, v{rem}, v{sl}")
        E.e(f"v_and_b32 v{rem}, 7, v{rem}")
        E.e(f"v_lshl_add_u32 v{n_}, v{n_}, 1, v{dx}")
        dd = vDS + q
        E.e(f"s_mov_b32 s{sTmp3}, 147456")
        E.e(f"v_mul_lo_u32 v{dd}, v{r}, s{sTmp3}")
        E.e(f"v_mul_u32_u24 v{tt}, 384, v{n_}")
        E.e(f"v_add_u32 v{dd}, v{dd}, v{tt}")
        E.e(f"v_lshl_add_u32 v{dd}, v{rem}, 4, v{dd}")
        E.e(f"v_add_u32 v{tt}, s{sTmp2}, v{n_}")
        E.e(f"v_cmp_gt_u32 vcc, 384, v{tt}")
        E.e(f"s_movk_i32 s{sTmp3}, 3360")
        E.e(f"v_cmp_gt_u32 s[48:49], s{sTmp3}, v{P}")
        E.e("s_nop 1")
        E.e("s_and_b64 vcc, vcc, s[48:49]")
        E.e(f"v_mov_b32 v{tt}, 0x40000000")
        E.e("s_nop 0")
        E.e(f"v_cndmask_b32 v{dd}, v{tt}, v{dd}, vcc")
        E.e(f"s_add_u32 m0, s{sM0w}, {XA + 1024*q}")
        E.e(f"v_add_u32 v{t0}, s{sBase}, v{dd}")
        xd[0] = E.vm(f"buffer_load_dwordx4 v{t0}, s[4:7], 0 offen lds")
    def x_base(s):
        E.e(f"s_sub_u32 s{sBase}, s{sTileRow}, 3")
        E.e(f"s_mul_i32 s{sBase}, s{sBase}, 384")
        E.e(f"s_add_u32 s{sBase}, s{sBase}, s{sC0}")
        E.e(f"s_sub_u32 s{sBase}, s{sBase}, 3")
        E.e(f"s_mul_i32 s{sBase}, s{sBase}, 384")
        if s: E.e(f"s_add_u32 s{sBase}, s{sBase}, {128*s}")
    def x_dma(s, q, loc, tmp=None):
        tv = (t0 if (q & 1) == 0 else t1) if tmp is None else tmp + (q & 1)
        E.e(f"s_add_u32 m0, s{sM0w}, {loc + 1024*q}")
        E.e(f"v_add_u32 v{tv}, s{sBase}, v{vDS+q}")
        xd[s] = E.vm(f"buffer_load_dwordx4 v{tv}, s[4:7], 0 offen{xflag} lds")
    dw_loads()
    x_base(1)
    for q in range(7): x_dma(1, q, XB)
    pst = None
    if inprep:
        E.wait(v=pld)
        for d in range(4): E.e(f"v_lshl_or_b32 v{68+d}, v{PW+2*d+1}, 16, v{PW+2*d}")
        E.e(f"s_mul_i32 s{sTmp}, s51, 24576")
        E.e(f"s_lshl_b32 s{sTmp2}, s52, 10")
        E.e(f"s_add_u32 s{sTmp}, s{sTmp}, s{sTmp2}")
        pst = E.vm(f"buffer_store_dwordx4 v[68:71], v{vL16}, s[88:91], s{sTmp} offen sc1")
    E.e(f"s_mul_i32 s{sTmp}, s{sW}, 53")
    E.e(f"v_add_u32 v{a}, s{sTmp}, v{vL}")
    E.e(f"v_mul_u32_u24 v{b}, 2185, v{a}")
    E.e(f"v_lshrrev_b32 v{b}, 16, v{b}")
    E.e(f"v_mul_u32_u24 v{c}, 30, v{b}")
    E.e(f"v_sub_u32 v{c}, v{a}, v{c}")
    E.e(f"s_mov_b32 s{sTmp3}, 147456")
    E.e(f"v_mul_lo_u32 v{d_}, v{b}, s{sTmp3}")
    E.e(f"v_mul_u32_u24 v{e_}, 384, v{c}")
    E.e(f"v_add_u32 v{d_}, v{d_}, v{e_}")
    E.e(f"s_sub_u32 s{sTmp2}, s{sC0}, 3")
    E.e(f"v_add_u32 v{e_}, s{sTmp2}, v{c}")
    E.e(f"v_cmp_gt_u32 vcc, 384, v{e_}")
    E.e(f"s_movk_i32 s{sTmp3}, 420")
    E.e(f"v_cmp_gt_u32 s[48:49], s{sTmp3}, v{a}")
    E.e("s_nop 1")
    E.e("s_and_b64 vcc, vcc, s[48:49]")
    E.e(f"v_cmp_gt_u32 s[48:49], 53, v{vL}")
    E.e("s_nop 1")
    E.e("s_and_b64 vcc, vcc, s[48:49]")
    E.e(f"v_mov_b32 v{e_}, 0x40000000")
    E.e("s_nop 0")
    E.e(f"v_cndmask_b32 v0, v{e_}, v{d_}, vcc")
    pf0 = None
    if pf and pfstart:
        x_base(2)
        E.e(f"v_add_u32 v{t0}, s{sBase}, v0")
        pf0 = E.vm(f"buffer_load_dword v{RAW2+7 if not stamp else 72}, v{t0}, s[4:7], 0 offen")
    E.e(f"v_lshrrev_b32 v{a}, 1, v{vN}")
    E.e(f"v_add_u32 v{a}, s{sW}, v{a}")
    E.e(f"v_and_b32 v{a}, 7, v{a}")
    E.e(f"v_lshlrev_b32 v{a}, 4, v{a}")
    E.e(f"v_lshl_add_u32 v{a}, v{vN}, 7, v{a}")
    E.e(f"v_mul_u32_u24 v{b}, 3840, v{vG}")
    E.e(f"v_add_u32 v{vXa}, v{a}, v{b}")
    E.e(f"v_add_u32 v{b}, 12, v{vG}")
    E.e(f"v_min_u32 v{b}, 13, v{b}")
    E.e(f"v_mul_u32_u24 v{b}, 3840, v{b}")
    E.e(f"v_add_u32 v{vXa3}, v{a}, v{b}")
    E.e(f"v_lshrrev_b32 v{a}, 1, v{vN}")
    E.e(f"v_and_b32 v{b}, 1, v{vN}")
    E.e(f"v_sub_u32 v{a}, v{vG}, v{a}")
    E.e(f"s_mul_i32 s{sTmp}, s{sW}, 1920")
    E.e(f"s_add_u32 s{sTmp}, s{sTmp}, {T1LOC}")
    for f in range(4):
        E.e(f"v_add_u32 v{c}, {4*f}, v{a}")
        E.e(f"v_lshl_add_u32 v{d_}, v{c}, 1, v{b}")
        E.e(f"v_cmp_gt_u32 vcc, 7, v{c}")
        E.e(f"v_mov_b32 v{e_}, 14")
        E.e("s_nop 0")
        E.e(f"v_cndmask_b32 v{d_}, v{e_}, v{d_}, vcc")
        E.e(f"v_lshlrev_b32 v{d_}, 4, v{d_}")
        E.e(f"v_add_u32 v{vT+f}, s{sTmp}, v{d_}")
    E.e(f"v_mul_u32_u24 v{a}, 12, v{vG}")
    E.e(f"v_add_u32 v{a}, v{a}, v{vN}")
    E.e(f"v_lshrrev_b32 v{b}, 4, v{a}")
    E.e(f"v_and_b32 v{a}, 15, v{a}")
    E.e(f"v_lshlrev_b32 v{a}, 4, v{a}")
    E.e(f"v_lshl_add_u32 v{a}, v{b}, 10, v{a}")
    E.e(f"s_mul_i32 s{sTmp}, s{sHb}, 3072")
    E.e(f"s_lshl_b32 s{sTmp2}, s{sPair}, 8")
    E.e(f"s_add_u32 s{sTmp}, s{sTmp}, s{sTmp2}")
    E.e(f"s_add_u32 s{sTmp}, s{sTmp}, {HLOC}")
    E.e(f"v_add_u32 v{vHw}, s{sTmp}, v{a}")
    E.e(f"v_cmp_gt_u32 s[60:61], 12, v{vN}")
    E.e(f"s_mul_i32 s{sTmp}, s{sHb}, 6144")
    E.e(f"v_add_u32 v{vA0}, s{sTmp}, v{vL16}")
    E.e(f"v_add_u32 v{vA2}, {2*SLOT}, v{vA0}")
    E.e(f"s_mul_i32 s{sTmp}, s{sPair}, 3072")
    E.e(f"s_add_u32 s{sTmp}, s{sTmp}, {GBUF}")
    E.e(f"v_add_u32 v{vGr}, s{sTmp}, v{vL16}")
    E.e(f"s_lshl_b32 s{sTmp2}, s{sHb}, 3")
    E.e(f"v_add_u32 v{vGw}, s{sTmp2}, v{vGr}")
    E.e(f"v_add_u32 v{vDo}, s{sDw}, v{vL16}")
    E.e(f"s_lshr_b32 s{sTmp}, s{sPair}, 1")
    E.e(f"s_add_u32 s46, s{sR0}, s{sTmp}")
    E.e(f"s_and_b32 s{sTmp}, s{sPair}, 1")
    E.e(f"s_add_u32 s47, s{sC0}, s{sTmp}")
    E.e(f"s_mul_i32 s{sTmp3}, s{sHb}, 192")
    for nt in range(3):
        E.e(f"v_add_u32 v{a}, {16*nt}, v{vN}")
        E.e(f"v_mul_u32_u24 v{b}, 43, v{a}")
        E.e(f"v_lshrrev_b32 v{b}, 9, v{b}")
        E.e(f"v_mul_u32_u24 v{c}, 12, v{b}")
        E.e(f"v_sub_u32 v{c}, v{a}, v{c}")
        E.e(f"v_lshl_add_u32 v{b}, v{b}, 1, s46")
        E.e(f"v_lshl_add_u32 v{c}, v{c}, 1, s47")
        E.e(f"v_mul_u32_u24 v{b}, 384, v{b}")
        E.e(f"v_add_u32 v{b}, v{b}, v{c}")
        E.e(f"v_mul_u32_u24 v{b}, 384, v{b}")
        E.e(f"v_lshl_add_u32 v{b}, v{vG}, 4, v{b}")
        E.e(f"v_add_u32 v{vPx+nt}, s{sTmp3}, v{b}")
    E.e(f"v_lshrrev_b32 v{a}, 2, v{vN}")
    E.e(f"v_and_b32 v{b}, 3, v{vN}")
    E.e(f"v_and_b32 v{c}, 1, v{b}")
    E.e(f"v_lshlrev_b32 v{c}, 4, v{c}")
    E.e(f"v_mov_b32 v{d_}, 0x3f80")
    E.e(f"v_lshlrev_b32 v{d_}, v{c}, v{d_}")
    E.e(f"v_cmp_eq_u32 vcc, v{a}, v{vG}")
    E.e(f"v_mov_b32 v{c}, 0")
    E.e("s_nop 0")
    E.e(f"v_cndmask_b32 v{d_}, v{c}, v{d_}, vcc")
    E.e(f"v_cmp_gt_u32 vcc, 2, v{b}")
    E.e("s_nop 1")
    E.e(f"v_cndmask_b32 v{ID+2}, v{c}, v{d_}, vcc")
    E.e(f"v_cndmask_b32 v{ID+3}, v{d_}, v{c}, vcc")
    for i in (0, 1, 4, 5): E.e(f"v_mov_b32 v{ID+i}, 0")
    E.wait(v=dwl[2])
    t_write(RAW0, T0LOC, (44, 48))
    t_write(RAW1, T1LOC, (52, 56))
    if tdma:
        E.e(f"s_add_u32 s64, s42, {WS_T}")
        E.e("s_addc_u32 s65, s43, 0")
        E.e("s_and_b32 s65, s65, 0xffff")
        E.e(f"s_mov_b32 s66, {3*16384}")
        E.e("s_mov_b32 s67, 0x00020000")
        lbl = f"{name}_notp"
        E.e("s_cmp_lg_u32 s2, 72")
        E.e(f"s_cbranch_scc1 {lbl}")
        u0, u1 = 76, 80
        raw = RAW2
        E.e(f"v_lshl_or_b32 v{u0+0}, v{raw+1}, 16, v{raw+0}")
        E.e(f"v_lshl_or_b32 v{u0+1}, v{raw+3}, 16, v{raw+2}")
        E.e(f"v_lshl_or_b32 v{u0+2}, v{raw+5}, 16, v{raw+4}")
        E.e(f"v_mov_b32 v{u0+3}, v{raw+6}")
        E.e(f"v_lshlrev_b32 v{u1+0}, 16, v{raw+0}")
        E.e(f"v_lshl_or_b32 v{u1+1}, v{raw+2}, 16, v{raw+1}")
        E.e(f"v_lshl_or_b32 v{u1+2}, v{raw+4}, 16, v{raw+3}")
        E.e(f"v_lshl_or_b32 v{u1+3}, v{raw+6}, 16, v{raw+5}")
        E.e(f"v_mul_u32_u24 v{t0}, 15, v{vL16}")
        E.e(f"s_lshl_b32 s{sTmp}, s{sW}, 5")
        E.e(f"v_add_u32 v{t0}, s{sTmp}, v{t0}")
        E.e(f"s_cmp_eq_u32 s{sW}, 7")
        E.e(f"s_cselect_b32 s{sTmp}, 0, 16")
        E.e(f"v_add_u32 v{t1}, s{sTmp}, v{t0}")
        for cb, (q0, q1) in enumerate(((44, 48), (52, 56), (u0, u1))):
            E.e(f"s_mov_b32 s{sTmp}, {cb*16384}")
            E.vm(f"buffer_store_dwordx4 v[{q0}:{q0+3}], v{t0}, s[64:67], s{sTmp} offen sc1", skippable=True)
            E.vm(f"buffer_store_dwordx4 v[{q1}:{q1+3}], v{t1}, s[64:67], s{sTmp} offen sc1", skippable=True)
        E.label(lbl)
    if wfill:
        E.e(f"s_mul_i32 s{sTmp}, s{sPair}, 3072")
        E.e(f"s_cmp_eq_u32 s{sHb}, 0")
        E.e(f"s_cselect_b32 s78, {2*SLOT}, 0")
        E.e(f"s_cselect_b32 s79, {23*SLOT}, 0")
        E.e(f"s_add_u32 s78, s78, s{sTmp}")
        E.e(f"s_add_u32 s79, s79, s{sTmp}")
    E.e("s_mov_b32 s95, 12288")
    E.e(f"s_mov_b32 s{sRound}, 0")
    E.e(f"s_mov_b32 s{sRowP}, 0")
    E.e(f"s_mov_b32 s{sRowC}, 0")
    E.wait(v=xd[0] if not (stamp and pf0) else max(xd[0], pf0))
    E.wait_all_lds(force=True)
    E.e("s_barrier")
    if pf2:
        x_base(2)
        E.e(f"v_add_u32 v{t0}, s{sBase}, v0")
        E.vm(f"buffer_load_dword v{CT[3]}, v{t0}, s[4:7], 0 offen")
    extra = E.nv - xd[1]
    E.nv -= extra; E.dv = min(E.dv, E.nv)
    st("prologue")

    dma = {}; rd = {}; gi = {}; resid = {}
    RL, RN = 3, 3
    def out_store(q):
        u, nt = divmod(q, 3); o = Oreg(2*u, nt)
        if sttest == "lin":
            E.e(f"s_mul_i32 s97, s2, 221184")
            E.e(f"s_mul_i32 s98, s{sRound}, 73728")
            E.e(f"s_add_u32 s97, s97, s98")
            E.e(f"s_mul_i32 s98, s{sW}, 9216")
            E.e(f"s_add_u32 s97, s97, s98")
            E.e(f"s_add_u32 s97, s97, {q*1024}")
            E.vm(f"buffer_store_dwordx4 v[{o}:{o+3}], v{vL16}, s[20:23], s97 offen{stflag}")
            return
        if sttest == "none":
            E.vm(f"buffer_store_dwordx4 v[{o}:{o+3}], v{vPx+nt}, s[84:87], s{sRowP} offen offset:{u*64}{stflag}")
            return
        E.vm(f"buffer_store_dwordx4 v[{o}:{o+3}], v{vPx+nt}, s[20:23], s{sRowP} offen offset:{u*64}{stflag}")

    def conv_step(s, side=()):
        side = list(side)
        loc = XB if s == 1 else XA
        toff = 0 if s == 1 else T0LOC - T1LOC
        E.c(f"==== conv step {s}")
        E.e(f"v_add_u32 v{t0}, {loc}, v{vXa}")
        E.e(f"v_add_u32 v{t1}, {loc}, v{vXa3}")
        def rd_eo(f):
            e4, o4 = EOq[2*(f & 1)], EOq[2*(f & 1)+1]
            adr = t1 if f == 3 else t0
            off = 0 if f == 3 else f*15360
            E.ds(f"ds_read_b128 v[{e4}:{e4+3}], v{adr} offset:{off}")
            return E.ds(f"ds_read_b128 v[{o4}:{o4+3}], v{adr} offset:{off+1920}")
        TR = (Tq + [CT[2], CT[3]])[:tring]
        def rd_t(idx):
            f, c_ = divmod(idx, 8); r = TR[idx % tring]
            return E.ds(f"ds_read_b128 v[{r}:{r+3}], v{vT+f} offset:{toff + c_*240}")
        eo = {0: rd_eo(0)}; tt = {}
        for i in range(tring - 1): tt[i] = rd_t(i)
        eo[1] = rd_eo(1)
        def mf(f, c_):
            idx = f*8 + c_
            E.wait(l=tt[idx])
            acc = ACC[8*s + c_]
            E.e(mfma(acc, TR[idx % tring], Bq[c_], None if f == 0 else acc))
            if idx + tring - 1 < 32: tt[idx + tring - 1] = rd_t(idx + tring - 1)
            if side and c_ != 6 and idx % sp == 0: side.pop(0)()
        for f in range(4):
            e4, o4 = EOq[2*(f & 1)], EOq[2*(f & 1)+1]
            if cprio: E.e(f"s_setprio {3-f}")
            E.wait(l=eo[f])
            for cp in range(4):
                E.e(f"v_perm_b32 v{Bq[2*cp]}, v{o4+cp}, v{e4+cp}, s{sSelLo}")
                E.e(f"v_perm_b32 v{Bq[2*cp+1]}, v{o4+cp}, v{e4+cp}, s{sSelHi}")
            if f + 2 < 4: eo[f+2] = rd_eo(f+2)
            for c_ in range(8):
                bb = Bq[c_]
                for dd in (1, 2, 3):
                    E.e(f"v_mov_b32_dpp v{bb+dd}, v{bb} row_shl:{dd} row_mask:0xf bank_mask:0xf bound_ctrl:1")
                if c_ > 0: mf(f, c_-1)
            E.e("s_nop 1")
            mf(f, 7)
        while side: side.pop(0)()

    def poll():
        if not inprep: return
        lp = f"{name}_poll"
        E.e(f"s_cmp_lg_u32 s{sRound}, 0")
        E.e(f"s_cbranch_scc1 {lp}_done")
        E.e(f"s_cmp_lg_u32 s{sW}, 0")
        E.e(f"s_cbranch_scc1 {lp}_bar")
        E.e(f"s_mov_b32 s{sTmp2}, 0")
        E.e(f"v_mov_b32 v{t0}, 0")
        E.label(f"{lp}")
        E.e(f"buffer_load_dword v{t1}, v{t0}, s[80:83], 0 offen sc1")
        E.e("s_waitcnt vmcnt(0)")
        E.e(f"v_readfirstlane_b32 s{sTmp}, v{t1}")
        E.e(f"s_add_u32 s{sTmp2}, s{sTmp2}, 1")
        E.e(f"s_cmp_ge_u32 s{sTmp2}, 0x40000")
        E.e(f"s_cbranch_scc1 {lp}_acq")
        E.e(f"s_cmp_lt_u32 s{sTmp}, {nprod + (1 if tdma else 0)}")
        E.e(f"s_cbranch_scc1 {lp}")
        E.label(f"{lp}_acq")
        if inv:
            E.e("buffer_inv sc1")
            E.e("s_waitcnt vmcnt(0)")
        E.label(f"{lp}_bar")
        E.e("s_barrier")
        if wpf:
            E.e(f"s_lshr_b32 s{sTmp}, s2, 3")
            E.e(f"s_and_b32 s{sTmp}, s{sTmp}, 31")
            E.e(f"s_lshl_b32 s{sTmp}, s{sTmp}, 3")
            E.e(f"s_add_u32 s{sTmp}, s{sTmp}, s{sW}")
            E.e(f"s_mul_i32 s{sTmp}, s{sTmp}, {18*128}")
            E.e(f"v_lshlrev_b32 v{t0}, 3, v{vL16}")
            E.e(f"v_cmp_gt_u32 vcc, {18*128}, v{t0}")
            E.e(f"v_mov_b32 v{t1}, 0x40000000")
            E.e("s_nop 0")
            E.e(f"v_cndmask_b32 v{t0}, v{t1}, v{t0}, vcc")
            E.e(f"buffer_load_dword v{RAW2}, v{t0}, s[8:11], s{sTmp} offen")
        E.label(f"{lp}_done")

    def layernorm():
        E.c("==== layernorm")
        ST = CT[0]; ST2 = CT[1]; RHO = CT[2]; BETA = CT[3]
        wl = []
        if wlate:
            poll()
            wl = [(J, i) for J in (-1, 0, 1) for i in range(3)] if not wfill else [("fill", i) for i in range(3)]
        E.e("s_nop 7")
        if pkln:
            for h in (0, 2):
                E.e(f"v_pk_add_f32 v[{ST+h}:{ST+h+1}], v[{ACC[0]+h}:{ACC[0]+h+1}], v[{ACC[1]+h}:{ACC[1]+h+1}]")
                E.e(f"v_pk_mul_f32 v[{ST2+h}:{ST2+h+1}], v[{ACC[0]+h}:{ACC[0]+h+1}], v[{ACC[0]+h}:{ACC[0]+h+1}]")
            for ch in range(1, 24):
                for h in (0, 2):
                    x_ = f"v[{ACC[ch]+h}:{ACC[ch]+h+1}]"
                    if ch > 1: E.e(f"v_pk_add_f32 v[{ST+h}:{ST+h+1}], v[{ST+h}:{ST+h+1}], {x_}")
                    E.e(f"v_pk_fma_f32 v[{ST2+h}:{ST2+h+1}], {x_}, {x_}, v[{ST2+h}:{ST2+h+1}]")
                if wl and ch % 2 == 0: issue_w(*wl.pop(0))
        else:
            for r in range(4):
                E.e(f"v_mov_b32 v{ST+r}, v{ACC[0]+r}")
                E.e(f"v_mul_f32 v{ST2+r}, v{ACC[0]+r}, v{ACC[0]+r}")
            for ch in range(1, 24):
                for r in range(4):
                    x_ = ACC[ch] + r
                    E.e(f"v_add_f32 v{ST+r}, v{ST+r}, v{x_}")
                    E.e(f"v_fmac_f32 v{ST2+r}, v{x_}, v{x_}")
        while wl: issue_w(*wl.pop(0))
        if halfw:
            E.e(f"v_lshrrev_b32 v{t0}, 8, v{vL16}")
            E.e(f"v_mul_u32_u24 v{t0}, 192, v{t0}")
            E.e(f"v_and_b32 v{t1}, 0xf0, v{vL16}")
            E.e(f"v_add3_u32 v{t0}, v{t0}, v{t1}, s95")
            E.e(f"s_mul_i32 s{sTmp}, s{sW}, 1536")
            E.e(f"v_add_u32 v{t1}, s{sTmp}, v{t0}")
            E.e("s_mov_b64 s[62:63], exec")
            E.e("s_mov_b64 exec, s[60:61]")
            E.ds(f"ds_write_b128 v{t1}, v[{ST}:{ST+3}]")
            E.ds(f"ds_write_b128 v{t1}, v[{ST2}:{ST2+3}] offset:768")
            E.e("s_mov_b64 exec, s[62:63]")
            sstride, soff = 1536, 768
        else:
            E.e(f"v_add_u32 v{t0}, {STLOC}, v{vL16}")
            E.e(f"s_lshl_b32 s{sTmp}, s{sW}, 11")
            E.e(f"v_add_u32 v{t1}, s{sTmp}, v{t0}")
            E.wait_all_lds(force=True)
            if fine: st("ln stats")
            E.e("s_barrier")
            if fine: st("BA")
            E.ds(f"ds_write_b128 v{t1}, v[{ST}:{ST+3}]")
            E.ds(f"ds_write_b128 v{t1}, v[{ST2}:{ST2+3}] offset:1024")
            sstride, soff = 2048, 1024
        E.wait_all_lds(force=True)
        E.e("s_barrier")
        if fine: st("BB")
        RB = Bq + EOq + Tq
        for w in range(8):
            E.ds(f"ds_read_b128 v[{RB[2*w]}:{RB[2*w]+3}], v{t0} offset:{sstride*w}")
            E.ds(f"ds_read_b128 v[{RB[2*w+1]}:{RB[2*w+1]+3}], v{t0} offset:{sstride*w+soff}")
        base_id = E.nl - 16
        for w in range(1, 8):
            E.wait(l=base_id + 2*w + 2)
            for h in (0, 2):
                for k, dst in enumerate((ST, ST2)):
                    src = RB[2*w + k]
                    s0 = RB[k] if w == 1 else dst
                    E.e(f"v_pk_add_f32 v[{dst+h}:{dst+h+1}], v[{s0+h}:{s0+h+1}], v[{src+h}:{src+h+1}]")
        E.e(f"v_mov_b32 v{RHO}, {f2u(1.0/192):#x}")
        E.e(f"v_mov_b32 v{RHO+1}, {f2u(1.0/192):#x}")
        E.e(f"v_mov_b32 v{RHO+2}, {f2u(1e-5):#x}")
        for h in (0, 2):
            E.e(f"v_pk_mul_f32 v[{ST+h}:{ST+h+1}], v[{ST+h}:{ST+h+1}], v[{RHO}:{RHO+1}]")
            E.e(f"v_pk_mul_f32 v[{ST2+h}:{ST2+h+1}], v[{ST2+h}:{ST2+h+1}], v[{RHO}:{RHO+1}]")
        for h in (0, 2):
            E.e(f"v_pk_fma_f32 v[{ST2+h}:{ST2+h+1}], v[{ST+h}:{ST+h+1}], v[{ST+h}:{ST+h+1}], v[{ST2+h}:{ST2+h+1}] neg_lo:[1,0,0] neg_hi:[1,0,0]")
        for r in range(4): E.e(f"v_max_f32 v{ST2+r}, 0, v{ST2+r}")
        for r in range(4): E.e(f"v_add_f32 v{ST2+r}, v{RHO+2}, v{ST2+r}")
        for r in range(4): E.e(f"v_rsq_f32 v{RHO+r}, v{ST2+r}")
        E.e("s_nop 0")
        for r in range(4): E.e(f"v_mul_f32 v{RHO+r}, s{sS}, v{RHO+r}")
        for h in (0, 2):
            E.e(f"v_pk_mul_f32 v[{BETA+h}:{BETA+h+1}], v[{ST+h}:{ST+h+1}], v[{RHO+h}:{RHO+h+1}]")
        if fine: st("ln rho")
        E.e(f"v_add_u32 v{t0}, 32768, v{vHw}")
        E.e("s_mov_b64 s[62:63], exec")
        E.e("s_mov_b64 exec, s[60:61]")
        ta, tb = EOq[0], EOq[0] + 1
        for cg in range(3):
            if pkln and (normil or cg == 0):
                for ch in (range(8*cg, 8*cg + 8) if normil else range(24)):
                    for h in (0, 2):
                        x_ = f"v[{ACC[ch]+h}:{ACC[ch]+h+1}]"
                        E.e(f"v_pk_fma_f32 {x_}, {x_}, v[{RHO+h}:{RHO+h+1}], v[{BETA+h}:{BETA+h+1}] neg_lo:[0,0,1] neg_hi:[0,0,1]")
            for r in range(4):
                o = Bq[(cg*4 + r) & 7]
                for cp in range(4):
                    a0 = ACC[8*cg + 2*cp] + r; a1 = ACC[8*cg + 2*cp + 1] + r
                    if pkln:
                        E.e(f"v_cvt_pk_bf16_f32 v{o+cp}, v{a0}, v{a1}")
                    else:
                        E.e(f"v_fma_f32 v{ta}, v{a0}, v{RHO+r}, -v{BETA+r}")
                        E.e(f"v_fma_f32 v{tb}, v{a1}, v{RHO+r}, -v{BETA+r}")
                        E.e(f"v_cvt_pk_bf16_f32 v{o+cp}, v{ta}, v{tb}")
                off = r*18432 + cg*6144
                adr = vHw
                if off >= 32768: adr, off = t0, off - 32768
                E.ds(f"ds_write_b128 v{adr}, v[{o}:{o+3}] offset:{off}")
        E.e("s_mov_b64 exec, s[62:63]")

    wuid = [0]
    def issue_w(J, i):
        if J == "fill":
            if i == 0: E.e("s_mov_b32 m0, s78")
            if i == 0: E.e("s_nop 0")
            dma[-1] = dma[0] = E.vm(f"buffer_load_dwordx4 v{vL16}, s[8:11], s79 offen offset:{i*1024} lds")
            return
        j = J % 24; slot = (J % NS)*SLOT
        skip = None
        if halfw and J in (-1, 0): skip = 1
        if halfw and J in (23, 24): skip = 0
        if skip is not None:
            lbl = f"{name}_ws{J % 100}_{i}".replace("-", "m")
            E.e(f"s_cmp_eq_u32 s{sHb}, {skip}")
            E.e(f"s_cbranch_scc1 {lbl}")
        if m0once and J >= 2:
            if i == 0:
                E.e(f"s_add_u32 m0, s{sDw}, {slot}")
                E.e(f"s_mov_b32 s94, {j*SLOT}")
            dma[J] = E.vm(f"buffer_load_dwordx4 v{vDo}, s[8:11], s94 offen offset:{i*1024} lds", skippable=skip is not None)
        else:
            E.e(f"s_add_u32 m0, s{sDw}, {slot + i*1024}")
            E.e(f"s_mov_b32 s{sSo}, {j*SLOT + i*1024}")
            dma[J] = E.vm(f"buffer_load_dwordx4 v{vDo}, s[8:11], s{sSo} offen lds", skippable=skip is not None)
        if skip is not None: E.label(lbl)
    def a_read(J, f):
        slot = J % NS
        base, off = (vA2, (slot-2)*SLOT) if slot >= 2 else (vA0, slot*SLOT)
        o = off + (f*1024 if f < 6 else 12288 + (f-6)*1024)
        r = AR + 4*(((J+1)*12 + f) & 3)
        rd[(J, f)] = E.ds(f"ds_read_b128 v[{r}:{r+3}], v{base} offset:{o}")
    def gelu_half(c_, p, hf2):
        nt, hf = divmod(p, 2)
        uA = S + 12*(c_ & 1) + 4*nt + 2*hf; uB = uA + 1
        ta = TT + 2*(p & 1); tb = ta + 1
        gd = GT + 2*(nt & 1) + hf
        if f16:
            if hf2 == 0:
                return [f"v_cvt_pk_f16_f32 v{ta}, v{uA}, v{uB}",
                        f"v_pk_fma_f16 v{tb}, v{ta}, v{ta}, s{sAh}",
                        f"v_pk_mul_f16 v{tb}, v{tb}, v{ta} neg_lo:[1,0] neg_hi:[1,0]",
                        f"v_exp_f16_sdwa v{ta}, v{tb} dst_sel:WORD_0 dst_unused:UNUSED_PAD src0_sel:WORD_0",
                        f"v_exp_f16_sdwa v{ta}, v{tb} dst_sel:WORD_1 dst_unused:UNUSED_PRESERVE src0_sel:WORD_1"]
            return [f"v_pk_fma_f16 v{ta}, v{ta}, s{sSh}, s{sSh}",
                    f"v_rcp_f16_sdwa v{tb}, v{ta} dst_sel:WORD_0 dst_unused:UNUSED_PAD src0_sel:WORD_0",
                    f"v_rcp_f16_sdwa v{tb}, v{ta} dst_sel:WORD_1 dst_unused:UNUSED_PRESERVE src0_sel:WORD_1",
                    f"v_fma_mix_f32 v{ta}, v{uA}, v{tb}, 0 op_sel_hi:[0,1,0]",
                    f"v_fma_mix_f32 v{tb}, v{uB}, v{tb}, 0 op_sel:[0,1,0] op_sel_hi:[0,1,0]",
                    f"v_cvt_pk_bf16_f32 v{gd}, v{ta}, v{tb}"]
        if hf2 == 0:
            return [f"v_fma_f32 v{ta}, -v{uA}, v{uA}, s{sNegA}", f"v_fma_f32 v{tb}, -v{uB}, v{uB}, s{sNegA}",
                    f"v_mul_f32 v{ta}, v{ta}, v{uA}", f"v_mul_f32 v{tb}, v{tb}, v{uB}",
                    f"v_exp_f32 v{ta}, v{ta}", f"v_exp_f32 v{tb}, v{tb}"]
        return [f"v_fma_f32 v{ta}, v{ta}, s{sS}, s{sS}", f"v_fma_f32 v{tb}, v{tb}, s{sS}, s{sS}",
                f"v_rcp_f32 v{ta}, v{ta}", f"v_rcp_f32 v{tb}, v{tb}",
                f"v_mul_f32 v{ta}, v{uA}, v{ta}", f"v_mul_f32 v{tb}, v{uB}, v{tb}",
                f"v_cvt_pk_bf16_f32 v{gd}, v{ta}, v{tb}"]

    def stage(J, final=False):
        g1 = 0 <= J + 1 <= 23; g2 = 0 <= J - 1 <= 23
        last = J == 24
        E.c(f"---- stage {J}")
        def needs_frag(JJ, f): return (0 <= JJ + 1 <= 23) if f < 6 else (0 <= JJ - 1 <= 23)
        for g in range(12):
            gg = (g - 8) % 12
            c_ = (J + 1) if g >= 8 else J
            p, hf2 = divmod(gg, 2)
            dog = 0 <= c_ <= 23
            ops = gelu_half(c_, p, hf2) if dog else []
            if f16 and ops: segs = [ops[0:2], ops[2:3], ops[3:]] if hf2 == 1 else [ops[0:2], ops[2:4], ops[4:]]
            else: segs = [ops[0:2], ops[2:4], ops[4:]]
            ar = AR + 4*(((J+1)*12 + g) & 3)
            domf = g1 if g < 6 else g2
            if psched and g in psched and g != 9 and not last: E.e(f"s_setprio {psched[g]}")
            if J == -1 and g == 8: E.e("s_nop 7")
            if domf:
                need = rd[(J, g)]
                if wait2 and g % 2 == 0 and (J, g+1) in rd and needs_frag(J, g+1): need = max(need, rd[(J, g+1)])
                if g == 6: need = max(need, gi[2])
                if J == -1 and g < 6: need = max(need, xrd[3*g+2])
                E.wait(l=need)
            for nt in range(3):
                if domf:
                    if g < 6:
                        dd = S + 12*((J+1) & 1) + 4*nt
                        E.e(mfma(dd, ar, X + (g*3+nt)*4, None if g == 0 else dd))
                    else:
                        o = Oreg(g-6, nt)
                        E.e(mfma(o, ar, GI + 4*nt, None if J == 1 else o))
                elif f16 and ops and nt > 0: E.e("s_nop 0")
                if nt == 0:
                    if g == 9 and not final:
                        if not last and (J + 1) <= 24 and (J+1) in dma: E.wait(v=dma[J+1])
                        E.wait_all_lds(force=True)
                        E.e("s_barrier")
                        if psched and 9 in psched and not last: E.e(f"s_setprio {psched[9]}")
                        if last:
                            if tdma: prep_next_c(1)
                            x_base(1)
                    if g + D < 12:
                        if needs_frag(J, g + D) and (J, g + D) not in rd: a_read(J, g + D)
                    elif not last:
                        f2 = g + D - 12
                        if needs_frag(J+1, f2): a_read(J+1, f2)
                    if g < 3 and g2:
                        gi[g] = E.ds(f"ds_read_b128 v[{GI+4*g}:{GI+4*g+3}], v{vGr} offset:{((J-1) & 1)*12288 + g*1024}")
                for o_ in segs[nt]: E.e(o_)
            if dog and hf2 == 1 and (p & 1) == 1:
                nt = p >> 1; gd = GT + 2*(nt & 1)
                E.ds(f"ds_write_b64 v{vGw}, v[{gd}:{gd+1}] offset:{(c_ & 1)*12288 + nt*1024}")
            if final:
                if g in (9, 11):
                    u = (g - 9)//2
                    for nt in range(3):
                        o = Oreg(2*u, nt)
                        for dd in range(4): E.e(f"v_cvt_pk_bf16_f32 v{o+dd}, v{o+2*dd}, v{o+2*dd+1}")
                        E.vm(f"buffer_store_dwordx4 v[{o}:{o+3}], v{vPx+nt}, s[20:23], s{sRowC} offen offset:{u*64}{stflag}")
                continue
            if last:
                if g >= 9:
                    for q in {9: (0, 1, 2), 10: (3, 4), 11: (5, 6)}[g]: x_dma(1, q, XB)
                if g == 11 and not tdma: prep_next_c(1)
                continue
            if wfill and J == -1 and g in (0, 2, 4): issue_w(1, g // 2)
            for i, gq in enumerate(wsite):
                if g == gq:
                    JJ = J + NS if gq >= 9 else J + NS - 1
                    if 2 <= JJ <= 24: issue_w(JJ, i)
            if g == xsite and 3 <= J < 10:
                if J == 3: x_base(0)
                x_dma(0, J - 3, XA)
            if g == rsite and 2 <= J < 11:
                q = J - 2; u, nt = divmod(q, 3); r = RS + 4*(q % RN)
                resid[q] = E.vm(f"buffer_load_dwordx4 v[{r}:{r+3}], v{vPx+nt}, s[16:19], s{sRowC} offen offset:{u*64}{rflag}")
            if g == rsite - 1 and 2 + RL <= J < 11 + RL:
                q = J - 2 - RL; u, nt = divmod(q, 3)
                E.wait(v=resid[q])
                for p2 in range(2):
                    o = Oreg(2*u + p2, nt)
                    E.e(mfma(o, ID + (2 if p2 == 0 else 0), RS + 4*(q % RN), o))
            if pf and g == xsite and J in pf:
                sp = 1 + pf.index(J)
                x_base(sp)
                E.e(f"v_add_u32 v{t0}, s{sBase}, v0")
                E.vm(f"buffer_load_dword v{RAW2}, v{t0}, s[4:7], 0 offen")
            if not tdma and J == 19 and 1 <= g <= 7: dw_load1(2, g - 1, first=(g == 1))
            if not tdma and J == 22 and g >= 6: dw_load1(0, g - 6, first=(g == 6))
            if not tdma and J == 23 and g <= 7:
                if g == 0: dw_load1(0, 6)
                else: dw_load1(1, g - 1)
            if J == 0 and g == 6:
                E.e(f"s_add_u32 s{sTileRow}, s{sTileRow}, {RSTEP}")
                E.e(f"s_cmp_eq_u32 s{sRound}, {NROUND-1}")
                E.e(f"s_cselect_b32 s6, 0, s6")
                E.e(f"s_mov_b32 s22, {XBYTES}")

    def t_dma(cb, loc, i, skippable=False):
        if i == 0:
            E.e(f"s_lshl_b32 s{sTmp}, s{sW}, 11")
            E.e(f"s_add_u32 m0, s{sTmp}, {loc}")
            E.e(f"s_add_u32 s99, s{sTmp}, {cb*16384}")
        return E.vm(f"buffer_load_dwordx4 v{vL16}, s[64:67], s99 offen offset:{i*1024} lds", skippable=skippable)

    def prep_next_c(part):
        if part == 0:
            x_base(1)
            for q in range(7): x_dma(1, q, XB)
        elif tdma:
            for i in range(2): tdm["t0"] = t_dma(0, T0LOC, i)
            for i in range(2): tdm["t0"] = t_dma(1, T1LOC, i)
        else:
            E.wait(v=dwl[1])
            t_write(RAW0, T0LOC, (S, S+4))
            t_write(RAW1, T1LOC, (S+8, S+12))

    xrd = {}; tdm = {}
    state = {"round0": None}
    def round_body():
        conv_step(0, [lambda q=q: out_store(q) for q in range(3) if q >= stearly])
        if fine: st("c0 compute")
        E.wait(v=xd[1]); E.wait_all_lds(force=True); E.e("s_barrier")
        if fine: st("B0")
        DT = CT[4]
        def signal():
            lbl = f"{name}_nosig"
            E.e(f"s_cmp_lg_u32 s{sRound}, 0")
            E.e(f"s_cbranch_scc1 {lbl}")
            E.e(f"s_cmp_eq_u32 s{sW}, 0")
            E.e(f"s_cselect_b32 s86, s86, 0")
            E.e(f"v_mov_b32 v{DT+2}, 0")
            E.e(f"v_mov_b32 v{DT+3}, 1")
            E.e("s_mov_b64 s[62:63], exec")
            E.e("s_mov_b64 exec, 1")
            E.vm(f"buffer_atomic_add v{DT+3}, v{DT+2}, s[84:87], 0 offen sc1", skippable=True)
            E.e("s_mov_b64 exec, s[62:63]")
            E.label(lbl)
        side = []
        if inprep: side.append(signal)
        x_base(2)
        side += [lambda q=q: x_dma(2, q, XA, tmp=DT) for q in range(7)]
        if tdma:
            lbl = f"{name}_t2l"
            E.e(f"s_cmp_lg_u32 s{sRound}, 0")
            E.e(f"s_cbranch_scc1 {lbl}")
            nl, dl = E.nl, E.dl
            t_write(RAW2, T0LOC, (CT[0], CT[1]), DT+2, DT+3)
            E.e("s_waitcnt lgkmcnt(0)")
            E.nl, E.dl = nl, dl
            E.label(lbl)
            def t2dma():
                l2 = f"{name}_t2d"
                E.e(f"s_cmp_eq_u32 s{sRound}, 0")
                E.e(f"s_cbranch_scc1 {l2}")
                for i in range(2): tdm["t2"] = t_dma(2, T0LOC, i, skippable=True)
                E.label(l2)
            side.insert(1 if inprep else 0, t2dma)
        else:
            side += [lambda: t_write(RAW2, T0LOC, (CT[0], CT[1]), DT+2, DT+3)]
        side += [lambda q=q: out_store(q) for q in range(3, 6) if q >= stearly]
        st("conv0", dyn=True)
        conv_step(1, side)
        if fine: st("c1 compute")
        E.wait(v=max(xd[2], tdm.get("t2", 0))); E.wait_all_lds(force=True); E.e("s_barrier")
        if fine: st("B1")
        side = []
        if not wlate:
            poll()
            side = [lambda J=J, i=i: issue_w(J, i) for J in (-1, 0, 1) for i in range(3)]
        side += [lambda q=q: out_store(q) for q in range(6, 9) if q >= stearly]
        st("conv1", dyn=True)
        conv_step(2, side)
        st("conv2", dyn=True)
        layernorm()
        if fine: st("ln hwrite")
        E.wait(v=dma[0 if wfill else 1]); E.wait_all_lds(force=True); E.e("s_barrier")
        if fine: st("BD")
        E.e(f"s_mul_i32 s{sTmp}, s{sPair}, 18432")
        E.e(f"s_add_u32 s{sTmp}, s{sTmp}, {HLOC}")
        E.e(f"v_add_u32 v{t0}, s{sTmp}, v{vL16}")
        for f in range(D): a_read(-1, f)
        for fi in range(18):
            xrd[fi] = E.ds(f"ds_read_b128 v[{X+4*fi}:{X+4*fi+3}], v{t0} offset:{fi*1024}")
        st("ln", dyn=True)
        for J in range(-1, 25):
            if J == 24 and fintail:
                E.e(f"s_cmp_eq_u32 s{sRound}, {NROUND-1}")
                E.e(f"s_cbranch_scc1 {name}_final")
                snap = (E.nl, E.dl, E.nv, E.dv, dict(rd), dict(gi), set(E.skip))
                main = E.L; E.L = []
                stage(24, final=True)
                E.e("s_nop 7")
                for nt in range(3):
                    o = Oreg(4, nt)
                    for dd in range(4): E.e(f"v_cvt_pk_bf16_f32 v{o+dd}, v{o+2*dd}, v{o+2*dd+1}")
                    E.vm(f"buffer_store_dwordx4 v[{o}:{o+3}], v{vPx+nt}, s[20:23], s{sRowC} offen offset:128{stflag}")
                state["final"] = E.L; E.L = main
                E.nl, E.dl, E.nv, E.dv = snap[:4]
                rd.clear(); rd.update(snap[4]); gi.clear(); gi.update(snap[5]); E.skip = snap[6]
            stage(J)
            if fine and J in (-1, 0, 1, 2, 12, 22, 23): st(f"stage {J}")
        if fine: st("stage 24")
        E.e("s_setprio 0")
        E.e("s_nop 7")
        E.e(f"s_mov_b32 s{sRowP}, s{sRowC}")
        for q in range(9):
            u, nt = divmod(q, 3); o = Oreg(2*u, nt)
            for dd in range(4): E.e(f"v_cvt_pk_bf16_f32 v{o+dd}, v{o+2*dd}, v{o+2*dd+1}")
            if q < stearly: out_store(q)
        E.e(f"s_add_u32 s{sRowC}, s{sRowC}, {RSTEP*147456}")
        if tdma: E.wait(v=tdm["t0"])
        E.wait_all_lds(force=True)
        E.e("s_barrier")
        st("mlp", dyn=True)
        rd.clear(); gi.clear(); dma.clear()
        if stearly:
            for i in range(E.nv - stearly + 1, E.nv + 1): E.skip.add(i)

    nst = len(stamps)
    E.L.append(".p2align 6")
    E.label(f"{name}_L")
    b0 = len(E.L)
    round_body()
    body = list(E.L[b0:])
    E.e(f"s_add_u32 s{sRound}, s{sRound}, 1")
    E.e(f"s_cmp_lt_u32 s{sRound}, {NROUND}")
    E.e(f"s_cbranch_scc1 {name}_L")
    if not stamp:
        save = len(E.L); sv = (E.nl, E.dl, E.nv, E.dv)
        round_body()
        b2 = E.L[save:]
        if b2 != body:
            for x1, x2 in zip(body, b2):
                if x1 != x2: print("DIFF", x1, "|", x2); break
        assert b2 == body, "not steady"
        del E.L[save:]
    if fintail:
        E.label(f"{name}_final")
        E.L += state["final"]
        if stamp:
            i = stamps.index("mlp r2") if "mlp r2" in stamps else None
            if i is not None:
                E.e("s_memtime s[96:97]"); E.e("s_waitcnt lgkmcnt(0)"); E.e(f"v_writelane_b32 v{STAMP}, s96, {i}")
                E.e("s_memrealtime s[96:97]"); E.e("s_waitcnt lgkmcnt(0)"); E.e(f"v_writelane_b32 v{STAMP}, s96, {32+i}")
    else:
        for q in range(stearly, 9): out_store(q)
    if stamp:
        E.e("s_waitcnt vmcnt(0)")
        st("done")
        E.e(f"s_add_u32 s46, s42, {240<<20}")
        E.e(f"s_addc_u32 s47, s43, 0")
        srd(E, 48, 46, 47, 1 << 20)
        E.e(f"s_lshl_b32 s{sTmp}, s2, 3")
        E.e(f"s_add_u32 s{sTmp}, s{sTmp}, s{sW}")
        E.e(f"s_lshl_b32 s{sTmp}, s{sTmp}, 8")
        E.e(f"v_lshrrev_b32 v{t0}, 2, v{vL16}")
        E.e(f"buffer_store_dword v{STAMP}, v{t0}, s[48:51], s{sTmp} offen")
        if dbgout:
            E.e(f"s_cmp_lg_u32 s2, {dbgout}")
            E.e(f"s_cbranch_scc1 {name}_end")
            E.e(f"s_cmp_lg_u32 s{sW}, 0")
            E.e(f"s_cbranch_scc1 {name}_end")
            E.e(f"v_readlane_b32 s{sTmp}, v{STAMP}, 32")
            E.e("s_nop 3")
            E.e(f"v_subrev_u32 v{t1}, s{sTmp}, v{STAMP}")
            E.e(f"v_lshrrev_b32 v{t0}, 2, v{vL16}")
            E.e(f"v_subrev_u32 v{t0}, {(32+dbgshift)*4 - 4}, v{t0}")
            E.e(f"buffer_store_dword v{t1}, v{t0}, s[80:83], 0 offen")
        global STAMPS; STAMPS = stamps
    E.label(f"{name}_end")
    E.e("s_endpgm")
    if strip:
        out = []; inm = False
        for ln in E.L:
            t = ln.strip()
            if t.startswith("; ---- stage"):
                J = int(t.split()[-1]); inm = 1 <= J <= 22
            if t.startswith("; ==== conv step"): inm = False
            if inm:
                if "bar" in strip and t.startswith("s_barrier"): continue
                if "lgkm" in strip and t.startswith("s_waitcnt lgkmcnt"): continue
                if "vmw" in strip and t.startswith("s_waitcnt vmcnt"): continue
                if "vm" in strip and t.startswith("buffer_"): continue
                if "ds" in strip and t.startswith("ds_"): continue
                if "dsw" in strip and t.startswith("ds_write"): continue
                if "prio" in strip and t.startswith("s_setprio"): continue
                if "valu" in strip and t.startswith("v_") and not t.startswith("v_mfma") and not t.startswith("v_writelane"): continue
            out.append(ln)
        E.L = out
    return header(name) + E.text() + descriptor(name, 256)

def gen_k0(name):
    E = Em()
    vL, vN, vG, vL16, t0, t1, t2 = 1, 2, 3, 4, 5, 6, 7
    sW, sTmp, sTmp2, sGw, sJ, sQ, sC2, sPb = 3, 24, 25, 50, 51, 52, 53, 58
    E.e("s_cmp_ge_u32 s2, 72")
    E.e(f"s_cbranch_scc1 {name}_end")
    E.e("s_load_dwordx4 s[40:43], s[0:1], 16")
    E.e("s_load_dwordx2 s[44:45], s[0:1], 48")
    E.e(f"v_lshrrev_b32 v{t0}, 6, v0")
    E.e(f"v_and_b32 v{vL}, 63, v0")
    E.e(f"v_readfirstlane_b32 s{sW}, v{t0}")
    E.e(f"v_and_b32 v{vN}, 15, v{vL}")
    E.e(f"v_lshrrev_b32 v{vG}, 4, v{vL}")
    E.e(f"v_lshlrev_b32 v{vL16}, 4, v{vL}")
    E.e("s_waitcnt lgkmcnt(0)")
    srd(E, 20, 44, 45, 24*24576)
    emit_prep_loads(E, name, sW, vN, vG, t0, t1, t2, sTmp, sTmp2, 8, 40)
    E.e("s_waitcnt vmcnt(0)")
    for d in range(4): E.e(f"v_lshl_or_b32 v{16+d}, v{8+2*d+1}, 16, v{8+2*d}")
    E.e(f"s_mul_i32 s{sTmp}, s51, 24576")
    E.e(f"s_lshl_b32 s{sTmp2}, s52, 10")
    E.e(f"s_add_u32 s{sTmp}, s{sTmp}, s{sTmp2}")
    E.e(f"buffer_store_dwordx4 v[16:19], v{vL16}, s[20:23], s{sTmp} offen")
    E.label(f"{name}_end")
    E.e("s_endpgm")
    return header(name) + E.text() + descriptor(name, 32)

def emit_prep_loads(E, name, sW, vN, vG, t0, t1, t2, sTmp, sTmp2, PW, wptr):
    lw2 = f"{name}_pw2"; lst = f"{name}_pst"
    sGw, sJ, sQ, sC2, sPb = 50, 51, 52, 53, 68
    E.e(f"s_lshl_b32 s{sGw}, s2, 3")
    E.e(f"s_add_u32 s{sGw}, s{sGw}, s{sW}")
    E.e(f"s_mul_i32 s{sJ}, s{sGw}, 2731")
    E.e(f"s_lshr_b32 s{sJ}, s{sJ}, 16")
    E.e(f"s_mul_i32 s{sTmp}, s{sJ}, 24")
    E.e(f"s_sub_u32 s{sQ}, s{sGw}, s{sTmp}")
    E.e(f"s_cmp_ge_u32 s{sQ}, 12")
    E.e(f"s_cbranch_scc1 {lw2}")
    srd(E, 64, wptr, wptr+1, 192*768*2)
    E.e(f"s_add_u32 s{sC2}, s{sJ}, 1")
    E.e(f"s_cmp_eq_u32 s{sC2}, 24")
    E.e(f"s_cselect_b32 s{sC2}, 0, s{sC2}")
    E.e(f"s_cmp_ge_u32 s{sQ}, 6")
    E.e(f"s_cselect_b32 s{sTmp}, 1, 0")
    E.e(f"s_mul_i32 s{sTmp2}, s{sTmp}, 6")
    E.e(f"s_sub_u32 s{sTmp2}, s{sQ}, s{sTmp2}")
    E.e(f"s_mul_i32 s{sTmp2}, s{sTmp2}, 49152")
    E.e(f"s_lshl_b32 s{sTmp}, s{sTmp}, 5")
    E.e(f"s_add_u32 s{sTmp2}, s{sTmp2}, s{sTmp}")
    E.e(f"s_lshl_b32 s{sTmp}, s{sC2}, 6")
    E.e(f"s_add_u32 s{sPb}, s{sTmp2}, s{sTmp}")
    E.e(f"v_mul_u32_u24 v{t0}, 12288, v{vG}")
    E.e(f"v_lshl_add_u32 v{t0}, v{vN}, 1, v{t0}")
    E.e("s_mov_b32 s69, 1536")
    E.e("s_mov_b32 s70, 1536")
    E.e(f"s_branch {lst}")
    E.label(lw2)
    srd(E, 64, wptr+2, wptr+3, 192*768*2)
    E.e(f"s_add_u32 s{sC2}, s{sJ}, 23")
    E.e(f"s_cmp_ge_u32 s{sC2}, 24")
    E.e(f"s_cselect_b32 s{sTmp}, 24, 0")
    E.e(f"s_sub_u32 s{sC2}, s{sC2}, s{sTmp}")
    E.e(f"s_sub_u32 s{sTmp}, s{sQ}, 12")
    E.e(f"s_lshr_b32 s{sTmp2}, s{sTmp}, 1")
    E.e(f"s_lshl_b32 s{sTmp2}, s{sTmp2}, 6")
    E.e(f"s_and_b32 s{sTmp}, s{sTmp}, 1")
    E.e(f"s_lshl_b32 s{sTmp}, s{sTmp}, 3")
    E.e(f"s_add_u32 s{sTmp2}, s{sTmp2}, s{sTmp}")
    E.e(f"s_mul_i32 s{sTmp}, s{sC2}, 12288")
    E.e(f"s_add_u32 s{sPb}, s{sTmp2}, s{sTmp}")
    E.e(f"v_lshrrev_b32 v{t1}, 2, v{vN}")
    E.e(f"v_and_b32 v{t2}, 3, v{vN}")
    E.e(f"v_lshl_add_u32 v{t1}, v{t1}, 3, v{t2}")
    E.e(f"v_mul_u32_u24 v{t0}, 1536, v{vG}")
    E.e(f"v_lshl_add_u32 v{t0}, v{t1}, 1, v{t0}")
    E.e("s_mov_b32 s69, 384")
    E.e(f"s_mov_b32 s70, {6144 - 3*384}")
    E.label(lst)
    E.e(f"s_cmp_lt_u32 s{sGw}, 576")
    E.e("s_cselect_b32 s66, s66, 0")
    last = None
    for e in range(8):
        last = E.vm(f"buffer_load_ushort v{PW+e}, v{t0}, s[64:67], s{sPb} offen")
        if e < 7: E.e(f"s_add_u32 s{sPb}, s{sPb}, s{70 if e == 3 else 69}")
    return last

if __name__ == "__main__":
    print(gen_f1("f1_kernel"))
```

```python
from em import *
import math
A_ = 2*math.sqrt(2/math.pi)*math.log2(math.e); B_ = A_*0.044715; S_ = B_**(1/3)
XBYTES = 384*384*384
SLOT = 24576; NS = 3
GBUF = NS*SLOT
PBUF = GBUF + 24576
XA, XB = PBUF, 0
T1LOC, T0LOC = 57344, GBUF
HLOC = GBUF
STLOC = 147456
F1_LDS = 163840
NROUND = 3
D = 3
WS_T = 1 << 20

def mfma(d, a, b, c=None):
    src = "0" if c is None else f"v[{c}:{c+3}]"
    return f"v_mfma_f32_16x16x32_bf16 v[{d}:{d+3}], v[{a}:{a+3}], v[{b}:{b+3}], {src}"

def gen_f1(name, stamp=False, f16=True, psched={9: 3, 4: 2, 7: 1, 8: 0}, wsite=(10, 0, 2), rsite=4, xsite=3, wait2=True, strip=(), inprep=True, pkln=True, pf=(14, 17), nprod=72, fine=False, sp=3, cprio=True, dbgout=False, dbgshift=0, stflag=' sc1', xflag='', rflag='', halfw=True, wlate=True, pfstart=False, inv=False, band=True, pf2=False, normil=False, m0once=True, wpf=True, stearly=0, sttest=None, tdma=False, wfill=True, tring=4, fintail=True, xbearly=True, sp1=1, mst=False):
    E = Em()
    sW, sPair, sHb = 3, 33, 35
    sTmp, sTmp2, sTmp3 = 24, 25, 28
    sSelLo, sSelHi = 26, 27
    sNegA, sS, sAh, sSh = 29, 30, 92, 93
    sR0, sC0 = 44, 45
    sBase = 31
    sTileRow = 32
    sRowP, sRowC, sRound = 54, 55, 56
    sDw, sSo, sM0w, sDwo = 57, 34, 58, 59
    vL16 = 1; vDS = 2; vXa, vXa3 = 9, 10; vT = 11; vHw = 15
    vA0, vA2, vGr, vGw, vDo = 16, 17, 18, 19, 20
    vPx = 21; ID = 24; t0, t1 = 30, 31
    TT, GT, RS, AR, GI, S, X, O = 32, 36, 40, 52, 68, 80, 104, 176
    RAW2 = 248
    STAMP = 255
    RAW0, RAW1 = X, X + 8
    def Oreg(i, nt): return O + (((i >> 1)*3 + nt)*2 + (i & 1))*4
    packed = [Oreg(2*u, nt) for u in range(3) for nt in range(3)]
    free = [q for q in range(32, 248, 4) if q not in packed]
    ACC = free[:24]; Bq = free[24:32]; EOq = free[32:36]; Tq = free[36:40]
    CT = free[40:45]
    assert all(EOq[i+1] == EOq[i] + 4 for i in (0, 2)) or True

    stamps = []
    def st(tag, dyn=False):
        if not stamp: return
        if fine and dyn: dyn = False
        if dyn:
            base = len(stamps)
            for r in range(NROUND): stamps.append(f"{tag} r{r}")
            E.e(f"s_add_u32 m0, s{sRound}, {base}")
            E.e("s_memtime s[96:97]"); E.e("s_waitcnt lgkmcnt(0)")
            E.e(f"v_writelane_b32 v{STAMP}, s96, m0")
            E.e("s_add_u32 m0, m0, 32")
            E.e("s_memrealtime s[96:97]"); E.e("s_waitcnt lgkmcnt(0)")
            E.e(f"v_writelane_b32 v{STAMP}, s96, m0")
        else:
            i = len(stamps); stamps.append(tag)
            E.e("s_memtime s[96:97]"); E.e("s_waitcnt lgkmcnt(0)")
            E.e(f"v_writelane_b32 v{STAMP}, s96, {i}")
            E.e("s_memrealtime s[96:97]"); E.e("s_waitcnt lgkmcnt(0)")
            E.e(f"v_writelane_b32 v{STAMP}, s96, {32+i}")
        E.dl = E.nl

    E.e("s_cmp_ge_u32 s2, 256")
    E.e(f"s_cbranch_scc1 {name}_end")
    E.e("s_load_dwordx4 s[36:39], s[0:1], 0")
    E.e("s_load_dwordx2 s[40:41], s[0:1], 32")
    E.e("s_load_dwordx2 s[42:43], s[0:1], 48")
    if inprep:
        E.e("s_load_dwordx4 s[72:75], s[0:1], 16")
        E.e("s_load_dwordx2 s[76:77], s[0:1], 40")
    vL, vN, vG = 32, 33, 34
    a, b, c, d_, e_, f_, g_ = 35, 36, 37, 38, 39, 40, 41
    E.e(f"v_lshrrev_b32 v{a}, 6, v0")
    E.e(f"v_and_b32 v{vL}, 63, v0")
    E.e(f"v_readfirstlane_b32 s{sW}, v{a}")
    E.e(f"v_and_b32 v{vN}, 15, v{vL}")
    E.e(f"v_lshrrev_b32 v{vG}, 4, v{vL}")
    E.e(f"v_lshlrev_b32 v{vL16}, 4, v{vL}")
    E.e(f"s_and_b32 s{sPair}, s{sW}, 3")
    E.e(f"s_lshr_b32 s{sHb}, s{sW}, 2")
    E.e(f"s_mov_b32 s{sSelLo}, 0x05040100")
    E.e(f"s_mov_b32 s{sSelHi}, 0x07060302")
    E.e(f"s_mov_b32 s{sNegA}, {f2u(-A_/S_):#x}")
    E.e(f"s_mov_b32 s{sS}, {f2u(S_):#x}")
    if f16:
        import numpy as np
        h16 = lambda x: int(np.array([x], np.float16).view(np.uint16)[0])
        E.e(f"s_mov_b32 s{sAh}, {h16(A_/S_)*0x10001:#x}")
        E.e(f"s_mov_b32 s{sSh}, {h16(S_)*0x10001:#x}")
    E.e(f"s_and_b32 s{sTmp}, s2, 7")
    E.e(f"s_lshl_b32 s{sTmp}, s{sTmp}, 5")
    E.e(f"s_lshr_b32 s{sTmp2}, s2, 3")
    E.e(f"s_add_u32 s{sTmp}, s{sTmp}, s{sTmp2}")
    if band:
        E.e(f"s_lshr_b32 s{sR0}, s{sTmp}, 5")
        E.e(f"s_mul_i32 s{sR0}, s{sR0}, 48")
        E.e(f"s_bfe_u32 s{sTmp2}, s{sTmp}, 0x10004")
        E.e(f"s_lshl_b32 s{sTmp2}, s{sTmp2}, 3")
        E.e(f"s_add_u32 s{sR0}, s{sR0}, s{sTmp2}")
    else:
        E.e(f"s_lshr_b32 s{sR0}, s{sTmp}, 4")
        E.e(f"s_mul_i32 s{sR0}, s{sR0}, 24")
    RSTEP = 16 if band else 8
    E.e(f"s_and_b32 s{sC0}, s{sTmp}, 15")
    E.e(f"s_mul_i32 s{sC0}, s{sC0}, 24")
    E.e(f"s_mul_i32 s{sM0w}, s{sW}, 7168")
    E.e(f"s_mul_i32 s{sDw}, s{sW}, 3072")
    E.e(f"s_mul_i32 s{sDwo}, s{sW}, 2688")
    E.e(f"s_cmp_eq_u32 s{sW}, 7")
    E.e(f"s_cselect_b32 s{sDwo}, 0x100000, s{sDwo}")
    E.e("s_waitcnt lgkmcnt(0)")
    srd(E, 4, 36, 37, XBYTES)
    srd(E, 16, 36, 37, XBYTES)
    srd(E, 12, 38, 39, 7*7*192*2)
    srd(E, 8, 42, 43, 24*SLOT)
    srd(E, 20, 40, 41, XBYTES)
    E.e("s_mov_b32 s22, 0")
    if stamp: E.e(f"v_mov_b32 v{STAMP}, 0")
    st("start")

    state = {"round0": None}
    dwl = {}
    def dw_load1(cb, j, first=False):
        base = (RAW0, RAW1, RAW2)[cb]
        if first: E.e(f"v_lshrrev_b32 v{t0}, 3, v{vL16}")
        if j == 0 or first: E.e(f"s_add_u32 s71, s{sDwo}, {128*cb}")
        dwl[cb] = E.vm(f"buffer_load_ushort v{base+j}, v{t0}, s[12:15], s71 offen offset:{384*j}")
    def dw_loads():
        for cb in range(3):
            for j in range(7): dw_load1(cb, j, first=(cb == 0 and j == 0))
    def t_write(raw, loc, u, t0=t0, t1=t1):
        u0, u1 = u
        E.e(f"v_lshl_or_b32 v{u0+0}, v{raw+1}, 16, v{raw+0}")
        E.e(f"v_lshl_or_b32 v{u0+1}, v{raw+3}, 16, v{raw+2}")
        E.e(f"v_lshl_or_b32 v{u0+2}, v{raw+5}, 16, v{raw+4}")
        E.e(f"v_mov_b32 v{u0+3}, v{raw+6}")
        E.e(f"v_lshlrev_b32 v{u1+0}, 16, v{raw+0}")
        E.e(f"v_lshl_or_b32 v{u1+1}, v{raw+2}, 16, v{raw+1}")
        E.e(f"v_lshl_or_b32 v{u1+2}, v{raw+4}, 16, v{raw+3}")
        E.e(f"v_lshl_or_b32 v{u1+3}, v{raw+6}, 16, v{raw+5}")
        E.e(f"v_mul_u32_u24 v{t0}, 15, v{vL16}")
        E.e(f"s_lshl_b32 s{sTmp}, s{sW}, 5")
        E.e(f"s_add_u32 s{sTmp}, s{sTmp}, {loc}")
        E.e(f"v_add_u32 v{t0}, s{sTmp}, v{t0}")
        E.e(f"s_cmp_eq_u32 s{sW}, 7")
        E.e(f"s_cselect_b32 s{sTmp}, 0, 16")
        E.e(f"v_add_u32 v{t1}, s{sTmp}, v{t0}")
        E.ds(f"ds_write_b128 v{t0}, v[{u0}:{u0+3}]")
        E.ds(f"ds_write_b128 v{t1}, v[{u1}:{u1+3}]")

    PW = 60
    if inprep:
        pld = emit_prep_loads(E, name, sW, vN, vG, a, b, c, sTmp, sTmp2, PW, 72)
        srd(E, 80, 76, 77, 256)
        srd(E, 84, 76, 77, 256)
        E.e(f"s_cmp_lt_u32 s2, {nprod + (1 if tdma else 0)}")
        E.e("s_cselect_b32 s86, s86, 0")
        srd(E, 88, 42, 43, 24*SLOT)
        E.e(f"s_cmp_lt_u32 s2, {nprod}")
        E.e("s_cselect_b32 s90, s90, 0")
    xd = {}
    E.e(f"s_mov_b32 s{sTileRow}, s{sR0}")
    E.e(f"s_sub_u32 s{sBase}, s{sTileRow}, 3")
    E.e(f"s_mul_i32 s{sBase}, s{sBase}, 384")
    E.e(f"s_add_u32 s{sBase}, s{sBase}, s{sC0}")
    E.e(f"s_sub_u32 s{sBase}, s{sBase}, 3")
    E.e(f"s_mul_i32 s{sBase}, s{sBase}, 384")
    E.e(f"s_mul_i32 s{sTmp}, s{sW}, 448")
    E.e(f"s_sub_u32 s{sTmp2}, s{sC0}, 3")
    for q in range(7):
        P, r, rem, sl, n_, dx, tt = a, b, c, d_, e_, f_, g_
        E.e(f"v_add_u32 v{P}, s{sTmp}, v{vL}")
        if q: E.e(f"v_add_u32 v{P}, {64*q}, v{P}")
        E.e(f"v_mul_u32_u24 v{r}, 4370, v{P}")
        E.e(f"v_lshrrev_b32 v{r}, 20, v{r}")
        E.e(f"v_mul_u32_u24 v{rem}, 240, v{r}")
        E.e(f"v_sub_u32 v{rem}, v{P}, v{rem}")
        E.e(f"v_lshrrev_b32 v{sl}, 3, v{rem}")
        E.e(f"v_and_b32 v{rem}, 7, v{rem}")
        E.e(f"v_cmp_le_u32 vcc, 15, v{sl}")
        E.e(f"v_mov_b32 v{dx}, 0")
        E.e("s_nop 0")
        E.e(f"v_addc_co_u32 v{dx}, vcc, 0, v{dx}, vcc")
        E.e(f"v_mul_u32_u24 v{n_}, 15, v{dx}")
        E.e(f"v_sub_u32 v{n_}, v{sl}, v{n_}")
        E.e(f"v_lshrrev_b32 v{sl}, 1, v{n_}")
        E.e(f"v_sub_u32 v{rem}, v{rem}, v{sl}")
        E.e(f"v_and_b32 v{rem}, 7, v{rem}")
        E.e(f"v_lshl_add_u32 v{n_}, v{n_}, 1, v{dx}")
        dd = vDS + q
        E.e(f"s_mov_b32 s{sTmp3}, 147456")
        E.e(f"v_mul_lo_u32 v{dd}, v{r}, s{sTmp3}")
        E.e(f"v_mul_u32_u24 v{tt}, 384, v{n_}")
        E.e(f"v_add_u32 v{dd}, v{dd}, v{tt}")
        E.e(f"v_lshl_add_u32 v{dd}, v{rem}, 4, v{dd}")
        E.e(f"v_add_u32 v{tt}, s{sTmp2}, v{n_}")
        E.e(f"v_cmp_gt_u32 vcc, 384, v{tt}")
        E.e(f"s_movk_i32 s{sTmp3}, 3360")
        E.e(f"v_cmp_gt_u32 s[48:49], s{sTmp3}, v{P}")
        E.e("s_nop 1")
        E.e("s_and_b64 vcc, vcc, s[48:49]")
        E.e(f"v_mov_b32 v{tt}, 0x40000000")
        E.e("s_nop 0")
        E.e(f"v_cndmask_b32 v{dd}, v{tt}, v{dd}, vcc")
        E.e(f"s_add_u32 m0, s{sM0w}, {XA + 1024*q}")
        E.e(f"v_add_u32 v{t0}, s{sBase}, v{dd}")
        xd[0] = E.vm(f"buffer_load_dwordx4 v{t0}, s[4:7], 0 offen lds")
    def x_base(s):
        E.e(f"s_sub_u32 s{sBase}, s{sTileRow}, 3")
        E.e(f"s_mul_i32 s{sBase}, s{sBase}, 384")
        E.e(f"s_add_u32 s{sBase}, s{sBase}, s{sC0}")
        E.e(f"s_sub_u32 s{sBase}, s{sBase}, 3")
        E.e(f"s_mul_i32 s{sBase}, s{sBase}, 384")
        if s: E.e(f"s_add_u32 s{sBase}, s{sBase}, {128*s}")
    def x_dma_guard(q, early):
        lbl = f"{name}_xb{'e' if early else 'l'}{q}{state.get('tag', '')}"
        E.e(f"s_cmp_gt_i32 s100, {q}")
        E.e(f"s_cbranch_scc{0 if early else 1} {lbl}")
        x_dma(1, q, XB, tmp=(X + 16 if early else None), skippable=True)
        E.label(lbl)
    def x_dma(s, q, loc, tmp=None, skippable=False):
        tv = (t0 if (q & 1) == 0 else t1) if tmp is None else tmp + (q & 1)
        E.e(f"s_add_u32 m0, s{sM0w}, {loc + 1024*q}")
        E.e(f"v_add_u32 v{tv}, s{sBase}, v{vDS+q}")
        xd[s] = E.vm(f"buffer_load_dwordx4 v{tv}, s[4:7], 0 offen{xflag} lds", skippable=skippable)
    dw_loads()
    x_base(1)
    for q in range(7): x_dma(1, q, XB)
    pst = None
    if inprep:
        E.wait(v=pld)
        for d in range(4): E.e(f"v_lshl_or_b32 v{68+d}, v{PW+2*d+1}, 16, v{PW+2*d}")
        E.e(f"s_mul_i32 s{sTmp}, s51, 24576")
        E.e(f"s_lshl_b32 s{sTmp2}, s52, 10")
        E.e(f"s_add_u32 s{sTmp}, s{sTmp}, s{sTmp2}")
        pst = E.vm(f"buffer_store_dwordx4 v[68:71], v{vL16}, s[88:91], s{sTmp} offen sc1")
    E.e(f"s_mul_i32 s{sTmp}, s{sW}, 53")
    E.e(f"v_add_u32 v{a}, s{sTmp}, v{vL}")
    E.e(f"v_mul_u32_u24 v{b}, 2185, v{a}")
    E.e(f"v_lshrrev_b32 v{b}, 16, v{b}")
    E.e(f"v_mul_u32_u24 v{c}, 30, v{b}")
    E.e(f"v_sub_u32 v{c}, v{a}, v{c}")
    E.e(f"s_mov_b32 s{sTmp3}, 147456")
    E.e(f"v_mul_lo_u32 v{d_}, v{b}, s{sTmp3}")
    E.e(f"v_mul_u32_u24 v{e_}, 384, v{c}")
    E.e(f"v_add_u32 v{d_}, v{d_}, v{e_}")
    E.e(f"s_sub_u32 s{sTmp2}, s{sC0}, 3")
    E.e(f"v_add_u32 v{e_}, s{sTmp2}, v{c}")
    E.e(f"v_cmp_gt_u32 vcc, 384, v{e_}")
    E.e(f"s_movk_i32 s{sTmp3}, 420")
    E.e(f"v_cmp_gt_u32 s[48:49], s{sTmp3}, v{a}")
    E.e("s_nop 1")
    E.e("s_and_b64 vcc, vcc, s[48:49]")
    E.e(f"v_cmp_gt_u32 s[48:49], 53, v{vL}")
    E.e("s_nop 1")
    E.e("s_and_b64 vcc, vcc, s[48:49]")
    E.e(f"v_mov_b32 v{e_}, 0x40000000")
    E.e("s_nop 0")
    E.e(f"v_cndmask_b32 v0, v{e_}, v{d_}, vcc")
    pf0 = None
    if pf and pfstart:
        x_base(2)
        E.e(f"v_add_u32 v{t0}, s{sBase}, v0")
        pf0 = E.vm(f"buffer_load_dword v{RAW2+7 if not stamp else 72}, v{t0}, s[4:7], 0 offen")
    E.e(f"v_lshrrev_b32 v{a}, 1, v{vN}")
    E.e(f"v_add_u32 v{a}, s{sW}, v{a}")
    E.e(f"v_and_b32 v{a}, 7, v{a}")
    E.e(f"v_lshlrev_b32 v{a}, 4, v{a}")
    E.e(f"v_lshl_add_u32 v{a}, v{vN}, 7, v{a}")
    E.e(f"v_mul_u32_u24 v{b}, 3840, v{vG}")
    E.e(f"v_add_u32 v{vXa}, v{a}, v{b}")
    E.e(f"v_add_u32 v{b}, 12, v{vG}")
    E.e(f"v_min_u32 v{b}, 13, v{b}")
    E.e(f"v_mul_u32_u24 v{b}, 3840, v{b}")
    E.e(f"v_add_u32 v{vXa3}, v{a}, v{b}")
    E.e(f"v_lshrrev_b32 v{a}, 1, v{vN}")
    E.e(f"v_and_b32 v{b}, 1, v{vN}")
    E.e(f"v_sub_u32 v{a}, v{vG}, v{a}")
    E.e(f"s_mul_i32 s{sTmp}, s{sW}, 1920")
    E.e(f"s_add_u32 s{sTmp}, s{sTmp}, {T1LOC}")
    for f in range(4):
        E.e(f"v_add_u32 v{c}, {4*f}, v{a}")
        E.e(f"v_lshl_add_u32 v{d_}, v{c}, 1, v{b}")
        E.e(f"v_cmp_gt_u32 vcc, 7, v{c}")
        E.e(f"v_mov_b32 v{e_}, 14")
        E.e("s_nop 0")
        E.e(f"v_cndmask_b32 v{d_}, v{e_}, v{d_}, vcc")
        E.e(f"v_lshlrev_b32 v{d_}, 4, v{d_}")
        E.e(f"v_add_u32 v{vT+f}, s{sTmp}, v{d_}")
    E.e(f"v_mul_u32_u24 v{a}, 12, v{vG}")
    E.e(f"v_add_u32 v{a}, v{a}, v{vN}")
    E.e(f"v_lshrrev_b32 v{b}, 4, v{a}")
    E.e(f"v_and_b32 v{a}, 15, v{a}")
    E.e(f"v_lshlrev_b32 v{a}, 4, v{a}")
    E.e(f"v_lshl_add_u32 v{a}, v{b}, 10, v{a}")
    E.e(f"s_mul_i32 s{sTmp}, s{sHb}, 3072")
    E.e(f"s_lshl_b32 s{sTmp2}, s{sPair}, 8")
    E.e(f"s_add_u32 s{sTmp}, s{sTmp}, s{sTmp2}")
    E.e(f"s_add_u32 s{sTmp}, s{sTmp}, {HLOC}")
    E.e(f"v_add_u32 v{vHw}, s{sTmp}, v{a}")
    E.e(f"v_cmp_gt_u32 s[60:61], 12, v{vN}")
    E.e(f"s_mul_i32 s{sTmp}, s{sHb}, 6144")
    E.e(f"v_add_u32 v{vA0}, s{sTmp}, v{vL16}")
    E.e(f"v_add_u32 v{vA2}, {2*SLOT}, v{vA0}")
    E.e(f"s_mul_i32 s{sTmp}, s{sPair}, 3072")
    E.e(f"s_add_u32 s{sTmp}, s{sTmp}, {GBUF}")
    E.e(f"v_add_u32 v{vGr}, s{sTmp}, v{vL16}")
    E.e(f"s_lshl_b32 s{sTmp2}, s{sHb}, 3")
    E.e(f"v_add_u32 v{vGw}, s{sTmp2}, v{vGr}")
    E.e(f"v_add_u32 v{vDo}, s{sDw}, v{vL16}")
    E.e(f"s_lshr_b32 s{sTmp}, s{sPair}, 1")
    E.e(f"s_add_u32 s46, s{sR0}, s{sTmp}")
    E.e(f"s_and_b32 s{sTmp}, s{sPair}, 1")
    E.e(f"s_add_u32 s47, s{sC0}, s{sTmp}")
    E.e(f"s_mul_i32 s{sTmp3}, s{sHb}, 192")
    for nt in range(3):
        E.e(f"v_add_u32 v{a}, {16*nt}, v{vN}")
        E.e(f"v_mul_u32_u24 v{b}, 43, v{a}")
        E.e(f"v_lshrrev_b32 v{b}, 9, v{b}")
        E.e(f"v_mul_u32_u24 v{c}, 12, v{b}")
        E.e(f"v_sub_u32 v{c}, v{a}, v{c}")
        E.e(f"v_lshl_add_u32 v{b}, v{b}, 1, s46")
        E.e(f"v_lshl_add_u32 v{c}, v{c}, 1, s47")
        E.e(f"v_mul_u32_u24 v{b}, 384, v{b}")
        E.e(f"v_add_u32 v{b}, v{b}, v{c}")
        E.e(f"v_mul_u32_u24 v{b}, 384, v{b}")
        E.e(f"v_lshl_add_u32 v{b}, v{vG}, 4, v{b}")
        E.e(f"v_add_u32 v{vPx+nt}, s{sTmp3}, v{b}")
    E.e(f"v_lshrrev_b32 v{a}, 2, v{vN}")
    E.e(f"v_and_b32 v{b}, 3, v{vN}")
    E.e(f"v_and_b32 v{c}, 1, v{b}")
    E.e(f"v_lshlrev_b32 v{c}, 4, v{c}")
    E.e(f"v_mov_b32 v{d_}, 0x3f80")
    E.e(f"v_lshlrev_b32 v{d_}, v{c}, v{d_}")
    E.e(f"v_cmp_eq_u32 vcc, v{a}, v{vG}")
    E.e(f"v_mov_b32 v{c}, 0")
    E.e("s_nop 0")
    E.e(f"v_cndmask_b32 v{d_}, v{c}, v{d_}, vcc")
    E.e(f"v_cmp_gt_u32 vcc, 2, v{b}")
    E.e("s_nop 1")
    E.e(f"v_cndmask_b32 v{ID+2}, v{c}, v{d_}, vcc")
    E.e(f"v_cndmask_b32 v{ID+3}, v{d_}, v{c}, vcc")
    for i in (0, 1, 4, 5): E.e(f"v_mov_b32 v{ID+i}, 0")
    E.wait(v=dwl[2])
    t_write(RAW0, T0LOC, (44, 48))
    t_write(RAW1, T1LOC, (52, 56))
    if tdma:
        E.e(f"s_add_u32 s64, s42, {WS_T}")
        E.e("s_addc_u32 s65, s43, 0")
        E.e("s_and_b32 s65, s65, 0xffff")
        E.e(f"s_mov_b32 s66, {3*16384}")
        E.e("s_mov_b32 s67, 0x00020000")
        lbl = f"{name}_notp"
        E.e("s_cmp_lg_u32 s2, 72")
        E.e(f"s_cbranch_scc1 {lbl}")
        u0, u1 = 76, 80
        raw = RAW2
        E.e(f"v_lshl_or_b32 v{u0+0}, v{raw+1}, 16, v{raw+0}")
        E.e(f"v_lshl_or_b32 v{u0+1}, v{raw+3}, 16, v{raw+2}")
        E.e(f"v_lshl_or_b32 v{u0+2}, v{raw+5}, 16, v{raw+4}")
        E.e(f"v_mov_b32 v{u0+3}, v{raw+6}")
        E.e(f"v_lshlrev_b32 v{u1+0}, 16, v{raw+0}")
        E.e(f"v_lshl_or_b32 v{u1+1}, v{raw+2}, 16, v{raw+1}")
        E.e(f"v_lshl_or_b32 v{u1+2}, v{raw+4}, 16, v{raw+3}")
        E.e(f"v_lshl_or_b32 v{u1+3}, v{raw+6}, 16, v{raw+5}")
        E.e(f"v_mul_u32_u24 v{t0}, 15, v{vL16}")
        E.e(f"s_lshl_b32 s{sTmp}, s{sW}, 5")
        E.e(f"v_add_u32 v{t0}, s{sTmp}, v{t0}")
        E.e(f"s_cmp_eq_u32 s{sW}, 7")
        E.e(f"s_cselect_b32 s{sTmp}, 0, 16")
        E.e(f"v_add_u32 v{t1}, s{sTmp}, v{t0}")
        for cb, (q0, q1) in enumerate(((44, 48), (52, 56), (u0, u1))):
            E.e(f"s_mov_b32 s{sTmp}, {cb*16384}")
            E.vm(f"buffer_store_dwordx4 v[{q0}:{q0+3}], v{t0}, s[64:67], s{sTmp} offen sc1", skippable=True)
            E.vm(f"buffer_store_dwordx4 v[{q1}:{q1+3}], v{t1}, s[64:67], s{sTmp} offen sc1", skippable=True)
        E.label(lbl)
    if wfill:
        E.e(f"s_mul_i32 s{sTmp}, s{sPair}, 3072")
        E.e(f"s_cmp_eq_u32 s{sHb}, 0")
        E.e(f"s_cselect_b32 s78, {2*SLOT}, 0")
        E.e(f"s_cselect_b32 s79, {23*SLOT}, 0")
        E.e(f"s_add_u32 s78, s78, s{sTmp}")
        E.e(f"s_add_u32 s79, s79, s{sTmp}")
    E.e(f"s_mul_i32 s100, s{sW}, 7")
    E.e("s_sub_u32 s100, 48, s100")
    E.e("s_mov_b32 s95, 12288")
    E.e(f"s_mov_b32 s{sRound}, 0")
    E.e(f"s_mov_b32 s{sRowP}, 0")
    E.e(f"s_mov_b32 s{sRowC}, 0")
    E.wait(v=xd[0] if not (stamp and pf0) else max(xd[0], pf0))
    E.wait_all_lds(force=True)
    E.e("s_barrier")
    if pf2:
        x_base(2)
        E.e(f"v_add_u32 v{t0}, s{sBase}, v0")
        E.vm(f"buffer_load_dword v{CT[3]}, v{t0}, s[4:7], 0 offen")
    extra = E.nv - xd[1]
    E.nv -= extra; E.dv = min(E.dv, E.nv)
    st("prologue")

    dma = {}; rd = {}; gi = {}; resid = {}
    RL, RN = 3, 3
    def out_store(q):
        u, nt = divmod(q, 3); o = Oreg(2*u, nt)
        if sttest == "lin":
            E.e(f"s_mul_i32 s97, s2, 221184")
            E.e(f"s_mul_i32 s98, s{sRound}, 73728")
            E.e(f"s_add_u32 s97, s97, s98")
            E.e(f"s_mul_i32 s98, s{sW}, 9216")
            E.e(f"s_add_u32 s97, s97, s98")
            E.e(f"s_add_u32 s97, s97, {q*1024}")
            E.vm(f"buffer_store_dwordx4 v[{o}:{o+3}], v{vL16}, s[20:23], s97 offen{stflag}")
            return
        if sttest == "none":
            E.vm(f"buffer_store_dwordx4 v[{o}:{o+3}], v{vPx+nt}, s[84:87], s{sRowP} offen offset:{u*64}{stflag}")
            return
        E.vm(f"buffer_store_dwordx4 v[{o}:{o+3}], v{vPx+nt}, s[20:23], s{sRowP} offen offset:{u*64}{stflag}")

    def conv_step(s, side=(), spc=None):
        side = list(side)
        spc = spc or sp
        loc = XB if s == 1 else XA
        toff = 0 if s == 1 else T0LOC - T1LOC
        E.c(f"==== conv step {s}")
        E.e(f"v_add_u32 v{t0}, {loc}, v{vXa}")
        E.e(f"v_add_u32 v{t1}, {loc}, v{vXa3}")
        def rd_eo(f):
            e4, o4 = EOq[2*(f & 1)], EOq[2*(f & 1)+1]
            adr = t1 if f == 3 else t0
            off = 0 if f == 3 else f*15360
            E.ds(f"ds_read_b128 v[{e4}:{e4+3}], v{adr} offset:{off}")
            return E.ds(f"ds_read_b128 v[{o4}:{o4+3}], v{adr} offset:{off+1920}")
        TR = (Tq + [CT[2], CT[3]])[:tring]
        def rd_t(idx):
            f, c_ = divmod(idx, 8); r = TR[idx % tring]
            return E.ds(f"ds_read_b128 v[{r}:{r+3}], v{vT+f} offset:{toff + c_*240}")
        eo = {0: rd_eo(0)}; tt = {}
        for i in range(tring - 1): tt[i] = rd_t(i)
        eo[1] = rd_eo(1)
        def mf(f, c_):
            idx = f*8 + c_
            E.wait(l=tt[idx])
            acc = ACC[8*s + c_]
            E.e(mfma(acc, TR[idx % tring], Bq[c_], None if f == 0 else acc))
            if idx + tring - 1 < 32: tt[idx + tring - 1] = rd_t(idx + tring - 1)
            if side and c_ != 6 and idx % spc == 0: side.pop(0)()
        for f in range(4):
            e4, o4 = EOq[2*(f & 1)], EOq[2*(f & 1)+1]
            if cprio: E.e(f"s_setprio {3-f}")
            E.wait(l=eo[f])
            for cp in range(4):
                E.e(f"v_perm_b32 v{Bq[2*cp]}, v{o4+cp}, v{e4+cp}, s{sSelLo}")
                E.e(f"v_perm_b32 v{Bq[2*cp+1]}, v{o4+cp}, v{e4+cp}, s{sSelHi}")
            if f + 2 < 4: eo[f+2] = rd_eo(f+2)
            for c_ in range(8):
                bb = Bq[c_]
                for dd in (1, 2, 3):
                    E.e(f"v_mov_b32_dpp v{bb+dd}, v{bb} row_shl:{dd} row_mask:0xf bank_mask:0xf bound_ctrl:1")
                if c_ > 0: mf(f, c_-1)
            E.e("s_nop 1")
            mf(f, 7)
        while side: side.pop(0)()

    def poll():
        if not inprep: return
        lp = f"{name}_poll"
        E.e(f"s_cmp_lg_u32 s{sRound}, 0")
        E.e(f"s_cbranch_scc1 {lp}_done")
        E.e(f"s_cmp_lg_u32 s{sW}, 0")
        E.e(f"s_cbranch_scc1 {lp}_bar")
        E.e(f"s_mov_b32 s{sTmp2}, 0")
        E.e(f"v_mov_b32 v{t0}, 0")
        E.label(f"{lp}")
        E.e(f"buffer_load_dword v{t1}, v{t0}, s[80:83], 0 offen sc1")
        E.e("s_waitcnt vmcnt(0)")
        E.e(f"v_readfirstlane_b32 s{sTmp}, v{t1}")
        E.e(f"s_add_u32 s{sTmp2}, s{sTmp2}, 1")
        E.e(f"s_cmp_ge_u32 s{sTmp2}, 0x40000")
        E.e(f"s_cbranch_scc1 {lp}_acq")
        E.e(f"s_cmp_lt_u32 s{sTmp}, {nprod + (1 if tdma else 0)}")
        E.e(f"s_cbranch_scc1 {lp}")
        E.label(f"{lp}_acq")
        if inv:
            E.e("buffer_inv sc1")
            E.e("s_waitcnt vmcnt(0)")
        E.label(f"{lp}_bar")
        E.e("s_barrier")
        if wpf:
            E.e(f"s_lshr_b32 s{sTmp}, s2, 3")
            E.e(f"s_and_b32 s{sTmp}, s{sTmp}, 31")
            E.e(f"s_lshl_b32 s{sTmp}, s{sTmp}, 3")
            E.e(f"s_add_u32 s{sTmp}, s{sTmp}, s{sW}")
            E.e(f"s_mul_i32 s{sTmp}, s{sTmp}, {18*128}")
            E.e(f"v_lshlrev_b32 v{t0}, 3, v{vL16}")
            E.e(f"v_cmp_gt_u32 vcc, {18*128}, v{t0}")
            E.e(f"v_mov_b32 v{t1}, 0x40000000")
            E.e("s_nop 0")
            E.e(f"v_cndmask_b32 v{t0}, v{t1}, v{t0}, vcc")
            E.e(f"buffer_load_dword v{RAW2}, v{t0}, s[8:11], s{sTmp} offen")
        E.label(f"{lp}_done")

    def layernorm():
        E.c("==== layernorm")
        ST = CT[0]; ST2 = CT[1]; RHO = CT[2]; BETA = CT[3]
        wl = []
        if wlate:
            poll()
            wl = [(J, i) for J in (-1, 0, 1) for i in range(3)] if not wfill else [("fill", i) for i in range(3)]
        E.e("s_nop 7")
        if pkln:
            for h in (0, 2):
                E.e(f"v_pk_add_f32 v[{ST+h}:{ST+h+1}], v[{ACC[0]+h}:{ACC[0]+h+1}], v[{ACC[1]+h}:{ACC[1]+h+1}]")
                E.e(f"v_pk_mul_f32 v[{ST2+h}:{ST2+h+1}], v[{ACC[0]+h}:{ACC[0]+h+1}], v[{ACC[0]+h}:{ACC[0]+h+1}]")
            for ch in range(1, 24):
                for h in (0, 2):
                    x_ = f"v[{ACC[ch]+h}:{ACC[ch]+h+1}]"
                    if ch > 1: E.e(f"v_pk_add_f32 v[{ST+h}:{ST+h+1}], v[{ST+h}:{ST+h+1}], {x_}")
                    E.e(f"v_pk_fma_f32 v[{ST2+h}:{ST2+h+1}], {x_}, {x_}, v[{ST2+h}:{ST2+h+1}]")
                if wl and ch % 2 == 0: issue_w(*wl.pop(0))
        else:
            for r in range(4):
                E.e(f"v_mov_b32 v{ST+r}, v{ACC[0]+r}")
                E.e(f"v_mul_f32 v{ST2+r}, v{ACC[0]+r}, v{ACC[0]+r}")
            for ch in range(1, 24):
                for r in range(4):
                    x_ = ACC[ch] + r
                    E.e(f"v_add_f32 v{ST+r}, v{ST+r}, v{x_}")
                    E.e(f"v_fmac_f32 v{ST2+r}, v{x_}, v{x_}")
        while wl: issue_w(*wl.pop(0))
        if halfw:
            E.e(f"v_add_u32 v{t0}, 12288, v{vL16}")
            E.e(f"s_lshl_b32 s{sTmp}, s{sW}, 10")
            E.e(f"v_add_u32 v{t1}, s{sTmp}, v{t0}")
            E.ds(f"ds_write_b128 v{t1}, v[{ST}:{ST+3}]")
            E.ds(f"ds_write_b128 v{t1}, v[{ST2}:{ST2+3}] offset:49152")
            sstride, soff = 1024, 49152
        else:
            E.e(f"v_add_u32 v{t0}, {STLOC}, v{vL16}")
            E.e(f"s_lshl_b32 s{sTmp}, s{sW}, 11")
            E.e(f"v_add_u32 v{t1}, s{sTmp}, v{t0}")
            E.wait_all_lds(force=True)
            if fine: st("ln stats")
            E.e("s_barrier")
            if fine: st("BA")
            E.ds(f"ds_write_b128 v{t1}, v[{ST}:{ST+3}]")
            E.ds(f"ds_write_b128 v{t1}, v[{ST2}:{ST2+3}] offset:1024")
            sstride, soff = 2048, 1024
        E.wait_all_lds(force=True)
        E.e("s_barrier")
        if fine: st("BB")
        RB = Bq + EOq + Tq
        for w in range(8):
            E.ds(f"ds_read_b128 v[{RB[2*w]}:{RB[2*w]+3}], v{t0} offset:{sstride*w}")
            E.ds(f"ds_read_b128 v[{RB[2*w+1]}:{RB[2*w+1]+3}], v{t0} offset:{sstride*w+soff}")
        base_id = E.nl - 16
        for w in range(1, 8):
            E.wait(l=base_id + 2*w + 2)
            for h in (0, 2):
                for k, dst in enumerate((ST, ST2)):
                    src = RB[2*w + k]
                    s0 = RB[k] if w == 1 else dst
                    E.e(f"v_pk_add_f32 v[{dst+h}:{dst+h+1}], v[{s0+h}:{s0+h+1}], v[{src+h}:{src+h+1}]")
        E.e(f"v_mov_b32 v{RHO}, {f2u(1.0/192):#x}")
        E.e(f"v_mov_b32 v{RHO+1}, {f2u(1.0/192):#x}")
        E.e(f"v_mov_b32 v{RHO+2}, {f2u(1e-5):#x}")
        for h in (0, 2):
            E.e(f"v_pk_mul_f32 v[{ST+h}:{ST+h+1}], v[{ST+h}:{ST+h+1}], v[{RHO}:{RHO+1}]")
            E.e(f"v_pk_mul_f32 v[{ST2+h}:{ST2+h+1}], v[{ST2+h}:{ST2+h+1}], v[{RHO}:{RHO+1}]")
        for h in (0, 2):
            E.e(f"v_pk_fma_f32 v[{ST2+h}:{ST2+h+1}], v[{ST+h}:{ST+h+1}], v[{ST+h}:{ST+h+1}], v[{ST2+h}:{ST2+h+1}] neg_lo:[1,0,0] neg_hi:[1,0,0]")
        for r in range(4): E.e(f"v_max_f32 v{ST2+r}, 0, v{ST2+r}")
        for r in range(4): E.e(f"v_add_f32 v{ST2+r}, v{RHO+2}, v{ST2+r}")
        for r in range(4): E.e(f"v_rsq_f32 v{RHO+r}, v{ST2+r}")
        E.e("s_nop 0")
        for r in range(4): E.e(f"v_mul_f32 v{RHO+r}, s{sS}, v{RHO+r}")
        for h in (0, 2):
            E.e(f"v_pk_mul_f32 v[{BETA+h}:{BETA+h+1}], v[{ST+h}:{ST+h+1}], v[{RHO+h}:{RHO+h+1}]")
        if fine: st("ln rho")
        E.e(f"v_add_u32 v{t0}, 32768, v{vHw}")
        E.e("s_mov_b64 s[62:63], exec")
        E.e("s_mov_b64 exec, s[60:61]")
        ta, tb = EOq[0], EOq[0] + 1
        for cg in range(3):
            if pkln and (normil or cg == 0):
                for ch in (range(8*cg, 8*cg + 8) if normil else range(24)):
                    for h in (0, 2):
                        x_ = f"v[{ACC[ch]+h}:{ACC[ch]+h+1}]"
                        E.e(f"v_pk_fma_f32 {x_}, {x_}, v[{RHO+h}:{RHO+h+1}], v[{BETA+h}:{BETA+h+1}] neg_lo:[0,0,1] neg_hi:[0,0,1]")
            for r in range(4):
                o = Bq[(cg*4 + r) & 7]
                for cp in range(4):
                    a0 = ACC[8*cg + 2*cp] + r; a1 = ACC[8*cg + 2*cp + 1] + r
                    if pkln:
                        E.e(f"v_cvt_pk_bf16_f32 v{o+cp}, v{a0}, v{a1}")
                    else:
                        E.e(f"v_fma_f32 v{ta}, v{a0}, v{RHO+r}, -v{BETA+r}")
                        E.e(f"v_fma_f32 v{tb}, v{a1}, v{RHO+r}, -v{BETA+r}")
                        E.e(f"v_cvt_pk_bf16_f32 v{o+cp}, v{ta}, v{tb}")
                off = r*18432 + cg*6144
                adr = vHw
                if off >= 32768: adr, off = t0, off - 32768
                E.ds(f"ds_write_b128 v{adr}, v[{o}:{o+3}] offset:{off}")
        E.e("s_mov_b64 exec, s[62:63]")

    wuid = [0]
    def issue_w(J, i):
        if J == "fill":
            if i == 0: E.e("s_mov_b32 m0, s78")
            if i == 0: E.e("s_nop 0")
            dma[-1] = dma[0] = E.vm(f"buffer_load_dwordx4 v{vL16}, s[8:11], s79 offen offset:{i*1024} lds")
            return
        j = J % 24; slot = (J % NS)*SLOT
        if xbearly and J == 24: slot = 2*SLOT - 12288
        skip = None
        if halfw and J in (-1, 0): skip = 1
        if halfw and J in (23, 24): skip = 0
        if skip is not None:
            lbl = f"{name}_ws{J % 100}_{i}".replace("-", "m")
            E.e(f"s_cmp_eq_u32 s{sHb}, {skip}")
            E.e(f"s_cbranch_scc1 {lbl}")
        if m0once and J >= 2:
            if i == 0:
                E.e(f"s_add_u32 m0, s{sDw}, {slot}")
                E.e(f"s_mov_b32 s94, {j*SLOT}")
            dma[J] = E.vm(f"buffer_load_dwordx4 v{vDo}, s[8:11], s94 offen offset:{i*1024} lds", skippable=skip is not None)
        else:
            E.e(f"s_add_u32 m0, s{sDw}, {slot + i*1024}")
            E.e(f"s_mov_b32 s{sSo}, {j*SLOT + i*1024}")
            dma[J] = E.vm(f"buffer_load_dwordx4 v{vDo}, s[8:11], s{sSo} offen lds", skippable=skip is not None)
        if skip is not None: E.label(lbl)
    def a_read(J, f):
        slot = J % NS
        base, off = (vA2, (slot-2)*SLOT) if slot >= 2 else (vA0, slot*SLOT)
        o = off + (f*1024 if f < 6 else 12288 + (f-6)*1024)
        if xbearly and J == 24: base, o = vA2, (f-6)*1024
        r = AR + 4*(((J+1)*12 + f) & 3)
        rd[(J, f)] = E.ds(f"ds_read_b128 v[{r}:{r+3}], v{base} offset:{o}")
    def gelu_half(c_, p, hf2):
        nt, hf = divmod(p, 2)
        uA = S + 12*(c_ & 1) + 4*nt + 2*hf; uB = uA + 1
        ta = TT + 2*(p & 1); tb = ta + 1
        gd = GT + 2*(nt & 1) + hf
        if f16:
            if hf2 == 0:
                return [f"v_cvt_pk_f16_f32 v{ta}, v{uA}, v{uB}",
                        f"v_pk_fma_f16 v{tb}, v{ta}, v{ta}, s{sAh}",
                        f"v_pk_mul_f16 v{tb}, v{tb}, v{ta} neg_lo:[1,0] neg_hi:[1,0]",
                        f"v_exp_f16_sdwa v{ta}, v{tb} dst_sel:WORD_0 dst_unused:UNUSED_PAD src0_sel:WORD_0",
                        f"v_exp_f16_sdwa v{ta}, v{tb} dst_sel:WORD_1 dst_unused:UNUSED_PRESERVE src0_sel:WORD_1"]
            return [f"v_pk_fma_f16 v{ta}, v{ta}, s{sSh}, s{sSh}",
                    f"v_rcp_f16_sdwa v{tb}, v{ta} dst_sel:WORD_0 dst_unused:UNUSED_PAD src0_sel:WORD_0",
                    f"v_rcp_f16_sdwa v{tb}, v{ta} dst_sel:WORD_1 dst_unused:UNUSED_PRESERVE src0_sel:WORD_1",
                    f"v_fma_mix_f32 v{ta}, v{uA}, v{tb}, 0 op_sel_hi:[0,1,0]",
                    f"v_fma_mix_f32 v{tb}, v{uB}, v{tb}, 0 op_sel:[0,1,0] op_sel_hi:[0,1,0]",
                    f"v_cvt_pk_bf16_f32 v{gd}, v{ta}, v{tb}"]
        if hf2 == 0:
            return [f"v_fma_f32 v{ta}, -v{uA}, v{uA}, s{sNegA}", f"v_fma_f32 v{tb}, -v{uB}, v{uB}, s{sNegA}",
                    f"v_mul_f32 v{ta}, v{ta}, v{uA}", f"v_mul_f32 v{tb}, v{tb}, v{uB}",
                    f"v_exp_f32 v{ta}, v{ta}", f"v_exp_f32 v{tb}, v{tb}"]
        return [f"v_fma_f32 v{ta}, v{ta}, s{sS}, s{sS}", f"v_fma_f32 v{tb}, v{tb}, s{sS}, s{sS}",
                f"v_rcp_f32 v{ta}, v{ta}", f"v_rcp_f32 v{tb}, v{tb}",
                f"v_mul_f32 v{ta}, v{uA}, v{ta}", f"v_mul_f32 v{tb}, v{uB}, v{tb}",
                f"v_cvt_pk_bf16_f32 v{gd}, v{ta}, v{tb}"]

    def stage(J, final=False):
        g1 = 0 <= J + 1 <= 23; g2 = 0 <= J - 1 <= 23
        last = J == 24
        E.c(f"---- stage {J}")
        def needs_frag(JJ, f): return (0 <= JJ + 1 <= 23) if f < 6 else (0 <= JJ - 1 <= 23)
        for g in range(12):
            gg = (g - 8) % 12
            c_ = (J + 1) if g >= 8 else J
            p, hf2 = divmod(gg, 2)
            dog = 0 <= c_ <= 23
            ops = gelu_half(c_, p, hf2) if dog else []
            if f16 and ops: segs = [ops[0:2], ops[2:3], ops[3:]] if hf2 == 1 else [ops[0:2], ops[2:4], ops[4:]]
            else: segs = [ops[0:2], ops[2:4], ops[4:]]
            ar = AR + 4*(((J+1)*12 + g) & 3)
            domf = g1 if g < 6 else g2
            if psched and g in psched and g != 9 and not last: E.e(f"s_setprio {psched[g]}")
            if J == -1 and g == 8: E.e("s_nop 7")
            if domf:
                need = rd[(J, g)]
                if wait2 and g % 2 == 0 and (J, g+1) in rd and needs_frag(J, g+1): need = max(need, rd[(J, g+1)])
                if g == 6: need = max(need, gi[2])
                if J == -1 and g < 6: need = max(need, xrd[3*g+2])
                E.wait(l=need)
            for nt in range(3):
                if domf:
                    if g < 6:
                        dd = S + 12*((J+1) & 1) + 4*nt
                        E.e(mfma(dd, ar, X + (g*3+nt)*4, None if g == 0 else dd))
                    else:
                        o = Oreg(g-6, nt)
                        E.e(mfma(o, ar, GI + 4*nt, None if J == 1 else o))
                elif f16 and ops and nt > 0: E.e("s_nop 0")
                if nt == 0:
                    if g == 9 and not final:
                        if not last and (J + 1) <= 24 and (J+1) in dma: E.wait(v=dma[J+1])
                        E.wait_all_lds(force=True)
                        E.e("s_barrier")
                        if psched and 9 in psched and not last: E.e(f"s_setprio {psched[9]}")
                        if last:
                            if tdma: prep_next_c(1)
                            if not xbearly: x_base(1)
                    if g + D < 12:
                        if needs_frag(J, g + D) and (J, g + D) not in rd: a_read(J, g + D)
                    elif not last:
                        f2 = g + D - 12
                        if needs_frag(J+1, f2): a_read(J+1, f2)
                    if g < 3 and g2:
                        gi[g] = E.ds(f"ds_read_b128 v[{GI+4*g}:{GI+4*g+3}], v{vGr} offset:{((J-1) & 1)*12288 + g*1024}")
                for o_ in segs[nt]: E.e(o_)
            if dog and hf2 == 1 and (p & 1) == 1:
                nt = p >> 1; gd = GT + 2*(nt & 1)
                E.ds(f"ds_write_b64 v{vGw}, v[{gd}:{gd+1}] offset:{(c_ & 1)*12288 + nt*1024}")
            if final:
                if g in (9, 11):
                    u = (g - 9)//2
                    for nt in range(3):
                        o = Oreg(2*u, nt)
                        for dd in range(4): E.e(f"v_cvt_pk_bf16_f32 v{o+dd}, v{o+2*dd}, v{o+2*dd+1}")
                        E.vm(f"buffer_store_dwordx4 v[{o}:{o+3}], v{vPx+nt}, s[20:23], s{sRowC} offen offset:{u*64}{stflag}")
                continue
            if last:
                if g >= 9 and not xbearly:
                    for q in {9: (0, 1, 2), 10: (3, 4), 11: (5, 6)}[g]: x_dma(1, q, XB)
                if g == 9 and xbearly:
                    if not tdma: prep_next_c(1)
                    lbl = f"{name}_xblate"
                    E.e(f"s_cmp_lt_u32 s{sW}, 6")
                    E.e(f"s_cbranch_scc1 {lbl}")
                    for q in range(7): x_dma_guard(q, False)
                    E.label(lbl)
                if g == 11 and not tdma and not xbearly: prep_next_c(1)
                continue
            if wfill and J == -1 and g in (0, 2, 4): issue_w(1, g // 2)
            for i, gq in enumerate(wsite):
                if g == gq:
                    JJ = J + NS if gq >= 9 else J + NS - 1
                    if 2 <= JJ <= 24: issue_w(JJ, i)
            if g == xsite and 3 <= J < 10:
                if J == 3: x_base(0)
                x_dma(0, J - 3, XA)
            if g == rsite and 2 <= J < 11:
                q = J - 2; u, nt = divmod(q, 3); r = RS + 4*(q % RN)
                resid[q] = E.vm(f"buffer_load_dwordx4 v[{r}:{r+3}], v{vPx+nt}, s[16:19], s{sRowC} offen offset:{u*64}{rflag}")
            if g == rsite - 1 and 2 + RL <= J < 11 + RL:
                q = J - 2 - RL; u, nt = divmod(q, 3)
                E.wait(v=resid[q])
                for p2 in range(2):
                    o = Oreg(2*u + p2, nt)
                    E.e(mfma(o, ID + (2 if p2 == 0 else 0), RS + 4*(q % RN), o))
            if xbearly and J == 23 and g <= 6:
                if g == 0: x_base(1)
                x_dma_guard(g, True)
            if pf and g == xsite and J in pf:
                sp = 1 + pf.index(J)
                x_base(sp)
                E.e(f"v_add_u32 v{t0}, s{sBase}, v0")
                E.vm(f"buffer_load_dword v{RAW2}, v{t0}, s[4:7], 0 offen")
            if not tdma and J == 19 and 1 <= g <= 7: dw_load1(2, g - 1, first=(g == 1))
            if not tdma and J == 22 and g >= 6: dw_load1(0, g - 6, first=(g == 6))
            if not tdma and J == 23 and g <= 7:
                if g == 0: dw_load1(0, 6)
                else: dw_load1(1, g - 1)
            if J == 0 and g == 6:
                E.e(f"s_add_u32 s{sTileRow}, s{sTileRow}, {RSTEP}")
                E.e(f"s_cmp_eq_u32 s{sRound}, {NROUND-1}")
                E.e(f"s_cselect_b32 s6, 0, s6")
                E.e(f"s_mov_b32 s22, {XBYTES}")

    def t_dma(cb, loc, i, skippable=False):
        if i == 0:
            E.e(f"s_lshl_b32 s{sTmp}, s{sW}, 11")
            E.e(f"s_add_u32 m0, s{sTmp}, {loc}")
            E.e(f"s_add_u32 s99, s{sTmp}, {cb*16384}")
        return E.vm(f"buffer_load_dwordx4 v{vL16}, s[64:67], s99 offen offset:{i*1024} lds", skippable=skippable)

    def prep_next_c(part):
        if part == 0:
            x_base(1)
            for q in range(7): x_dma(1, q, XB)
        elif tdma:
            for i in range(2): tdm["t0"] = t_dma(0, T0LOC, i)
            for i in range(2): tdm["t0"] = t_dma(1, T1LOC, i)
        else:
            E.wait(v=dwl[1])
            t_write(RAW0, T0LOC, (S, S+4))
            t_write(RAW1, T1LOC, (S+8, S+12))

    xrd = {}; tdm = {}
    def round_body():
        conv_step(0, [lambda q=q: out_store(q) for q in range(3) if q >= stearly])
        if fine: st("c0 compute")
        E.wait(v=xd[1]); E.wait_all_lds(force=True); E.e("s_barrier")
        if fine: st("B0")
        DT = CT[4]
        def signal():
            lbl = f"{name}_nosig"
            E.e(f"s_cmp_lg_u32 s{sRound}, 0")
            E.e(f"s_cbranch_scc1 {lbl}")
            E.e(f"s_cmp_eq_u32 s{sW}, 0")
            E.e(f"s_cselect_b32 s86, s86, 0")
            E.e(f"v_mov_b32 v{DT+2}, 0")
            E.e(f"v_mov_b32 v{DT+3}, 1")
            E.e("s_mov_b64 s[62:63], exec")
            E.e("s_mov_b64 exec, 1")
            E.vm(f"buffer_atomic_add v{DT+3}, v{DT+2}, s[84:87], 0 offen sc1", skippable=True)
            E.e("s_mov_b64 exec, s[62:63]")
            E.label(lbl)
        side = []
        if inprep: side.append(signal)
        x_base(2)
        side += [lambda q=q: x_dma(2, q, XA, tmp=DT) for q in range(7)]
        if tdma:
            lbl = f"{name}_t2l"
            E.e(f"s_cmp_lg_u32 s{sRound}, 0")
            E.e(f"s_cbranch_scc1 {lbl}")
            nl, dl = E.nl, E.dl
            t_write(RAW2, T0LOC, (CT[0], CT[1]), DT+2, DT+3)
            E.e("s_waitcnt lgkmcnt(0)")
            E.nl, E.dl = nl, dl
            E.label(lbl)
            def t2dma():
                l2 = f"{name}_t2d"
                E.e(f"s_cmp_eq_u32 s{sRound}, 0")
                E.e(f"s_cbranch_scc1 {l2}")
                for i in range(2): tdm["t2"] = t_dma(2, T0LOC, i, skippable=True)
                E.label(l2)
            side.insert(1 if inprep else 0, t2dma)
        else:
            side += [lambda: t_write(RAW2, T0LOC, (CT[0], CT[1]), DT+2, DT+3)]
        side += [lambda q=q: out_store(q) for q in range(3, 6) if q >= stearly]
        if not mst: st("conv0", dyn=True)
        conv_step(1, side, sp1)
        if fine: st("c1 compute")
        E.wait(v=max(xd[2], tdm.get("t2", 0))); E.wait_all_lds(force=True); E.e("s_barrier")
        if fine: st("B1")
        side = []
        if not wlate:
            poll()
            side = [lambda J=J, i=i: issue_w(J, i) for J in (-1, 0, 1) for i in range(3)]
        side += [lambda q=q: out_store(q) for q in range(6, 9) if q >= stearly]
        if not mst: st("conv1", dyn=True)
        conv_step(2, side)
        if not mst: st("conv2", dyn=True)
        layernorm()
        if fine: st("ln hwrite")
        E.wait(v=dma[0 if wfill else 1]); E.wait_all_lds(force=True); E.e("s_barrier")
        if fine: st("BD")
        E.e(f"s_mul_i32 s{sTmp}, s{sPair}, 18432")
        E.e(f"s_add_u32 s{sTmp}, s{sTmp}, {HLOC}")
        E.e(f"v_add_u32 v{t0}, s{sTmp}, v{vL16}")
        for f in range(D): a_read(-1, f)
        for fi in range(18):
            xrd[fi] = E.ds(f"ds_read_b128 v[{X+4*fi}:{X+4*fi+3}], v{t0} offset:{fi*1024}")
        st("ln", dyn=True)
        for J in range(-1, 25):
            if J == 24 and fintail:
                E.e(f"s_cmp_eq_u32 s{sRound}, {NROUND-1}")
                E.e(f"s_cbranch_scc1 {name}_final")
                snap = (E.nl, E.dl, E.nv, E.dv, dict(rd), dict(gi), set(E.skip))
                main = E.L; E.L = []
                stage(24, final=True)
                E.e("s_nop 7")
                for nt in range(3):
                    o = Oreg(4, nt)
                    for dd in range(4): E.e(f"v_cvt_pk_bf16_f32 v{o+dd}, v{o+2*dd}, v{o+2*dd+1}")
                    E.vm(f"buffer_store_dwordx4 v[{o}:{o+3}], v{vPx+nt}, s[20:23], s{sRowC} offen offset:128{stflag}")
                state["final"] = E.L; E.L = main
                E.nl, E.dl, E.nv, E.dv = snap[:4]
                rd.clear(); rd.update(snap[4]); gi.clear(); gi.update(snap[5]); E.skip = snap[6]
            stage(J)
            if fine and J in (-1, 0, 1, 2, 12, 22, 23): st(f"stage {J}")
            if mst and J in (1, 5, 10, 15, 20): st(f"S{J}", dyn=True)
        if fine: st("stage 24")
        E.e("s_setprio 0")
        E.e("s_nop 7")
        E.e(f"s_mov_b32 s{sRowP}, s{sRowC}")
        for q in range(9):
            u, nt = divmod(q, 3); o = Oreg(2*u, nt)
            for dd in range(4): E.e(f"v_cvt_pk_bf16_f32 v{o+dd}, v{o+2*dd}, v{o+2*dd+1}")
            if q < stearly: out_store(q)
        E.e(f"s_add_u32 s{sRowC}, s{sRowC}, {RSTEP*147456}")
        if tdma: E.wait(v=tdm["t0"])
        E.wait_all_lds(force=True)
        E.e("s_barrier")
        st("mlp", dyn=True)
        rd.clear(); gi.clear(); dma.clear()
        if stearly:
            for i in range(E.nv - stearly + 1, E.nv + 1): E.skip.add(i)

    nst = len(stamps)
    E.L.append(".p2align 6")
    E.label(f"{name}_L")
    b0 = len(E.L)
    round_body()
    body = list(E.L[b0:])
    E.e(f"s_add_u32 s{sRound}, s{sRound}, 1")
    E.e(f"s_cmp_lt_u32 s{sRound}, {NROUND}")
    E.e(f"s_cbranch_scc1 {name}_L")
    if not stamp:
        save = len(E.L); sv = (E.nl, E.dl, E.nv, E.dv)
        round_body()
        b2 = E.L[save:]
        if b2 != body:
            for x1, x2 in zip(body, b2):
                if x1 != x2: print("DIFF", x1, "|", x2); break
        assert b2 == body, "not steady"
        del E.L[save:]
    if fintail:
        E.label(f"{name}_final")
        E.L += state["final"]
        if stamp:
            i = stamps.index("mlp r2") if "mlp r2" in stamps else None
            if i is not None:
                E.e("s_memtime s[96:97]"); E.e("s_waitcnt lgkmcnt(0)"); E.e(f"v_writelane_b32 v{STAMP}, s96, {i}")
                E.e("s_memrealtime s[96:97]"); E.e("s_waitcnt lgkmcnt(0)"); E.e(f"v_writelane_b32 v{STAMP}, s96, {32+i}")
    else:
        for q in range(stearly, 9): out_store(q)
    if stamp:
        E.e("s_waitcnt vmcnt(0)")
        st("done")
        E.e(f"s_add_u32 s46, s42, {240<<20}")
        E.e(f"s_addc_u32 s47, s43, 0")
        srd(E, 48, 46, 47, 1 << 20)
        E.e(f"s_lshl_b32 s{sTmp}, s2, 3")
        E.e(f"s_add_u32 s{sTmp}, s{sTmp}, s{sW}")
        E.e(f"s_lshl_b32 s{sTmp}, s{sTmp}, 8")
        E.e(f"v_lshrrev_b32 v{t0}, 2, v{vL16}")
        E.e(f"buffer_store_dword v{STAMP}, v{t0}, s[48:51], s{sTmp} offen")
        if dbgout:
            E.e(f"s_cmp_lg_u32 s2, {dbgout}")
            E.e(f"s_cbranch_scc1 {name}_end")
            E.e(f"s_cmp_lg_u32 s{sW}, 0")
            E.e(f"s_cbranch_scc1 {name}_end")
            E.e(f"v_readlane_b32 s{sTmp}, v{STAMP}, 32")
            E.e("s_nop 3")
            E.e(f"v_subrev_u32 v{t1}, s{sTmp}, v{STAMP}")
            E.e(f"v_lshrrev_b32 v{t0}, 2, v{vL16}")
            E.e(f"v_subrev_u32 v{t0}, {(32+dbgshift)*4 - 4}, v{t0}")
            E.e(f"buffer_store_dword v{t1}, v{t0}, s[80:83], 0 offen")
        global STAMPS; STAMPS = stamps
    E.label(f"{name}_end")
    E.e("s_endpgm")
    if strip:
        out = []; inm = False
        for ln in E.L:
            t = ln.strip()
            if t.startswith("; ---- stage"):
                J = int(t.split()[-1]); inm = 1 <= J <= 22
            if t.startswith("; ==== conv step"): inm = False
            if inm:
                if "bar" in strip and t.startswith("s_barrier"): continue
                if "lgkm" in strip and t.startswith("s_waitcnt lgkmcnt"): continue
                if "vmw" in strip and t.startswith("s_waitcnt vmcnt"): continue
                if "vm" in strip and t.startswith("buffer_"): continue
                if "ds" in strip and t.startswith("ds_"): continue
                if "dsw" in strip and t.startswith("ds_write"): continue
                if "prio" in strip and t.startswith("s_setprio"): continue
                if "valu" in strip and t.startswith("v_") and not t.startswith("v_mfma") and not t.startswith("v_writelane"): continue
            out.append(ln)
        E.L = out
    return header(name) + E.text() + descriptor(name, 256)

def gen_k0(name):
    E = Em()
    vL, vN, vG, vL16, t0, t1, t2 = 1, 2, 3, 4, 5, 6, 7
    sW, sTmp, sTmp2, sGw, sJ, sQ, sC2, sPb = 3, 24, 25, 50, 51, 52, 53, 58
    E.e("s_cmp_ge_u32 s2, 72")
    E.e(f"s_cbranch_scc1 {name}_end")
    E.e("s_load_dwordx4 s[40:43], s[0:1], 16")
    E.e("s_load_dwordx2 s[44:45], s[0:1], 48")
    E.e(f"v_lshrrev_b32 v{t0}, 6, v0")
    E.e(f"v_and_b32 v{vL}, 63, v0")
    E.e(f"v_readfirstlane_b32 s{sW}, v{t0}")
    E.e(f"v_and_b32 v{vN}, 15, v{vL}")
    E.e(f"v_lshrrev_b32 v{vG}, 4, v{vL}")
    E.e(f"v_lshlrev_b32 v{vL16}, 4, v{vL}")
    E.e("s_waitcnt lgkmcnt(0)")
    srd(E, 20, 44, 45, 24*24576)
    emit_prep_loads(E, name, sW, vN, vG, t0, t1, t2, sTmp, sTmp2, 8, 40)
    E.e("s_waitcnt vmcnt(0)")
    for d in range(4): E.e(f"v_lshl_or_b32 v{16+d}, v{8+2*d+1}, 16, v{8+2*d}")
    E.e(f"s_mul_i32 s{sTmp}, s51, 24576")
    E.e(f"s_lshl_b32 s{sTmp2}, s52, 10")
    E.e(f"s_add_u32 s{sTmp}, s{sTmp}, s{sTmp2}")
    E.e(f"buffer_store_dwordx4 v[16:19], v{vL16}, s[20:23], s{sTmp} offen")
    E.label(f"{name}_end")
    E.e("s_endpgm")
    return header(name) + E.text() + descriptor(name, 32)

def emit_prep_loads(E, name, sW, vN, vG, t0, t1, t2, sTmp, sTmp2, PW, wptr):
    lw2 = f"{name}_pw2"; lst = f"{name}_pst"
    sGw, sJ, sQ, sC2, sPb = 50, 51, 52, 53, 68
    E.e(f"s_lshl_b32 s{sGw}, s2, 3")
    E.e(f"s_add_u32 s{sGw}, s{sGw}, s{sW}")
    E.e(f"s_mul_i32 s{sJ}, s{sGw}, 2731")
    E.e(f"s_lshr_b32 s{sJ}, s{sJ}, 16")
    E.e(f"s_mul_i32 s{sTmp}, s{sJ}, 24")
    E.e(f"s_sub_u32 s{sQ}, s{sGw}, s{sTmp}")
    E.e(f"s_cmp_ge_u32 s{sQ}, 12")
    E.e(f"s_cbranch_scc1 {lw2}")
    srd(E, 64, wptr, wptr+1, 192*768*2)
    E.e(f"s_add_u32 s{sC2}, s{sJ}, 1")
    E.e(f"s_cmp_eq_u32 s{sC2}, 24")
    E.e(f"s_cselect_b32 s{sC2}, 0, s{sC2}")
    E.e(f"s_cmp_ge_u32 s{sQ}, 6")
    E.e(f"s_cselect_b32 s{sTmp}, 1, 0")
    E.e(f"s_mul_i32 s{sTmp2}, s{sTmp}, 6")
    E.e(f"s_sub_u32 s{sTmp2}, s{sQ}, s{sTmp2}")
    E.e(f"s_mul_i32 s{sTmp2}, s{sTmp2}, 49152")
    E.e(f"s_lshl_b32 s{sTmp}, s{sTmp}, 5")
    E.e(f"s_add_u32 s{sTmp2}, s{sTmp2}, s{sTmp}")
    E.e(f"s_lshl_b32 s{sTmp}, s{sC2}, 6")
    E.e(f"s_add_u32 s{sPb}, s{sTmp2}, s{sTmp}")
    E.e(f"v_mul_u32_u24 v{t0}, 12288, v{vG}")
    E.e(f"v_lshl_add_u32 v{t0}, v{vN}, 1, v{t0}")
    E.e("s_mov_b32 s69, 1536")
    E.e("s_mov_b32 s70, 1536")
    E.e(f"s_branch {lst}")
    E.label(lw2)
    srd(E, 64, wptr+2, wptr+3, 192*768*2)
    E.e(f"s_add_u32 s{sC2}, s{sJ}, 23")
    E.e(f"s_cmp_ge_u32 s{sC2}, 24")
    E.e(f"s_cselect_b32 s{sTmp}, 24, 0")
    E.e(f"s_sub_u32 s{sC2}, s{sC2}, s{sTmp}")
    E.e(f"s_sub_u32 s{sTmp}, s{sQ}, 12")
    E.e(f"s_lshr_b32 s{sTmp2}, s{sTmp}, 1")
    E.e(f"s_lshl_b32 s{sTmp2}, s{sTmp2}, 6")
    E.e(f"s_and_b32 s{sTmp}, s{sTmp}, 1")
    E.e(f"s_lshl_b32 s{sTmp}, s{sTmp}, 3")
    E.e(f"s_add_u32 s{sTmp2}, s{sTmp2}, s{sTmp}")
    E.e(f"s_mul_i32 s{sTmp}, s{sC2}, 12288")
    E.e(f"s_add_u32 s{sPb}, s{sTmp2}, s{sTmp}")
    E.e(f"v_lshrrev_b32 v{t1}, 2, v{vN}")
    E.e(f"v_and_b32 v{t2}, 3, v{vN}")
    E.e(f"v_lshl_add_u32 v{t1}, v{t1}, 3, v{t2}")
    E.e(f"v_mul_u32_u24 v{t0}, 1536, v{vG}")
    E.e(f"v_lshl_add_u32 v{t0}, v{t1}, 1, v{t0}")
    E.e("s_mov_b32 s69, 384")
    E.e(f"s_mov_b32 s70, {6144 - 3*384}")
    E.label(lst)
    E.e(f"s_cmp_lt_u32 s{sGw}, 576")
    E.e("s_cselect_b32 s66, s66, 0")
    last = None
    for e in range(8):
        last = E.vm(f"buffer_load_ushort v{PW+e}, v{t0}, s[64:67], s{sPb} offen")
        if e < 7: E.e(f"s_add_u32 s{sPb}, s{sPb}, s{70 if e == 3 else 69}")
    return last

if __name__ == "__main__":
    print(gen_f1("f1_kernel"))
```

```python
from em import *
import math
A_ = 2*math.sqrt(2/math.pi)*math.log2(math.e); B_ = A_*0.044715; S_ = B_**(1/3)
XBYTES = 384*384*384
SLOT = 24576; NS = 3
GBUF = NS*SLOT
PBUF = GBUF + 24576
XA, XB = PBUF, 0
T1LOC, T0LOC = 57344, GBUF
HLOC = GBUF
STLOC = 147456
F1_LDS = 163840
NROUND = 3
D = 3
WS_T = 1 << 20

def mfma(d, a, b, c=None):
    src = "0" if c is None else f"v[{c}:{c+3}]"
    return f"v_mfma_f32_16x16x32_bf16 v[{d}:{d+3}], v[{a}:{a+3}], v[{b}:{b+3}], {src}"

def gen_f1(name, stamp=False, f16=True, psched={9: 3, 4: 2, 7: 1, 8: 0}, wsite=(10, 0, 2), rsite=4, xsite=3, wait2=True, strip=(), inprep=True, pkln=True, pf=(14, 17), nprod=72, fine=False, sp=3, cprio=True, dbgout=False, dbgshift=0, stflag=' sc1', xflag='', rflag=' nt', halfw=True, wlate=True, pfstart=False, inv=False, band=True, pf2=False, normil=False, m0once=True, wpf=True, stearly=0, sttest=None, tdma=False, wfill=True, tring=4, fintail=True, xbearly=True, sp1=1, mst=False, snake=False):
    E = Em()
    sW, sPair, sHb = 3, 33, 35
    sTmp, sTmp2, sTmp3 = 24, 25, 28
    sSelLo, sSelHi = 26, 27
    sNegA, sS, sAh, sSh = 29, 30, 92, 93
    sR0, sC0 = 44, 45
    sBase = 31
    sTileRow = 32
    sRowP, sRowC, sRound = 54, 55, 56
    sDw, sSo, sM0w, sDwo = 57, 34, 58, 59
    vL16 = 1; vDS = 2; vXa, vXa3 = 9, 10; vT = 11; vHw = 15
    vA0, vA2, vGr, vGw, vDo = 16, 17, 18, 19, 20
    vPx = 21; ID = 24; t0, t1 = 30, 31
    TT, GT, RS, AR, GI, S, X, O = 32, 36, 40, 52, 68, 80, 104, 176
    RAW2 = 248
    STAMP = 255
    RAW0, RAW1 = X, X + 8
    def Oreg(i, nt): return O + (((i >> 1)*3 + nt)*2 + (i & 1))*4
    packed = [Oreg(2*u, nt) for u in range(3) for nt in range(3)]
    free = [q for q in range(32, 248, 4) if q not in packed]
    ACC = free[:24]; Bq = free[24:32]; EOq = free[32:36]; Tq = free[36:40]
    CT = free[40:45]
    assert all(EOq[i+1] == EOq[i] + 4 for i in (0, 2)) or True

    stamps = []
    def st(tag, dyn=False):
        if not stamp: return
        if fine and dyn: dyn = False
        if dyn:
            base = len(stamps)
            for r in range(NROUND): stamps.append(f"{tag} r{r}")
            E.e(f"s_add_u32 m0, s{sRound}, {base}")
            E.e("s_memtime s[96:97]"); E.e("s_waitcnt lgkmcnt(0)")
            E.e(f"v_writelane_b32 v{STAMP}, s96, m0")
            E.e("s_add_u32 m0, m0, 32")
            E.e("s_memrealtime s[96:97]"); E.e("s_waitcnt lgkmcnt(0)")
            E.e(f"v_writelane_b32 v{STAMP}, s96, m0")
        else:
            i = len(stamps); stamps.append(tag)
            E.e("s_memtime s[96:97]"); E.e("s_waitcnt lgkmcnt(0)")
            E.e(f"v_writelane_b32 v{STAMP}, s96, {i}")
            E.e("s_memrealtime s[96:97]"); E.e("s_waitcnt lgkmcnt(0)")
            E.e(f"v_writelane_b32 v{STAMP}, s96, {32+i}")
        E.dl = E.nl

    E.e("s_cmp_ge_u32 s2, 256")
    E.e(f"s_cbranch_scc1 {name}_end")
    E.e("s_load_dwordx4 s[36:39], s[0:1], 0")
    E.e("s_load_dwordx2 s[40:41], s[0:1], 32")
    E.e("s_load_dwordx2 s[42:43], s[0:1], 48")
    if inprep:
        E.e("s_load_dwordx4 s[72:75], s[0:1], 16")
        E.e("s_load_dwordx2 s[76:77], s[0:1], 40")
    vL, vN, vG = 32, 33, 34
    a, b, c, d_, e_, f_, g_ = 35, 36, 37, 38, 39, 40, 41
    E.e(f"v_lshrrev_b32 v{a}, 6, v0")
    E.e(f"v_and_b32 v{vL}, 63, v0")
    E.e(f"v_readfirstlane_b32 s{sW}, v{a}")
    E.e(f"v_and_b32 v{vN}, 15, v{vL}")
    E.e(f"v_lshrrev_b32 v{vG}, 4, v{vL}")
    E.e(f"v_lshlrev_b32 v{vL16}, 4, v{vL}")
    E.e(f"s_and_b32 s{sPair}, s{sW}, 3")
    E.e(f"s_lshr_b32 s{sHb}, s{sW}, 2")
    E.e(f"s_mov_b32 s{sSelLo}, 0x05040100")
    E.e(f"s_mov_b32 s{sSelHi}, 0x07060302")
    E.e(f"s_mov_b32 s{sNegA}, {f2u(-A_/S_):#x}")
    E.e(f"s_mov_b32 s{sS}, {f2u(S_):#x}")
    if f16:
        import numpy as np
        h16 = lambda x: int(np.array([x], np.float16).view(np.uint16)[0])
        E.e(f"s_mov_b32 s{sAh}, {h16(A_/S_)*0x10001:#x}")
        E.e(f"s_mov_b32 s{sSh}, {h16(S_)*0x10001:#x}")
    E.e(f"s_and_b32 s{sTmp}, s2, 7")
    E.e(f"s_lshl_b32 s{sTmp}, s{sTmp}, 5")
    E.e(f"s_lshr_b32 s{sTmp2}, s2, 3")
    E.e(f"s_add_u32 s{sTmp}, s{sTmp}, s{sTmp2}")
    if band:
        E.e(f"s_lshr_b32 s{sR0}, s{sTmp}, 5")
        E.e(f"s_mul_i32 s{sR0}, s{sR0}, 48")
        E.e(f"s_bfe_u32 s{sTmp2}, s{sTmp}, 0x10004")
        E.e(f"s_lshl_b32 s{sTmp2}, s{sTmp2}, 3")
        E.e(f"s_add_u32 s{sR0}, s{sR0}, s{sTmp2}")
    else:
        E.e(f"s_lshr_b32 s{sR0}, s{sTmp}, 4")
        E.e(f"s_mul_i32 s{sR0}, s{sR0}, 24")
    RSTEP = 16 if band else 8
    E.e(f"s_and_b32 s{sC0}, s{sTmp}, 15")
    E.e(f"s_mul_i32 s{sC0}, s{sC0}, 24")
    E.e(f"s_mul_i32 s{sM0w}, s{sW}, 7168")
    E.e(f"s_mul_i32 s{sDw}, s{sW}, 3072")
    E.e(f"s_mul_i32 s{sDwo}, s{sW}, 2688")
    E.e(f"s_cmp_eq_u32 s{sW}, 7")
    E.e(f"s_cselect_b32 s{sDwo}, 0x100000, s{sDwo}")
    E.e("s_waitcnt lgkmcnt(0)")
    srd(E, 4, 36, 37, XBYTES)
    srd(E, 16, 36, 37, XBYTES)
    srd(E, 12, 38, 39, 7*7*192*2)
    srd(E, 8, 42, 43, 24*SLOT)
    srd(E, 20, 40, 41, XBYTES)
    E.e("s_mov_b32 s22, 0")
    if stamp: E.e(f"v_mov_b32 v{STAMP}, 0")
    st("start")

    state = {"round0": None}
    dwl = {}
    def dw_load1(cb, j, first=False):
        base = (RAW0, RAW1, RAW2)[cb]
        if first: E.e(f"v_lshrrev_b32 v{t0}, 3, v{vL16}")
        if j == 0 or first: E.e(f"s_add_u32 s71, s{sDwo}, {128*cb}")
        dwl[cb] = E.vm(f"buffer_load_ushort v{base+j}, v{t0}, s[12:15], s71 offen offset:{384*j}")
    def dw_loads():
        for cb in range(3):
            for j in range(7): dw_load1(cb, j, first=(cb == 0 and j == 0))
    def t_write(raw, loc, u, t0=t0, t1=t1):
        u0, u1 = u
        E.e(f"v_lshl_or_b32 v{u0+0}, v{raw+1}, 16, v{raw+0}")
        E.e(f"v_lshl_or_b32 v{u0+1}, v{raw+3}, 16, v{raw+2}")
        E.e(f"v_lshl_or_b32 v{u0+2}, v{raw+5}, 16, v{raw+4}")
        E.e(f"v_mov_b32 v{u0+3}, v{raw+6}")
        E.e(f"v_lshlrev_b32 v{u1+0}, 16, v{raw+0}")
        E.e(f"v_lshl_or_b32 v{u1+1}, v{raw+2}, 16, v{raw+1}")
        E.e(f"v_lshl_or_b32 v{u1+2}, v{raw+4}, 16, v{raw+3}")
        E.e(f"v_lshl_or_b32 v{u1+3}, v{raw+6}, 16, v{raw+5}")
        E.e(f"v_mul_u32_u24 v{t0}, 15, v{vL16}")
        E.e(f"s_lshl_b32 s{sTmp}, s{sW}, 5")
        E.e(f"s_add_u32 s{sTmp}, s{sTmp}, {loc}")
        E.e(f"v_add_u32 v{t0}, s{sTmp}, v{t0}")
        E.e(f"s_cmp_eq_u32 s{sW}, 7")
        E.e(f"s_cselect_b32 s{sTmp}, 0, 16")
        E.e(f"v_add_u32 v{t1}, s{sTmp}, v{t0}")
        E.ds(f"ds_write_b128 v{t0}, v[{u0}:{u0+3}]")
        E.ds(f"ds_write_b128 v{t1}, v[{u1}:{u1+3}]")

    PW = 60
    if inprep:
        pld = emit_prep_loads(E, name, sW, vN, vG, a, b, c, sTmp, sTmp2, PW, 72)
        srd(E, 80, 76, 77, 256)
        srd(E, 84, 76, 77, 256)
        E.e(f"s_cmp_lt_u32 s2, {nprod + (1 if tdma else 0)}")
        E.e("s_cselect_b32 s86, s86, 0")
        srd(E, 88, 42, 43, 24*SLOT)
        E.e(f"s_cmp_lt_u32 s2, {nprod}")
        E.e("s_cselect_b32 s90, s90, 0")
    xd = {}
    E.e(f"s_mov_b32 s{sTileRow}, s{sR0}")
    E.e(f"s_sub_u32 s{sBase}, s{sTileRow}, 3")
    E.e(f"s_mul_i32 s{sBase}, s{sBase}, 384")
    E.e(f"s_add_u32 s{sBase}, s{sBase}, s{sC0}")
    E.e(f"s_sub_u32 s{sBase}, s{sBase}, 3")
    E.e(f"s_mul_i32 s{sBase}, s{sBase}, 384")
    E.e(f"s_mul_i32 s{sTmp}, s{sW}, 448")
    E.e(f"s_sub_u32 s{sTmp2}, s{sC0}, 3")
    for q in range(7):
        P, r, rem, sl, n_, dx, tt = a, b, c, d_, e_, f_, g_
        E.e(f"v_add_u32 v{P}, s{sTmp}, v{vL}")
        if q: E.e(f"v_add_u32 v{P}, {64*q}, v{P}")
        E.e(f"v_mul_u32_u24 v{r}, 4370, v{P}")
        E.e(f"v_lshrrev_b32 v{r}, 20, v{r}")
        E.e(f"v_mul_u32_u24 v{rem}, 240, v{r}")
        E.e(f"v_sub_u32 v{rem}, v{P}, v{rem}")
        E.e(f"v_lshrrev_b32 v{sl}, 3, v{rem}")
        E.e(f"v_and_b32 v{rem}, 7, v{rem}")
        E.e(f"v_cmp_le_u32 vcc, 15, v{sl}")
        E.e(f"v_mov_b32 v{dx}, 0")
        E.e("s_nop 0")
        E.e(f"v_addc_co_u32 v{dx}, vcc, 0, v{dx}, vcc")
        E.e(f"v_mul_u32_u24 v{n_}, 15, v{dx}")
        E.e(f"v_sub_u32 v{n_}, v{sl}, v{n_}")
        E.e(f"v_lshrrev_b32 v{sl}, 1, v{n_}")
        E.e(f"v_sub_u32 v{rem}, v{rem}, v{sl}")
        E.e(f"v_and_b32 v{rem}, 7, v{rem}")
        E.e(f"v_lshl_add_u32 v{n_}, v{n_}, 1, v{dx}")
        dd = vDS + q
        E.e(f"s_mov_b32 s{sTmp3}, 147456")
        E.e(f"v_mul_lo_u32 v{dd}, v{r}, s{sTmp3}")
        E.e(f"v_mul_u32_u24 v{tt}, 384, v{n_}")
        E.e(f"v_add_u32 v{dd}, v{dd}, v{tt}")
        E.e(f"v_lshl_add_u32 v{dd}, v{rem}, 4, v{dd}")
        E.e(f"v_add_u32 v{tt}, s{sTmp2}, v{n_}")
        E.e(f"v_cmp_gt_u32 vcc, 384, v{tt}")
        E.e(f"s_movk_i32 s{sTmp3}, 3360")
        E.e(f"v_cmp_gt_u32 s[48:49], s{sTmp3}, v{P}")
        E.e("s_nop 1")
        E.e("s_and_b64 vcc, vcc, s[48:49]")
        E.e(f"v_mov_b32 v{tt}, 0x40000000")
        E.e("s_nop 0")
        E.e(f"v_cndmask_b32 v{dd}, v{tt}, v{dd}, vcc")
        E.e(f"s_add_u32 m0, s{sM0w}, {XA + 1024*q}")
        E.e(f"v_add_u32 v{t0}, s{sBase}, v{dd}")
        xd[0] = E.vm(f"buffer_load_dwordx4 v{t0}, s[4:7], 0 offen lds")
    def x_base(s):
        E.e(f"s_sub_u32 s{sBase}, s{sTileRow}, 3")
        E.e(f"s_mul_i32 s{sBase}, s{sBase}, 384")
        E.e(f"s_add_u32 s{sBase}, s{sBase}, s{sC0}")
        E.e(f"s_sub_u32 s{sBase}, s{sBase}, 3")
        E.e(f"s_mul_i32 s{sBase}, s{sBase}, 384")
        if s: E.e(f"s_add_u32 s{sBase}, s{sBase}, {128*s}")
    def x_dma_guard(q, early):
        lbl = f"{name}_xb{'e' if early else 'l'}{q}{state.get('tag', '')}"
        E.e(f"s_cmp_gt_i32 s100, {q}")
        E.e(f"s_cbranch_scc{0 if early else 1} {lbl}")
        x_dma(1, q, XB, tmp=(X + 16 if early else None), skippable=True)
        E.label(lbl)
    def x_dma(s, q, loc, tmp=None, skippable=False):
        tv = (t0 if (q & 1) == 0 else t1) if tmp is None else tmp + (q & 1)
        E.e(f"s_add_u32 m0, s{sM0w}, {loc + 1024*q}")
        E.e(f"v_add_u32 v{tv}, s{sBase}, v{vDS+q}")
        xd[s] = E.vm(f"buffer_load_dwordx4 v{tv}, s[4:7], 0 offen{xflag} lds", skippable=skippable)
    dw_loads()
    x_base(1)
    for q in range(7): x_dma(1, q, XB)
    pst = None
    if inprep:
        E.wait(v=pld)
        for d in range(4): E.e(f"v_lshl_or_b32 v{68+d}, v{PW+2*d+1}, 16, v{PW+2*d}")
        E.e(f"s_mul_i32 s{sTmp}, s51, 24576")
        E.e(f"s_lshl_b32 s{sTmp2}, s52, 10")
        E.e(f"s_add_u32 s{sTmp}, s{sTmp}, s{sTmp2}")
        pst = E.vm(f"buffer_store_dwordx4 v[68:71], v{vL16}, s[88:91], s{sTmp} offen sc1")
    E.e(f"s_mul_i32 s{sTmp}, s{sW}, 53")
    E.e(f"v_add_u32 v{a}, s{sTmp}, v{vL}")
    E.e(f"v_mul_u32_u24 v{b}, 2185, v{a}")
    E.e(f"v_lshrrev_b32 v{b}, 16, v{b}")
    E.e(f"v_mul_u32_u24 v{c}, 30, v{b}")
    E.e(f"v_sub_u32 v{c}, v{a}, v{c}")
    E.e(f"s_mov_b32 s{sTmp3}, 147456")
    E.e(f"v_mul_lo_u32 v{d_}, v{b}, s{sTmp3}")
    E.e(f"v_mul_u32_u24 v{e_}, 384, v{c}")
    E.e(f"v_add_u32 v{d_}, v{d_}, v{e_}")
    E.e(f"s_sub_u32 s{sTmp2}, s{sC0}, 3")
    E.e(f"v_add_u32 v{e_}, s{sTmp2}, v{c}")
    E.e(f"v_cmp_gt_u32 vcc, 384, v{e_}")
    E.e(f"s_movk_i32 s{sTmp3}, 420")
    E.e(f"v_cmp_gt_u32 s[48:49], s{sTmp3}, v{a}")
    E.e("s_nop 1")
    E.e("s_and_b64 vcc, vcc, s[48:49]")
    E.e(f"v_cmp_gt_u32 s[48:49], 53, v{vL}")
    E.e("s_nop 1")
    E.e("s_and_b64 vcc, vcc, s[48:49]")
    E.e(f"v_mov_b32 v{e_}, 0x40000000")
    E.e("s_nop 0")
    E.e(f"v_cndmask_b32 v0, v{e_}, v{d_}, vcc")
    pf0 = None
    if pf and pfstart:
        x_base(2)
        E.e(f"v_add_u32 v{t0}, s{sBase}, v0")
        pf0 = E.vm(f"buffer_load_dword v{RAW2+7 if not stamp else 72}, v{t0}, s[4:7], 0 offen")
    E.e(f"v_lshrrev_b32 v{a}, 1, v{vN}")
    E.e(f"v_add_u32 v{a}, s{sW}, v{a}")
    E.e(f"v_and_b32 v{a}, 7, v{a}")
    E.e(f"v_lshlrev_b32 v{a}, 4, v{a}")
    E.e(f"v_lshl_add_u32 v{a}, v{vN}, 7, v{a}")
    E.e(f"v_mul_u32_u24 v{b}, 3840, v{vG}")
    E.e(f"v_add_u32 v{vXa}, v{a}, v{b}")
    E.e(f"v_add_u32 v{b}, 12, v{vG}")
    E.e(f"v_min_u32 v{b}, 13, v{b}")
    E.e(f"v_mul_u32_u24 v{b}, 3840, v{b}")
    E.e(f"v_add_u32 v{vXa3}, v{a}, v{b}")
    E.e(f"v_lshrrev_b32 v{a}, 1, v{vN}")
    E.e(f"v_and_b32 v{b}, 1, v{vN}")
    E.e(f"v_sub_u32 v{a}, v{vG}, v{a}")
    E.e(f"s_mul_i32 s{sTmp}, s{sW}, 1920")
    E.e(f"s_add_u32 s{sTmp}, s{sTmp}, {T1LOC}")
    for f in range(4):
        E.e(f"v_add_u32 v{c}, {4*f}, v{a}")
        E.e(f"v_lshl_add_u32 v{d_}, v{c}, 1, v{b}")
        E.e(f"v_cmp_gt_u32 vcc, 7, v{c}")
        E.e(f"v_mov_b32 v{e_}, 14")
        E.e("s_nop 0")
        E.e(f"v_cndmask_b32 v{d_}, v{e_}, v{d_}, vcc")
        E.e(f"v_lshlrev_b32 v{d_}, 4, v{d_}")
        E.e(f"v_add_u32 v{vT+f}, s{sTmp}, v{d_}")
    E.e(f"v_mul_u32_u24 v{a}, 12, v{vG}")
    E.e(f"v_add_u32 v{a}, v{a}, v{vN}")
    E.e(f"v_lshrrev_b32 v{b}, 4, v{a}")
    E.e(f"v_and_b32 v{a}, 15, v{a}")
    E.e(f"v_lshlrev_b32 v{a}, 4, v{a}")
    E.e(f"v_lshl_add_u32 v{a}, v{b}, 10, v{a}")
    E.e(f"s_mul_i32 s{sTmp}, s{sHb}, 3072")
    E.e(f"s_lshl_b32 s{sTmp2}, s{sPair}, 8")
    E.e(f"s_add_u32 s{sTmp}, s{sTmp}, s{sTmp2}")
    E.e(f"s_add_u32 s{sTmp}, s{sTmp}, {HLOC}")
    E.e(f"v_add_u32 v{vHw}, s{sTmp}, v{a}")
    E.e(f"v_cmp_gt_u32 s[60:61], 12, v{vN}")
    E.e(f"s_mul_i32 s{sTmp}, s{sHb}, 6144")
    E.e(f"v_add_u32 v{vA0}, s{sTmp}, v{vL16}")
    E.e(f"v_add_u32 v{vA2}, {2*SLOT}, v{vA0}")
    E.e(f"s_mul_i32 s{sTmp}, s{sPair}, 3072")
    E.e(f"s_add_u32 s{sTmp}, s{sTmp}, {GBUF}")
    E.e(f"v_add_u32 v{vGr}, s{sTmp}, v{vL16}")
    E.e(f"s_lshl_b32 s{sTmp2}, s{sHb}, 3")
    E.e(f"v_add_u32 v{vGw}, s{sTmp2}, v{vGr}")
    E.e(f"v_add_u32 v{vDo}, s{sDw}, v{vL16}")
    E.e(f"s_lshr_b32 s{sTmp}, s{sPair}, 1")
    E.e(f"s_add_u32 s46, s{sR0}, s{sTmp}")
    E.e(f"s_and_b32 s{sTmp}, s{sPair}, 1")
    E.e(f"s_add_u32 s47, s{sC0}, s{sTmp}")
    E.e(f"s_mul_i32 s{sTmp3}, s{sHb}, 192")
    for nt in range(3):
        E.e(f"v_add_u32 v{a}, {16*nt}, v{vN}")
        E.e(f"v_mul_u32_u24 v{b}, 43, v{a}")
        E.e(f"v_lshrrev_b32 v{b}, 9, v{b}")
        E.e(f"v_mul_u32_u24 v{c}, 12, v{b}")
        E.e(f"v_sub_u32 v{c}, v{a}, v{c}")
        E.e(f"v_lshl_add_u32 v{b}, v{b}, 1, s46")
        E.e(f"v_lshl_add_u32 v{c}, v{c}, 1, s47")
        E.e(f"v_mul_u32_u24 v{b}, 384, v{b}")
        E.e(f"v_add_u32 v{b}, v{b}, v{c}")
        E.e(f"v_mul_u32_u24 v{b}, 384, v{b}")
        E.e(f"v_lshl_add_u32 v{b}, v{vG}, 4, v{b}")
        E.e(f"v_add_u32 v{vPx+nt}, s{sTmp3}, v{b}")
    E.e(f"v_lshrrev_b32 v{a}, 2, v{vN}")
    E.e(f"v_and_b32 v{b}, 3, v{vN}")
    E.e(f"v_and_b32 v{c}, 1, v{b}")
    E.e(f"v_lshlrev_b32 v{c}, 4, v{c}")
    E.e(f"v_mov_b32 v{d_}, 0x3f80")
    E.e(f"v_lshlrev_b32 v{d_}, v{c}, v{d_}")
    E.e(f"v_cmp_eq_u32 vcc, v{a}, v{vG}")
    E.e(f"v_mov_b32 v{c}, 0")
    E.e("s_nop 0")
    E.e(f"v_cndmask_b32 v{d_}, v{c}, v{d_}, vcc")
    E.e(f"v_cmp_gt_u32 vcc, 2, v{b}")
    E.e("s_nop 1")
    E.e(f"v_cndmask_b32 v{ID+2}, v{c}, v{d_}, vcc")
    E.e(f"v_cndmask_b32 v{ID+3}, v{d_}, v{c}, vcc")
    for i in (0, 1, 4, 5): E.e(f"v_mov_b32 v{ID+i}, 0")
    E.wait(v=dwl[2])
    t_write(RAW0, T0LOC, (44, 48))
    t_write(RAW1, T1LOC, (52, 56))
    if tdma:
        E.e(f"s_add_u32 s64, s42, {WS_T}")
        E.e("s_addc_u32 s65, s43, 0")
        E.e("s_and_b32 s65, s65, 0xffff")
        E.e(f"s_mov_b32 s66, {3*16384}")
        E.e("s_mov_b32 s67, 0x00020000")
        lbl = f"{name}_notp"
        E.e("s_cmp_lg_u32 s2, 72")
        E.e(f"s_cbranch_scc1 {lbl}")
        u0, u1 = 76, 80
        raw = RAW2
        E.e(f"v_lshl_or_b32 v{u0+0}, v{raw+1}, 16, v{raw+0}")
        E.e(f"v_lshl_or_b32 v{u0+1}, v{raw+3}, 16, v{raw+2}")
        E.e(f"v_lshl_or_b32 v{u0+2}, v{raw+5}, 16, v{raw+4}")
        E.e(f"v_mov_b32 v{u0+3}, v{raw+6}")
        E.e(f"v_lshlrev_b32 v{u1+0}, 16, v{raw+0}")
        E.e(f"v_lshl_or_b32 v{u1+1}, v{raw+2}, 16, v{raw+1}")
        E.e(f"v_lshl_or_b32 v{u1+2}, v{raw+4}, 16, v{raw+3}")
        E.e(f"v_lshl_or_b32 v{u1+3}, v{raw+6}, 16, v{raw+5}")
        E.e(f"v_mul_u32_u24 v{t0}, 15, v{vL16}")
        E.e(f"s_lshl_b32 s{sTmp}, s{sW}, 5")
        E.e(f"v_add_u32 v{t0}, s{sTmp}, v{t0}")
        E.e(f"s_cmp_eq_u32 s{sW}, 7")
        E.e(f"s_cselect_b32 s{sTmp}, 0, 16")
        E.e(f"v_add_u32 v{t1}, s{sTmp}, v{t0}")
        for cb, (q0, q1) in enumerate(((44, 48), (52, 56), (u0, u1))):
            E.e(f"s_mov_b32 s{sTmp}, {cb*16384}")
            E.vm(f"buffer_store_dwordx4 v[{q0}:{q0+3}], v{t0}, s[64:67], s{sTmp} offen sc1", skippable=True)
            E.vm(f"buffer_store_dwordx4 v[{q1}:{q1+3}], v{t1}, s[64:67], s{sTmp} offen sc1", skippable=True)
        E.label(lbl)
    if wfill:
        E.e(f"s_mul_i32 s{sTmp}, s{sPair}, 3072")
        E.e(f"s_cmp_eq_u32 s{sHb}, 0")
        E.e(f"s_cselect_b32 s78, {2*SLOT}, 0")
        E.e(f"s_cselect_b32 s79, {23*SLOT}, 0")
        E.e(f"s_add_u32 s78, s78, s{sTmp}")
        E.e(f"s_add_u32 s79, s79, s{sTmp}")
    E.e(f"s_mul_i32 s100, s{sW}, 7")
    E.e("s_sub_u32 s100, 48, s100")
    E.e("s_mov_b32 s95, 12288")
    E.e(f"s_mov_b32 s{sRound}, 0")
    E.e(f"s_mov_b32 s{sRowP}, 0")
    E.e(f"s_mov_b32 s{sRowC}, 0")
    E.wait(v=xd[0] if not (stamp and pf0) else max(xd[0], pf0))
    E.wait_all_lds(force=True)
    E.e("s_barrier")
    if pf2:
        x_base(2)
        E.e(f"v_add_u32 v{t0}, s{sBase}, v0")
        E.vm(f"buffer_load_dword v{CT[3]}, v{t0}, s[4:7], 0 offen")
    extra = E.nv - xd[1]
    E.nv -= extra; E.dv = min(E.dv, E.nv)
    st("prologue")

    dma = {}; rd = {}; gi = {}; resid = {}
    RL, RN = 3, 3
    def out_store(q):
        u, nt = divmod(q, 3); o = Oreg(2*u, nt)
        if sttest == "lin":
            E.e(f"s_mul_i32 s97, s2, 221184")
            E.e(f"s_mul_i32 s98, s{sRound}, 73728")
            E.e(f"s_add_u32 s97, s97, s98")
            E.e(f"s_mul_i32 s98, s{sW}, 9216")
            E.e(f"s_add_u32 s97, s97, s98")
            E.e(f"s_add_u32 s97, s97, {q*1024}")
            E.vm(f"buffer_store_dwordx4 v[{o}:{o+3}], v{vL16}, s[20:23], s97 offen{stflag}")
            return
        if sttest == "none":
            E.vm(f"buffer_store_dwordx4 v[{o}:{o+3}], v{vPx+nt}, s[84:87], s{sRowP} offen offset:{u*64}{stflag}")
            return
        E.vm(f"buffer_store_dwordx4 v[{o}:{o+3}], v{vPx+nt}, s[20:23], s{sRowP} offen offset:{u*64}{stflag}")

    def conv_step(s, side=(), spc=None):
        side = list(side)
        spc = spc or sp
        loc = XB if s == 1 else XA
        toff = 0 if s == 1 else T0LOC - T1LOC
        E.c(f"==== conv step {s}")
        E.e(f"v_add_u32 v{t0}, {loc}, v{vXa}")
        E.e(f"v_add_u32 v{t1}, {loc}, v{vXa3}")
        def rd_eo(f):
            e4, o4 = EOq[2*(f & 1)], EOq[2*(f & 1)+1]
            adr = t1 if f == 3 else t0
            off = 0 if f == 3 else f*15360
            E.ds(f"ds_read_b128 v[{e4}:{e4+3}], v{adr} offset:{off}")
            return E.ds(f"ds_read_b128 v[{o4}:{o4+3}], v{adr} offset:{off+1920}")
        TR = (Tq + [CT[2], CT[3]])[:tring]
        def rd_t(idx):
            f, c_ = divmod(idx, 8); r = TR[idx % tring]
            return E.ds(f"ds_read_b128 v[{r}:{r+3}], v{vT+f} offset:{toff + c_*240}")
        eo = {0: rd_eo(0)}; tt = {}
        for i in range(tring - 1): tt[i] = rd_t(i)
        eo[1] = rd_eo(1)
        def mf(f, c_):
            idx = f*8 + c_
            E.wait(l=tt[idx])
            acc = ACC[8*s + c_]
            E.e(mfma(acc, TR[idx % tring], Bq[c_], None if f == 0 else acc))
            if idx + tring - 1 < 32: tt[idx + tring - 1] = rd_t(idx + tring - 1)
            if side and c_ != 6 and idx % spc == 0: side.pop(0)()
        for f in range(4):
            e4, o4 = EOq[2*(f & 1)], EOq[2*(f & 1)+1]
            if cprio: E.e(f"s_setprio {3-f}")
            E.wait(l=eo[f])
            for cp in range(4):
                E.e(f"v_perm_b32 v{Bq[2*cp]}, v{o4+cp}, v{e4+cp}, s{sSelLo}")
                E.e(f"v_perm_b32 v{Bq[2*cp+1]}, v{o4+cp}, v{e4+cp}, s{sSelHi}")
            if f + 2 < 4: eo[f+2] = rd_eo(f+2)
            for c_ in range(8):
                bb = Bq[c_]
                for dd in (1, 2, 3):
                    E.e(f"v_mov_b32_dpp v{bb+dd}, v{bb} row_shl:{dd} row_mask:0xf bank_mask:0xf bound_ctrl:1")
                if c_ > 0: mf(f, c_-1)
            E.e("s_nop 1")
            mf(f, 7)
        while side: side.pop(0)()

    def poll():
        if not inprep: return
        lp = f"{name}_poll"
        E.e(f"s_cmp_lg_u32 s{sRound}, 0")
        E.e(f"s_cbranch_scc1 {lp}_done")
        E.e(f"s_cmp_lg_u32 s{sW}, 0")
        E.e(f"s_cbranch_scc1 {lp}_bar")
        E.e(f"s_mov_b32 s{sTmp2}, 0")
        E.e(f"v_mov_b32 v{t0}, 0")
        E.label(f"{lp}")
        E.e(f"buffer_load_dword v{t1}, v{t0}, s[80:83], 0 offen sc1")
        E.e("s_waitcnt vmcnt(0)")
        E.e(f"v_readfirstlane_b32 s{sTmp}, v{t1}")
        E.e(f"s_add_u32 s{sTmp2}, s{sTmp2}, 1")
        E.e(f"s_cmp_ge_u32 s{sTmp2}, 0x40000")
        E.e(f"s_cbranch_scc1 {lp}_acq")
        E.e(f"s_cmp_lt_u32 s{sTmp}, {nprod + (1 if tdma else 0)}")
        E.e(f"s_cbranch_scc1 {lp}")
        E.label(f"{lp}_acq")
        if inv:
            E.e("buffer_inv sc1")
            E.e("s_waitcnt vmcnt(0)")
        E.label(f"{lp}_bar")
        E.e("s_barrier")
        if wpf:
            E.e(f"s_lshr_b32 s{sTmp}, s2, 3")
            E.e(f"s_and_b32 s{sTmp}, s{sTmp}, 31")
            E.e(f"s_lshl_b32 s{sTmp}, s{sTmp}, 3")
            E.e(f"s_add_u32 s{sTmp}, s{sTmp}, s{sW}")
            E.e(f"s_mul_i32 s{sTmp}, s{sTmp}, {18*128}")
            E.e(f"v_lshlrev_b32 v{t0}, 3, v{vL16}")
            E.e(f"v_cmp_gt_u32 vcc, {18*128}, v{t0}")
            E.e(f"v_mov_b32 v{t1}, 0x40000000")
            E.e("s_nop 0")
            E.e(f"v_cndmask_b32 v{t0}, v{t1}, v{t0}, vcc")
            E.e(f"buffer_load_dword v{RAW2}, v{t0}, s[8:11], s{sTmp} offen")
        E.label(f"{lp}_done")

    def layernorm():
        E.c("==== layernorm")
        ST = CT[0]; ST2 = CT[1]; RHO = CT[2]; BETA = CT[3]
        wl = []
        if wlate:
            poll()
            wl = [(J, i) for J in (-1, 0, 1) for i in range(3)] if not wfill else [("fill", i) for i in range(3)]
        E.e("s_nop 7")
        if pkln:
            for h in (0, 2):
                E.e(f"v_pk_add_f32 v[{ST+h}:{ST+h+1}], v[{ACC[0]+h}:{ACC[0]+h+1}], v[{ACC[1]+h}:{ACC[1]+h+1}]")
                E.e(f"v_pk_mul_f32 v[{ST2+h}:{ST2+h+1}], v[{ACC[0]+h}:{ACC[0]+h+1}], v[{ACC[0]+h}:{ACC[0]+h+1}]")
            for ch in range(1, 24):
                for h in (0, 2):
                    x_ = f"v[{ACC[ch]+h}:{ACC[ch]+h+1}]"
                    if ch > 1: E.e(f"v_pk_add_f32 v[{ST+h}:{ST+h+1}], v[{ST+h}:{ST+h+1}], {x_}")
                    E.e(f"v_pk_fma_f32 v[{ST2+h}:{ST2+h+1}], {x_}, {x_}, v[{ST2+h}:{ST2+h+1}]")
                if wl and ch % 2 == 0: issue_w(*wl.pop(0))
        else:
            for r in range(4):
                E.e(f"v_mov_b32 v{ST+r}, v{ACC[0]+r}")
                E.e(f"v_mul_f32 v{ST2+r}, v{ACC[0]+r}, v{ACC[0]+r}")
            for ch in range(1, 24):
                for r in range(4):
                    x_ = ACC[ch] + r
                    E.e(f"v_add_f32 v{ST+r}, v{ST+r}, v{x_}")
                    E.e(f"v_fmac_f32 v{ST2+r}, v{x_}, v{x_}")
        while wl: issue_w(*wl.pop(0))
        if halfw:
            E.e(f"v_add_u32 v{t0}, 12288, v{vL16}")
            E.e(f"s_lshl_b32 s{sTmp}, s{sW}, 10")
            E.e(f"v_add_u32 v{t1}, s{sTmp}, v{t0}")
            E.ds(f"ds_write_b128 v{t1}, v[{ST}:{ST+3}]")
            E.ds(f"ds_write_b128 v{t1}, v[{ST2}:{ST2+3}] offset:49152")
            sstride, soff = 1024, 49152
        else:
            E.e(f"v_add_u32 v{t0}, {STLOC}, v{vL16}")
            E.e(f"s_lshl_b32 s{sTmp}, s{sW}, 11")
            E.e(f"v_add_u32 v{t1}, s{sTmp}, v{t0}")
            E.wait_all_lds(force=True)
            if fine: st("ln stats")
            E.e("s_barrier")
            if fine: st("BA")
            E.ds(f"ds_write_b128 v{t1}, v[{ST}:{ST+3}]")
            E.ds(f"ds_write_b128 v{t1}, v[{ST2}:{ST2+3}] offset:1024")
            sstride, soff = 2048, 1024
        E.wait_all_lds(force=True)
        E.e("s_barrier")
        if fine: st("BB")
        RB = Bq + EOq + Tq
        for w in range(8):
            E.ds(f"ds_read_b128 v[{RB[2*w]}:{RB[2*w]+3}], v{t0} offset:{sstride*w}")
            E.ds(f"ds_read_b128 v[{RB[2*w+1]}:{RB[2*w+1]+3}], v{t0} offset:{sstride*w+soff}")
        base_id = E.nl - 16
        for w in range(1, 8):
            E.wait(l=base_id + 2*w + 2)
            for h in (0, 2):
                for k, dst in enumerate((ST, ST2)):
                    src = RB[2*w + k]
                    s0 = RB[k] if w == 1 else dst
                    E.e(f"v_pk_add_f32 v[{dst+h}:{dst+h+1}], v[{s0+h}:{s0+h+1}], v[{src+h}:{src+h+1}]")
        E.e(f"v_mov_b32 v{RHO}, {f2u(1.0/192):#x}")
        E.e(f"v_mov_b32 v{RHO+1}, {f2u(1.0/192):#x}")
        E.e(f"v_mov_b32 v{RHO+2}, {f2u(1e-5):#x}")
        for h in (0, 2):
            E.e(f"v_pk_mul_f32 v[{ST+h}:{ST+h+1}], v[{ST+h}:{ST+h+1}], v[{RHO}:{RHO+1}]")
            E.e(f"v_pk_mul_f32 v[{ST2+h}:{ST2+h+1}], v[{ST2+h}:{ST2+h+1}], v[{RHO}:{RHO+1}]")
        for h in (0, 2):
            E.e(f"v_pk_fma_f32 v[{ST2+h}:{ST2+h+1}], v[{ST+h}:{ST+h+1}], v[{ST+h}:{ST+h+1}], v[{ST2+h}:{ST2+h+1}] neg_lo:[1,0,0] neg_hi:[1,0,0]")
        for r in range(4): E.e(f"v_max_f32 v{ST2+r}, 0, v{ST2+r}")
        for r in range(4): E.e(f"v_add_f32 v{ST2+r}, v{RHO+2}, v{ST2+r}")
        for r in range(4): E.e(f"v_rsq_f32 v{RHO+r}, v{ST2+r}")
        E.e("s_nop 0")
        for r in range(4): E.e(f"v_mul_f32 v{RHO+r}, s{sS}, v{RHO+r}")
        for h in (0, 2):
            E.e(f"v_pk_mul_f32 v[{BETA+h}:{BETA+h+1}], v[{ST+h}:{ST+h+1}], v[{RHO+h}:{RHO+h+1}]")
        if fine: st("ln rho")
        E.e(f"v_add_u32 v{t0}, 32768, v{vHw}")
        E.e("s_mov_b64 s[62:63], exec")
        E.e("s_mov_b64 exec, s[60:61]")
        ta, tb = EOq[0], EOq[0] + 1
        for cg in range(3):
            if pkln and (normil or cg == 0):
                for ch in (range(8*cg, 8*cg + 8) if normil else range(24)):
                    for h in (0, 2):
                        x_ = f"v[{ACC[ch]+h}:{ACC[ch]+h+1}]"
                        E.e(f"v_pk_fma_f32 {x_}, {x_}, v[{RHO+h}:{RHO+h+1}], v[{BETA+h}:{BETA+h+1}] neg_lo:[0,0,1] neg_hi:[0,0,1]")
            for r in range(4):
                o = Bq[(cg*4 + r) & 7]
                for cp in range(4):
                    a0 = ACC[8*cg + 2*cp] + r; a1 = ACC[8*cg + 2*cp + 1] + r
                    if pkln:
                        E.e(f"v_cvt_pk_bf16_f32 v{o+cp}, v{a0}, v{a1}")
                    else:
                        E.e(f"v_fma_f32 v{ta}, v{a0}, v{RHO+r}, -v{BETA+r}")
                        E.e(f"v_fma_f32 v{tb}, v{a1}, v{RHO+r}, -v{BETA+r}")
                        E.e(f"v_cvt_pk_bf16_f32 v{o+cp}, v{ta}, v{tb}")
                off = r*18432 + cg*6144
                adr = vHw
                if off >= 32768: adr, off = t0, off - 32768
                E.ds(f"ds_write_b128 v{adr}, v[{o}:{o+3}] offset:{off}")
        E.e("s_mov_b64 exec, s[62:63]")

    wuid = [0]
    def issue_w(J, i):
        if J == "fill":
            if i == 0: E.e("s_mov_b32 m0, s78")
            if i == 0: E.e("s_nop 0")
            dma[-1] = dma[0] = E.vm(f"buffer_load_dwordx4 v{vL16}, s[8:11], s79 offen offset:{i*1024} lds")
            return
        j = J % 24; slot = (J % NS)*SLOT
        if xbearly and J == 24: slot = 2*SLOT - 12288
        skip = None
        if halfw and J in (-1, 0): skip = 1
        if halfw and J in (23, 24): skip = 0
        if skip is not None:
            lbl = f"{name}_ws{J % 100}_{i}".replace("-", "m")
            E.e(f"s_cmp_eq_u32 s{sHb}, {skip}")
            E.e(f"s_cbranch_scc1 {lbl}")
        if m0once and J >= 2:
            if i == 0:
                E.e(f"s_add_u32 m0, s{sDw}, {slot}")
                E.e(f"s_mov_b32 s94, {j*SLOT}")
            dma[J] = E.vm(f"buffer_load_dwordx4 v{vDo}, s[8:11], s94 offen offset:{i*1024} lds", skippable=skip is not None)
        else:
            E.e(f"s_add_u32 m0, s{sDw}, {slot + i*1024}")
            E.e(f"s_mov_b32 s{sSo}, {j*SLOT + i*1024}")
            dma[J] = E.vm(f"buffer_load_dwordx4 v{vDo}, s[8:11], s{sSo} offen lds", skippable=skip is not None)
        if skip is not None: E.label(lbl)
    def a_read(J, f):
        slot = J % NS
        base, off = (vA2, (slot-2)*SLOT) if slot >= 2 else (vA0, slot*SLOT)
        o = off + (f*1024 if f < 6 else 12288 + (f-6)*1024)
        if xbearly and J == 24: base, o = vA2, (f-6)*1024
        r = AR + 4*(((J+1)*12 + f) & 3)
        rd[(J, f)] = E.ds(f"ds_read_b128 v[{r}:{r+3}], v{base} offset:{o}")
    def gelu_half(c_, p, hf2):
        nt, hf = divmod(p, 2)
        uA = S + 12*(c_ & 1) + 4*nt + 2*hf; uB = uA + 1
        ta = TT + 2*(p & 1); tb = ta + 1
        gd = GT + 2*(nt & 1) + hf
        if f16:
            if hf2 == 0:
                return [f"v_cvt_pk_f16_f32 v{ta}, v{uA}, v{uB}",
                        f"v_pk_fma_f16 v{tb}, v{ta}, v{ta}, s{sAh}",
                        f"v_pk_mul_f16 v{tb}, v{tb}, v{ta} neg_lo:[1,0] neg_hi:[1,0]",
                        f"v_exp_f16_sdwa v{ta}, v{tb} dst_sel:WORD_0 dst_unused:UNUSED_PAD src0_sel:WORD_0",
                        f"v_exp_f16_sdwa v{ta}, v{tb} dst_sel:WORD_1 dst_unused:UNUSED_PRESERVE src0_sel:WORD_1"]
            return [f"v_pk_fma_f16 v{ta}, v{ta}, s{sSh}, s{sSh}",
                    f"v_rcp_f16_sdwa v{tb}, v{ta} dst_sel:WORD_0 dst_unused:UNUSED_PAD src0_sel:WORD_0",
                    f"v_rcp_f16_sdwa v{tb}, v{ta} dst_sel:WORD_1 dst_unused:UNUSED_PRESERVE src0_sel:WORD_1",
                    f"v_fma_mix_f32 v{ta}, v{uA}, v{tb}, 0 op_sel_hi:[0,1,0]",
                    f"v_fma_mix_f32 v{tb}, v{uB}, v{tb}, 0 op_sel:[0,1,0] op_sel_hi:[0,1,0]",
                    f"v_cvt_pk_bf16_f32 v{gd}, v{ta}, v{tb}"]
        if hf2 == 0:
            return [f"v_fma_f32 v{ta}, -v{uA}, v{uA}, s{sNegA}", f"v_fma_f32 v{tb}, -v{uB}, v{uB}, s{sNegA}",
                    f"v_mul_f32 v{ta}, v{ta}, v{uA}", f"v_mul_f32 v{tb}, v{tb}, v{uB}",
                    f"v_exp_f32 v{ta}, v{ta}", f"v_exp_f32 v{tb}, v{tb}"]
        return [f"v_fma_f32 v{ta}, v{ta}, s{sS}, s{sS}", f"v_fma_f32 v{tb}, v{tb}, s{sS}, s{sS}",
                f"v_rcp_f32 v{ta}, v{ta}", f"v_rcp_f32 v{tb}, v{tb}",
                f"v_mul_f32 v{ta}, v{uA}, v{ta}", f"v_mul_f32 v{tb}, v{uB}, v{tb}",
                f"v_cvt_pk_bf16_f32 v{gd}, v{ta}, v{tb}"]

    def stage(J, final=False):
        g1 = 0 <= J + 1 <= 23; g2 = 0 <= J - 1 <= 23
        last = J == 24
        E.c(f"---- stage {J}")
        def needs_frag(JJ, f): return (0 <= JJ + 1 <= 23) if f < 6 else (0 <= JJ - 1 <= 23)
        for g in range(12):
            gg = (g - 8) % 12
            c_ = (J + 1) if g >= 8 else J
            p, hf2 = divmod(gg, 2)
            dog = 0 <= c_ <= 23
            ops = gelu_half(c_, p, hf2) if dog else []
            if f16 and ops: segs = [ops[0:2], ops[2:3], ops[3:]] if hf2 == 1 else [ops[0:2], ops[2:4], ops[4:]]
            else: segs = [ops[0:2], ops[2:4], ops[4:]]
            ar = AR + 4*(((J+1)*12 + g) & 3)
            domf = g1 if g < 6 else g2
            if psched and g in psched and g != 9 and not last: E.e(f"s_setprio {psched[g]}")
            if J == -1 and g == 8: E.e("s_nop 7")
            if domf:
                need = rd[(J, g)]
                if wait2 and g % 2 == 0 and (J, g+1) in rd and needs_frag(J, g+1): need = max(need, rd[(J, g+1)])
                if g == 6: need = max(need, gi[2])
                if J == -1 and g < 6: need = max(need, xrd[3*g+2])
                E.wait(l=need)
            for nt in range(3):
                if domf:
                    if g < 6:
                        dd = S + 12*((J+1) & 1) + 4*nt
                        E.e(mfma(dd, ar, X + (g*3+nt)*4, None if g == 0 else dd))
                    else:
                        nn = (2 - nt) if (snake and g % 2 == 1) else nt
                        o = Oreg(g-6, nn)
                        E.e(mfma(o, ar, GI + 4*nn, None if J == 1 else o))
                elif f16 and ops and nt > 0: E.e("s_nop 0")
                if nt == 0:
                    if g == 9 and not final:
                        if not last and (J + 1) <= 24 and (J+1) in dma: E.wait(v=dma[J+1])
                        E.wait_all_lds(force=True)
                        E.e("s_barrier")
                        if psched and 9 in psched and not last: E.e(f"s_setprio {psched[9]}")
                        if last:
                            if tdma: prep_next_c(1)
                            if not xbearly: x_base(1)
                    if g + D < 12:
                        if needs_frag(J, g + D) and (J, g + D) not in rd: a_read(J, g + D)
                    elif not last:
                        f2 = g + D - 12
                        if needs_frag(J+1, f2): a_read(J+1, f2)
                    if g < 3 and g2:
                        gi[g] = E.ds(f"ds_read_b128 v[{GI+4*g}:{GI+4*g+3}], v{vGr} offset:{((J-1) & 1)*12288 + g*1024}")
                for o_ in segs[nt]: E.e(o_)
            if dog and hf2 == 1 and (p & 1) == 1:
                nt = p >> 1; gd = GT + 2*(nt & 1)
                E.ds(f"ds_write_b64 v{vGw}, v[{gd}:{gd+1}] offset:{(c_ & 1)*12288 + nt*1024}")
            if final:
                if g in (9, 11):
                    u = (g - 9)//2
                    for nt in range(3):
                        o = Oreg(2*u, nt)
                        for dd in range(4): E.e(f"v_cvt_pk_bf16_f32 v{o+dd}, v{o+2*dd}, v{o+2*dd+1}")
                        E.vm(f"buffer_store_dwordx4 v[{o}:{o+3}], v{vPx+nt}, s[20:23], s{sRowC} offen offset:{u*64}{stflag}")
                continue
            if last:
                if g >= 9 and not xbearly:
                    for q in {9: (0, 1, 2), 10: (3, 4), 11: (5, 6)}[g]: x_dma(1, q, XB)
                if g == 9 and xbearly:
                    if not tdma: prep_next_c(1)
                    lbl = f"{name}_xblate"
                    E.e(f"s_cmp_lt_u32 s{sW}, 6")
                    E.e(f"s_cbranch_scc1 {lbl}")
                    for q in range(7): x_dma_guard(q, False)
                    E.label(lbl)
                if g == 11 and not tdma and not xbearly: prep_next_c(1)
                continue
            if wfill and J == -1 and g in (0, 2, 4): issue_w(1, g // 2)
            for i, gq in enumerate(wsite):
                if g == gq:
                    JJ = J + NS if gq >= 9 else J + NS - 1
                    if 2 <= JJ <= 24: issue_w(JJ, i)
            if g == xsite and 3 <= J < 10:
                if J == 3: x_base(0)
                x_dma(0, J - 3, XA)
            if g == rsite and 2 <= J < 11:
                q = J - 2; u, nt = divmod(q, 3); r = RS + 4*(q % RN)
                resid[q] = E.vm(f"buffer_load_dwordx4 v[{r}:{r+3}], v{vPx+nt}, s[16:19], s{sRowC} offen offset:{u*64}{rflag}")
            if g == rsite - 1 and 2 + RL <= J < 11 + RL:
                q = J - 2 - RL; u, nt = divmod(q, 3)
                E.wait(v=resid[q])
                for p2 in range(2):
                    o = Oreg(2*u + p2, nt)
                    E.e(mfma(o, ID + (2 if p2 == 0 else 0), RS + 4*(q % RN), o))
            if xbearly and J == 23 and g <= 6:
                if g == 0: x_base(1)
                x_dma_guard(g, True)
            if pf and g == xsite and J in pf:
                sp = 1 + pf.index(J)
                x_base(sp)
                E.e(f"v_add_u32 v{t0}, s{sBase}, v0")
                E.vm(f"buffer_load_dword v{RAW2}, v{t0}, s[4:7], 0 offen")
            if not tdma and J == 19 and 1 <= g <= 7: dw_load1(2, g - 1, first=(g == 1))
            if not tdma and J == 22 and g >= 6: dw_load1(0, g - 6, first=(g == 6))
            if not tdma and J == 23 and g <= 7:
                if g == 0: dw_load1(0, 6)
                else: dw_load1(1, g - 1)
            if J == 0 and g == 6:
                E.e(f"s_add_u32 s{sTileRow}, s{sTileRow}, {RSTEP}")
                E.e(f"s_cmp_eq_u32 s{sRound}, {NROUND-1}")
                E.e(f"s_cselect_b32 s6, 0, s6")
                E.e(f"s_mov_b32 s22, {XBYTES}")

    def t_dma(cb, loc, i, skippable=False):
        if i == 0:
            E.e(f"s_lshl_b32 s{sTmp}, s{sW}, 11")
            E.e(f"s_add_u32 m0, s{sTmp}, {loc}")
            E.e(f"s_add_u32 s99, s{sTmp}, {cb*16384}")
        return E.vm(f"buffer_load_dwordx4 v{vL16}, s[64:67], s99 offen offset:{i*1024} lds", skippable=skippable)

    def prep_next_c(part):
        if part == 0:
            x_base(1)
            for q in range(7): x_dma(1, q, XB)
        elif tdma:
            for i in range(2): tdm["t0"] = t_dma(0, T0LOC, i)
            for i in range(2): tdm["t0"] = t_dma(1, T1LOC, i)
        else:
            E.wait(v=dwl[1])
            t_write(RAW0, T0LOC, (S, S+4))
            t_write(RAW1, T1LOC, (S+8, S+12))

    xrd = {}; tdm = {}
    def round_body():
        conv_step(0, [lambda q=q: out_store(q) for q in range(3) if q >= stearly])
        if fine: st("c0 compute")
        E.wait(v=xd[1]); E.wait_all_lds(force=True); E.e("s_barrier")
        if fine: st("B0")
        DT = CT[4]
        def signal():
            lbl = f"{name}_nosig"
            E.e(f"s_cmp_lg_u32 s{sRound}, 0")
            E.e(f"s_cbranch_scc1 {lbl}")
            E.e(f"s_cmp_eq_u32 s{sW}, 0")
            E.e(f"s_cselect_b32 s86, s86, 0")
            E.e(f"v_mov_b32 v{DT+2}, 0")
            E.e(f"v_mov_b32 v{DT+3}, 1")
            E.e("s_mov_b64 s[62:63], exec")
            E.e("s_mov_b64 exec, 1")
            E.vm(f"buffer_atomic_add v{DT+3}, v{DT+2}, s[84:87], 0 offen sc1", skippable=True)
            E.e("s_mov_b64 exec, s[62:63]")
            E.label(lbl)
        side = []
        if inprep: side.append(signal)
        x_base(2)
        side += [lambda q=q: x_dma(2, q, XA, tmp=DT) for q in range(7)]
        if tdma:
            lbl = f"{name}_t2l"
            E.e(f"s_cmp_lg_u32 s{sRound}, 0")
            E.e(f"s_cbranch_scc1 {lbl}")
            nl, dl = E.nl, E.dl
            t_write(RAW2, T0LOC, (CT[0], CT[1]), DT+2, DT+3)
            E.e("s_waitcnt lgkmcnt(0)")
            E.nl, E.dl = nl, dl
            E.label(lbl)
            def t2dma():
                l2 = f"{name}_t2d"
                E.e(f"s_cmp_eq_u32 s{sRound}, 0")
                E.e(f"s_cbranch_scc1 {l2}")
                for i in range(2): tdm["t2"] = t_dma(2, T0LOC, i, skippable=True)
                E.label(l2)
            side.insert(1 if inprep else 0, t2dma)
        else:
            side += [lambda: t_write(RAW2, T0LOC, (CT[0], CT[1]), DT+2, DT+3)]
        side += [lambda q=q: out_store(q) for q in range(3, 6) if q >= stearly]
        if not mst: st("conv0", dyn=True)
        conv_step(1, side, sp1)
        if fine: st("c1 compute")
        E.wait(v=max(xd[2], tdm.get("t2", 0))); E.wait_all_lds(force=True); E.e("s_barrier")
        if fine: st("B1")
        side = []
        if not wlate:
            poll()
            side = [lambda J=J, i=i: issue_w(J, i) for J in (-1, 0, 1) for i in range(3)]
        side += [lambda q=q: out_store(q) for q in range(6, 9) if q >= stearly]
        if not mst: st("conv1", dyn=True)
        conv_step(2, side)
        if not mst: st("conv2", dyn=True)
        layernorm()
        if fine: st("ln hwrite")
        E.wait(v=dma[0 if wfill else 1]); E.wait_all_lds(force=True); E.e("s_barrier")
        if fine: st("BD")
        E.e(f"s_mul_i32 s{sTmp}, s{sPair}, 18432")
        E.e(f"s_add_u32 s{sTmp}, s{sTmp}, {HLOC}")
        E.e(f"v_add_u32 v{t0}, s{sTmp}, v{vL16}")
        for f in range(D): a_read(-1, f)
        for fi in range(18):
            xrd[fi] = E.ds(f"ds_read_b128 v[{X+4*fi}:{X+4*fi+3}], v{t0} offset:{fi*1024}")
        st("ln", dyn=True)
        for J in range(-1, 25):
            if J == 24 and fintail:
                E.e(f"s_cmp_eq_u32 s{sRound}, {NROUND-1}")
                E.e(f"s_cbranch_scc1 {name}_final")
                snap = (E.nl, E.dl, E.nv, E.dv, dict(rd), dict(gi), set(E.skip))
                main = E.L; E.L = []
                stage(24, final=True)
                E.e("s_nop 7")
                for nt in range(3):
                    o = Oreg(4, nt)
                    for dd in range(4): E.e(f"v_cvt_pk_bf16_f32 v{o+dd}, v{o+2*dd}, v{o+2*dd+1}")
                    E.vm(f"buffer_store_dwordx4 v[{o}:{o+3}], v{vPx+nt}, s[20:23], s{sRowC} offen offset:128{stflag}")
                state["final"] = E.L; E.L = main
                E.nl, E.dl, E.nv, E.dv = snap[:4]
                rd.clear(); rd.update(snap[4]); gi.clear(); gi.update(snap[5]); E.skip = snap[6]
            stage(J)
            if fine and J in (-1, 0, 1, 2, 12, 22, 23): st(f"stage {J}")
            if mst and J in (1, 5, 10, 15, 20): st(f"S{J}", dyn=True)
        if fine: st("stage 24")
        E.e("s_setprio 0")
        E.e("s_nop 7")
        E.e(f"s_mov_b32 s{sRowP}, s{sRowC}")
        for q in range(9):
            u, nt = divmod(q, 3); o = Oreg(2*u, nt)
            for dd in range(4): E.e(f"v_cvt_pk_bf16_f32 v{o+dd}, v{o+2*dd}, v{o+2*dd+1}")
            if q < stearly: out_store(q)
        E.e(f"s_add_u32 s{sRowC}, s{sRowC}, {RSTEP*147456}")
        if tdma: E.wait(v=tdm["t0"])
        E.wait_all_lds(force=True)
        E.e("s_barrier")
        st("mlp", dyn=True)
        rd.clear(); gi.clear(); dma.clear()
        if stearly:
            for i in range(E.nv - stearly + 1, E.nv + 1): E.skip.add(i)

    nst = len(stamps)
    E.L.append(".p2align 6")
    E.label(f"{name}_L")
    b0 = len(E.L)
    round_body()
    body = list(E.L[b0:])
    E.e(f"s_add_u32 s{sRound}, s{sRound}, 1")
    E.e(f"s_cmp_lt_u32 s{sRound}, {NROUND}")
    E.e(f"s_cbranch_scc1 {name}_L")
    if not stamp:
        save = len(E.L); sv = (E.nl, E.dl, E.nv, E.dv)
        round_body()
        b2 = E.L[save:]
        if b2 != body:
            for x1, x2 in zip(body, b2):
                if x1 != x2: print("DIFF", x1, "|", x2); break
        assert b2 == body, "not steady"
        del E.L[save:]
    if fintail:
        E.label(f"{name}_final")
        E.L += state["final"]
        if stamp:
            i = stamps.index("mlp r2") if "mlp r2" in stamps else None
            if i is not None:
                E.e("s_memtime s[96:97]"); E.e("s_waitcnt lgkmcnt(0)"); E.e(f"v_writelane_b32 v{STAMP}, s96, {i}")
                E.e("s_memrealtime s[96:97]"); E.e("s_waitcnt lgkmcnt(0)"); E.e(f"v_writelane_b32 v{STAMP}, s96, {32+i}")
    else:
        for q in range(stearly, 9): out_store(q)
    if stamp:
        E.e("s_waitcnt vmcnt(0)")
        st("done")
        E.e(f"s_add_u32 s46, s42, {240<<20}")
        E.e(f"s_addc_u32 s47, s43, 0")
        srd(E, 48, 46, 47, 1 << 20)
        E.e(f"s_lshl_b32 s{sTmp}, s2, 3")
        E.e(f"s_add_u32 s{sTmp}, s{sTmp}, s{sW}")
        E.e(f"s_lshl_b32 s{sTmp}, s{sTmp}, 8")
        E.e(f"v_lshrrev_b32 v{t0}, 2, v{vL16}")
        E.e(f"buffer_store_dword v{STAMP}, v{t0}, s[48:51], s{sTmp} offen")
        if dbgout:
            E.e(f"s_cmp_lg_u32 s2, {dbgout}")
            E.e(f"s_cbranch_scc1 {name}_end")
            E.e(f"s_cmp_lg_u32 s{sW}, 0")
            E.e(f"s_cbranch_scc1 {name}_end")
            E.e(f"v_readlane_b32 s{sTmp}, v{STAMP}, 32")
            E.e("s_nop 3")
            E.e(f"v_subrev_u32 v{t1}, s{sTmp}, v{STAMP}")
            E.e(f"v_lshrrev_b32 v{t0}, 2, v{vL16}")
            E.e(f"v_subrev_u32 v{t0}, {(32+dbgshift)*4 - 4}, v{t0}")
            E.e(f"buffer_store_dword v{t1}, v{t0}, s[80:83], 0 offen")
        global STAMPS; STAMPS = stamps
    E.label(f"{name}_end")
    E.e("s_endpgm")
    if strip:
        out = []; inm = False
        for ln in E.L:
            t = ln.strip()
            if t.startswith("; ---- stage"):
                J = int(t.split()[-1]); inm = 1 <= J <= 22
            if t.startswith("; ==== conv step"): inm = False
            if inm:
                if "bar" in strip and t.startswith("s_barrier"): continue
                if "lgkm" in strip and t.startswith("s_waitcnt lgkmcnt"): continue
                if "vmw" in strip and t.startswith("s_waitcnt vmcnt"): continue
                if "vm" in strip and t.startswith("buffer_"): continue
                if "ds" in strip and t.startswith("ds_"): continue
                if "dsw" in strip and t.startswith("ds_write"): continue
                if "prio" in strip and t.startswith("s_setprio"): continue
                if "valu" in strip and t.startswith("v_") and not t.startswith("v_mfma") and not t.startswith("v_writelane"): continue
            out.append(ln)
        E.L = out
    return header(name) + E.text() + descriptor(name, 256)

def gen_k0(name):
    E = Em()
    vL, vN, vG, vL16, t0, t1, t2 = 1, 2, 3, 4, 5, 6, 7
    sW, sTmp, sTmp2, sGw, sJ, sQ, sC2, sPb = 3, 24, 25, 50, 51, 52, 53, 58
    E.e("s_cmp_ge_u32 s2, 72")
    E.e(f"s_cbranch_scc1 {name}_end")
    E.e("s_load_dwordx4 s[40:43], s[0:1], 16")
    E.e("s_load_dwordx2 s[44:45], s[0:1], 48")
    E.e(f"v_lshrrev_b32 v{t0}, 6, v0")
    E.e(f"v_and_b32 v{vL}, 63, v0")
    E.e(f"v_readfirstlane_b32 s{sW}, v{t0}")
    E.e(f"v_and_b32 v{vN}, 15, v{vL}")
    E.e(f"v_lshrrev_b32 v{vG}, 4, v{vL}")
    E.e(f"v_lshlrev_b32 v{vL16}, 4, v{vL}")
    E.e("s_waitcnt lgkmcnt(0)")
    srd(E, 20, 44, 45, 24*24576)
    emit_prep_loads(E, name, sW, vN, vG, t0, t1, t2, sTmp, sTmp2, 8, 40)
    E.e("s_waitcnt vmcnt(0)")
    for d in range(4): E.e(f"v_lshl_or_b32 v{16+d}, v{8+2*d+1}, 16, v{8+2*d}")
    E.e(f"s_mul_i32 s{sTmp}, s51, 24576")
    E.e(f"s_lshl_b32 s{sTmp2}, s52, 10")
    E.e(f"s_add_u32 s{sTmp}, s{sTmp}, s{sTmp2}")
    E.e(f"buffer_store_dwordx4 v[16:19], v{vL16}, s[20:23], s{sTmp} offen")
    E.label(f"{name}_end")
    E.e("s_endpgm")
    return header(name) + E.text() + descriptor(name, 32)

def emit_prep_loads(E, name, sW, vN, vG, t0, t1, t2, sTmp, sTmp2, PW, wptr):
    lw2 = f"{name}_pw2"; lst = f"{name}_pst"
    sGw, sJ, sQ, sC2, sPb = 50, 51, 52, 53, 68
    E.e(f"s_lshl_b32 s{sGw}, s2, 3")
    E.e(f"s_add_u32 s{sGw}, s{sGw}, s{sW}")
    E.e(f"s_mul_i32 s{sJ}, s{sGw}, 2731")
    E.e(f"s_lshr_b32 s{sJ}, s{sJ}, 16")
    E.e(f"s_mul_i32 s{sTmp}, s{sJ}, 24")
    E.e(f"s_sub_u32 s{sQ}, s{sGw}, s{sTmp}")
    E.e(f"s_cmp_ge_u32 s{sQ}, 12")
    E.e(f"s_cbranch_scc1 {lw2}")
    srd(E, 64, wptr, wptr+1, 192*768*2)
    E.e(f"s_add_u32 s{sC2}, s{sJ}, 1")
    E.e(f"s_cmp_eq_u32 s{sC2}, 24")
    E.e(f"s_cselect_b32 s{sC2}, 0, s{sC2}")
    E.e(f"s_cmp_ge_u32 s{sQ}, 6")
    E.e(f"s_cselect_b32 s{sTmp}, 1, 0")
    E.e(f"s_mul_i32 s{sTmp2}, s{sTmp}, 6")
    E.e(f"s_sub_u32 s{sTmp2}, s{sQ}, s{sTmp2}")
    E.e(f"s_mul_i32 s{sTmp2}, s{sTmp2}, 49152")
    E.e(f"s_lshl_b32 s{sTmp}, s{sTmp}, 5")
    E.e(f"s_add_u32 s{sTmp2}, s{sTmp2}, s{sTmp}")
    E.e(f"s_lshl_b32 s{sTmp}, s{sC2}, 6")
    E.e(f"s_add_u32 s{sPb}, s{sTmp2}, s{sTmp}")
    E.e(f"v_mul_u32_u24 v{t0}, 12288, v{vG}")
    E.e(f"v_lshl_add_u32 v{t0}, v{vN}, 1, v{t0}")
    E.e("s_mov_b32 s69, 1536")
    E.e("s_mov_b32 s70, 1536")
    E.e(f"s_branch {lst}")
    E.label(lw2)
    srd(E, 64, wptr+2, wptr+3, 192*768*2)
    E.e(f"s_add_u32 s{sC2}, s{sJ}, 23")
    E.e(f"s_cmp_ge_u32 s{sC2}, 24")
    E.e(f"s_cselect_b32 s{sTmp}, 24, 0")
    E.e(f"s_sub_u32 s{sC2}, s{sC2}, s{sTmp}")
    E.e(f"s_sub_u32 s{sTmp}, s{sQ}, 12")
    E.e(f"s_lshr_b32 s{sTmp2}, s{sTmp}, 1")
    E.e(f"s_lshl_b32 s{sTmp2}, s{sTmp2}, 6")
    E.e(f"s_and_b32 s{sTmp}, s{sTmp}, 1")
    E.e(f"s_lshl_b32 s{sTmp}, s{sTmp}, 3")
    E.e(f"s_add_u32 s{sTmp2}, s{sTmp2}, s{sTmp}")
    E.e(f"s_mul_i32 s{sTmp}, s{sC2}, 12288")
    E.e(f"s_add_u32 s{sPb}, s{sTmp2}, s{sTmp}")
    E.e(f"v_lshrrev_b32 v{t1}, 2, v{vN}")
    E.e(f"v_and_b32 v{t2}, 3, v{vN}")
    E.e(f"v_lshl_add_u32 v{t1}, v{t1}, 3, v{t2}")
    E.e(f"v_mul_u32_u24 v{t0}, 1536, v{vG}")
    E.e(f"v_lshl_add_u32 v{t0}, v{t1}, 1, v{t0}")
    E.e("s_mov_b32 s69, 384")
    E.e(f"s_mov_b32 s70, {6144 - 3*384}")
    E.label(lst)
    E.e(f"s_cmp_lt_u32 s{sGw}, 576")
    E.e("s_cselect_b32 s66, s66, 0")
    last = None
    for e in range(8):
        last = E.vm(f"buffer_load_ushort v{PW+e}, v{t0}, s[64:67], s{sPb} offen")
        if e < 7: E.e(f"s_add_u32 s{sPb}, s{sPb}, s{70 if e == 3 else 69}")
    return last

if __name__ == "__main__":
    print(gen_f1("f1_kernel"))
```

```python
import sys
from k1 import gen_k1, K1_LDS
import k2c as k2
from k2c import gen_k2, K2_LDS
BEST=dict(wsite=((9,11,1),(10,0,2)), xsite=(2,3), rsite=(4,5), psched={9:3,0:2,3:1,6:0}, wait2=True, m0once=True)
MAIN='standalone__convnext_block__vision_kernel'
HDR = """; Kernarg layout for this problem (56 bytes, ptrs only, base s[0:1]):
"""
DESC = """; ConvNeXt block, one fused persistent kernel (generated by my own python scripts: gen/f1.py, gen/em.py).
;            normalised bf16 activations handed to the MLP waves through LDS.
;            through a 3-slot LDS ring; the residual is added with identity MFMAs; bf16 output is stored during the
"""
def make(kernels, plain=False):
    s = HDR + (DESC if plain else "")
    if len(kernels) == 1 and plain:
        name, grid, block, lds, _ = kernels[0]
        s += f"; @launch grid=({grid},1,1) block=({block},1,1) lds={lds}\n"
    else:
        for name, grid, block, lds, _ in kernels:
            s += f"; @launch kernel={name} grid=({grid},1,1) block=({block},1,1) lds={lds}\n"
    s += '.amdgcn_target "amdgcn-amd-amdhsa--gfx950"\n.text\n'
    for k in kernels: s += k[4]
    return s
if __name__ == "__main__":
    if len(sys.argv) > 2 and sys.argv[2] == "var":
        ks = [(n, 256, 512, K1_LDS, gen_k1(n, **kw)) for n, kw in (("k1_base_kernel", {}), ("k1_nostore_kernel", dict(nostore=True)), ("k1_nocompute_kernel", dict(nocompute=True)), ("k1_nodma_kernel", dict(nodma=True)), ("k1_nodmanostore_kernel", dict(nodma=True, nostore=True)), ("k1_nocompnostore_kernel", dict(nocompute=True, nostore=True)))]
    elif len(sys.argv) > 2 and sys.argv[2] == "stamp":
        import k1
        ks = [("k1_stamp_kernel", 256, 512, K1_LDS, gen_k1("k1_stamp_kernel", stamp=True))]
        open("stamps.txt", "w").write("\n".join(k1.STAMPS))
    elif len(sys.argv) > 2 and sys.argv[2] == "var2":
        ks = [("k1_conv_kernel", 256, 512, K1_LDS, gen_k1("k1_conv_kernel"))]
        for n, kw in eval(sys.argv[3]):
            ks.append((f"k2_{n}_kernel", 256, 512, K2_LDS, gen_k2(f"k2_{n}_kernel", **kw)))
    elif len(sys.argv) > 2 and sys.argv[2] == "stampvar":
        ks = [("k1_conv_kernel", 256, 512, K1_LDS, gen_k1("k1_conv_kernel"))]
        for n, kw in eval(sys.argv[3]):
            ks.append((f"k2_{n}_kernel", 256, 512, K2_LDS, gen_k2(f"k2_{n}_kernel", stamp=True, **kw)))
        open("stamps.txt", "w").write("\n".join(k2.STAMPS))
    elif len(sys.argv) > 2 and sys.argv[2] in ("f1", "f1stamp"):
        import f1
        kw = eval(sys.argv[3]) if len(sys.argv) > 3 else {}
        stamp = sys.argv[2] == "f1stamp"
        ks = [(MAIN, 256, 512, f1.F1_LDS, f1.gen_f1(MAIN, stamp=stamp, **kw))]
        if not kw.get("inprep", True): ks = [("k0_prep_kernel", 72, 512, 0, f1.gen_k0("k0_prep_kernel"))] + ks
        if stamp: open("stamps.txt", "w").write("\n".join(f1.STAMPS))
    elif len(sys.argv) > 2 and sys.argv[2] == "full":
        ks = [("k1_conv_kernel", 256, 512, K1_LDS, gen_k1("k1_conv_kernel")), (MAIN, 256, 512, K2_LDS, gen_k2(MAIN, **BEST))]
    elif len(sys.argv) > 2 and sys.argv[2] == "stamp2":
        ks = [("k1_conv_kernel", 256, 512, K1_LDS, gen_k1("k1_conv_kernel")), (MAIN, 256, 512, K2_LDS, gen_k2(MAIN, stamp=True))]
        open("stamps.txt", "w").write("\n".join(k2.STAMPS))
    else:
        ks = [("k1_conv_kernel", 256, 512, K1_LDS, gen_k1("k1_conv_kernel"))]
    open(sys.argv[1], "w").write(make(ks, plain=sys.argv[1].endswith("vision.s")))
```

```python
from em import *
import math
A_ = 2*math.sqrt(2/math.pi)*math.log2(math.e); B_ = A_*0.044715; S_ = B_**(1/3)
XBYTES = 384*384*384
SLOT = 24576; NS = 3
GBUF = NS*SLOT
PBUF = GBUF + 24576
XA, XB = PBUF, 0
T1LOC, T0LOC = 57344, GBUF
HLOC = GBUF
STLOC = 147456
F1_LDS = 163840
NROUND = 3
D = 3
WS_T = 1 << 20

def mfma(d, a, b, c=None):
    src = "0" if c is None else f"v[{c}:{c+3}]"
    return f"v_mfma_f32_16x16x32_bf16 v[{d}:{d+3}], v[{a}:{a+3}], v[{b}:{b+3}], {src}"

def gen_f1(name, stamp=False, f16=True, psched={9: 3, 4: 2, 7: 1, 8: 0}, wsite=(10, 0, 2), rsite=4, xsite=3, wait2=True, strip=(), inprep=True, pkln=True, pf=(14, 17), nprod=72, fine=False, sp=3, cprio=True, dbgout=False, dbgshift=0, stflag=' sc1', xflag='', rflag=' nt', halfw=True, wlate=True, pfstart=False, inv=False, band=True, pf2=False, normil=False, m0once=True, wpf=True, stearly=0, sttest=None, tdma=False, wfill=True, tring=4, fintail=True, xbearly=True, sp1=1, mst=False, snake=False, stsplit=False, drain2=True):
    E = Em()
    sW, sPair, sHb = 3, 33, 35
    sTmp, sTmp2, sTmp3 = 24, 25, 28
    sSelLo, sSelHi = 26, 27
    sNegA, sS, sAh, sSh = 29, 30, 92, 93
    sR0, sC0 = 44, 45
    sBase = 31
    sTileRow = 32
    sRowP, sRowC, sRound = 54, 55, 56
    sDw, sSo, sM0w, sDwo = 57, 34, 58, 59
    vL16 = 1; vDS = 2; vXa, vXa3 = 9, 10; vT = 11; vHw = 15
    vA0, vA2, vGr, vGw, vDo = 16, 17, 18, 19, 20
    vPx = 21; ID = 24; t0, t1 = 30, 31
    TT, GT, RS, AR, GI, S, X, O = 32, 36, 40, 52, 68, 80, 104, 176
    RAW2 = 248
    STAMP = 255
    RAW0, RAW1 = X, X + 8
    def Oreg(i, nt): return O + (((i >> 1)*3 + nt)*2 + (i & 1))*4
    packed = [Oreg(2*u, nt) for u in range(3) for nt in range(3)]
    free = [q for q in range(32, 248, 4) if q not in packed]
    ACC = free[:24]; Bq = free[24:32]; EOq = free[32:36]; Tq = free[36:40]
    CT = free[40:45]
    assert all(EOq[i+1] == EOq[i] + 4 for i in (0, 2)) or True

    stamps = []
    def st(tag, dyn=False):
        if not stamp: return
        if fine and dyn: dyn = False
        if dyn:
            base = len(stamps)
            for r in range(NROUND): stamps.append(f"{tag} r{r}")
            E.e(f"s_add_u32 m0, s{sRound}, {base}")
            E.e("s_memtime s[96:97]"); E.e("s_waitcnt lgkmcnt(0)")
            E.e(f"v_writelane_b32 v{STAMP}, s96, m0")
            E.e("s_add_u32 m0, m0, 32")
            E.e("s_memrealtime s[96:97]"); E.e("s_waitcnt lgkmcnt(0)")
            E.e(f"v_writelane_b32 v{STAMP}, s96, m0")
        else:
            i = len(stamps); stamps.append(tag)
            E.e("s_memtime s[96:97]"); E.e("s_waitcnt lgkmcnt(0)")
            E.e(f"v_writelane_b32 v{STAMP}, s96, {i}")
            E.e("s_memrealtime s[96:97]"); E.e("s_waitcnt lgkmcnt(0)")
            E.e(f"v_writelane_b32 v{STAMP}, s96, {32+i}")
        E.dl = E.nl

    E.e("s_cmp_ge_u32 s2, 256")
    E.e(f"s_cbranch_scc1 {name}_end")
    E.e("s_load_dwordx4 s[36:39], s[0:1], 0")
    E.e("s_load_dwordx2 s[40:41], s[0:1], 32")
    E.e("s_load_dwordx2 s[42:43], s[0:1], 48")
    if inprep:
        E.e("s_load_dwordx4 s[72:75], s[0:1], 16")
        E.e("s_load_dwordx2 s[76:77], s[0:1], 40")
    vL, vN, vG = 32, 33, 34
    a, b, c, d_, e_, f_, g_ = 35, 36, 37, 38, 39, 40, 41
    E.e(f"v_lshrrev_b32 v{a}, 6, v0")
    E.e(f"v_and_b32 v{vL}, 63, v0")
    E.e(f"v_readfirstlane_b32 s{sW}, v{a}")
    E.e(f"v_and_b32 v{vN}, 15, v{vL}")
    E.e(f"v_lshrrev_b32 v{vG}, 4, v{vL}")
    E.e(f"v_lshlrev_b32 v{vL16}, 4, v{vL}")
    E.e(f"s_and_b32 s{sPair}, s{sW}, 3")
    E.e(f"s_lshr_b32 s{sHb}, s{sW}, 2")
    E.e(f"s_mov_b32 s{sSelLo}, 0x05040100")
    E.e(f"s_mov_b32 s{sSelHi}, 0x07060302")
    E.e(f"s_mov_b32 s{sNegA}, {f2u(-A_/S_):#x}")
    E.e(f"s_mov_b32 s{sS}, {f2u(S_):#x}")
    if f16:
        import numpy as np
        h16 = lambda x: int(np.array([x], np.float16).view(np.uint16)[0])
        E.e(f"s_mov_b32 s{sAh}, {h16(A_/S_)*0x10001:#x}")
        E.e(f"s_mov_b32 s{sSh}, {h16(S_)*0x10001:#x}")
    E.e(f"s_and_b32 s{sTmp}, s2, 7")
    E.e(f"s_lshl_b32 s{sTmp}, s{sTmp}, 5")
    E.e(f"s_lshr_b32 s{sTmp2}, s2, 3")
    E.e(f"s_add_u32 s{sTmp}, s{sTmp}, s{sTmp2}")
    if band:
        E.e(f"s_lshr_b32 s{sR0}, s{sTmp}, 5")
        E.e(f"s_mul_i32 s{sR0}, s{sR0}, 48")
        E.e(f"s_bfe_u32 s{sTmp2}, s{sTmp}, 0x10004")
        E.e(f"s_lshl_b32 s{sTmp2}, s{sTmp2}, 3")
        E.e(f"s_add_u32 s{sR0}, s{sR0}, s{sTmp2}")
    else:
        E.e(f"s_lshr_b32 s{sR0}, s{sTmp}, 4")
        E.e(f"s_mul_i32 s{sR0}, s{sR0}, 24")
    RSTEP = 16 if band else 8
    E.e(f"s_and_b32 s{sC0}, s{sTmp}, 15")
    E.e(f"s_mul_i32 s{sC0}, s{sC0}, 24")
    E.e(f"s_mul_i32 s{sM0w}, s{sW}, 7168")
    E.e(f"s_mul_i32 s{sDw}, s{sW}, 3072")
    E.e(f"s_mul_i32 s{sDwo}, s{sW}, 2688")
    E.e(f"s_cmp_eq_u32 s{sW}, 7")
    E.e(f"s_cselect_b32 s{sDwo}, 0x100000, s{sDwo}")
    E.e("s_waitcnt lgkmcnt(0)")
    srd(E, 4, 36, 37, XBYTES)
    srd(E, 16, 36, 37, XBYTES)
    srd(E, 12, 38, 39, 7*7*192*2)
    srd(E, 8, 42, 43, 24*SLOT)
    srd(E, 20, 40, 41, XBYTES)
    E.e("s_mov_b32 s22, 0")
    if stamp: E.e(f"v_mov_b32 v{STAMP}, 0")
    st("start")

    state = {"round0": None}
    dwl = {}
    def dw_load1(cb, j, first=False):
        base = (RAW0, RAW1, RAW2)[cb]
        if first: E.e(f"v_lshrrev_b32 v{t0}, 3, v{vL16}")
        if j == 0 or first: E.e(f"s_add_u32 s71, s{sDwo}, {128*cb}")
        dwl[cb] = E.vm(f"buffer_load_ushort v{base+j}, v{t0}, s[12:15], s71 offen offset:{384*j}")
    def dw_loads():
        for cb in range(3):
            for j in range(7): dw_load1(cb, j, first=(cb == 0 and j == 0))
    def t_write(raw, loc, u, t0=t0, t1=t1):
        u0, u1 = u
        E.e(f"v_lshl_or_b32 v{u0+0}, v{raw+1}, 16, v{raw+0}")
        E.e(f"v_lshl_or_b32 v{u0+1}, v{raw+3}, 16, v{raw+2}")
        E.e(f"v_lshl_or_b32 v{u0+2}, v{raw+5}, 16, v{raw+4}")
        E.e(f"v_mov_b32 v{u0+3}, v{raw+6}")
        E.e(f"v_lshlrev_b32 v{u1+0}, 16, v{raw+0}")
        E.e(f"v_lshl_or_b32 v{u1+1}, v{raw+2}, 16, v{raw+1}")
        E.e(f"v_lshl_or_b32 v{u1+2}, v{raw+4}, 16, v{raw+3}")
        E.e(f"v_lshl_or_b32 v{u1+3}, v{raw+6}, 16, v{raw+5}")
        E.e(f"v_mul_u32_u24 v{t0}, 15, v{vL16}")
        E.e(f"s_lshl_b32 s{sTmp}, s{sW}, 5")
        E.e(f"s_add_u32 s{sTmp}, s{sTmp}, {loc}")
        E.e(f"v_add_u32 v{t0}, s{sTmp}, v{t0}")
        E.e(f"s_cmp_eq_u32 s{sW}, 7")
        E.e(f"s_cselect_b32 s{sTmp}, 0, 16")
        E.e(f"v_add_u32 v{t1}, s{sTmp}, v{t0}")
        E.ds(f"ds_write_b128 v{t0}, v[{u0}:{u0+3}]")
        E.ds(f"ds_write_b128 v{t1}, v[{u1}:{u1+3}]")

    PW = 60
    if inprep:
        pld = emit_prep_loads(E, name, sW, vN, vG, a, b, c, sTmp, sTmp2, PW, 72)
        srd(E, 80, 76, 77, 256)
        srd(E, 84, 76, 77, 256)
        E.e(f"s_cmp_lt_u32 s2, {nprod + (1 if tdma else 0)}")
        E.e("s_cselect_b32 s86, s86, 0")
        srd(E, 88, 42, 43, 24*SLOT)
        E.e(f"s_cmp_lt_u32 s2, {nprod}")
        E.e("s_cselect_b32 s90, s90, 0")
    xd = {}
    E.e(f"s_mov_b32 s{sTileRow}, s{sR0}")
    E.e(f"s_sub_u32 s{sBase}, s{sTileRow}, 3")
    E.e(f"s_mul_i32 s{sBase}, s{sBase}, 384")
    E.e(f"s_add_u32 s{sBase}, s{sBase}, s{sC0}")
    E.e(f"s_sub_u32 s{sBase}, s{sBase}, 3")
    E.e(f"s_mul_i32 s{sBase}, s{sBase}, 384")
    E.e(f"s_mul_i32 s{sTmp}, s{sW}, 448")
    E.e(f"s_sub_u32 s{sTmp2}, s{sC0}, 3")
    for q in range(7):
        P, r, rem, sl, n_, dx, tt = a, b, c, d_, e_, f_, g_
        E.e(f"v_add_u32 v{P}, s{sTmp}, v{vL}")
        if q: E.e(f"v_add_u32 v{P}, {64*q}, v{P}")
        E.e(f"v_mul_u32_u24 v{r}, 4370, v{P}")
        E.e(f"v_lshrrev_b32 v{r}, 20, v{r}")
        E.e(f"v_mul_u32_u24 v{rem}, 240, v{r}")
        E.e(f"v_sub_u32 v{rem}, v{P}, v{rem}")
        E.e(f"v_lshrrev_b32 v{sl}, 3, v{rem}")
        E.e(f"v_and_b32 v{rem}, 7, v{rem}")
        E.e(f"v_cmp_le_u32 vcc, 15, v{sl}")
        E.e(f"v_mov_b32 v{dx}, 0")
        E.e("s_nop 0")
        E.e(f"v_addc_co_u32 v{dx}, vcc, 0, v{dx}, vcc")
        E.e(f"v_mul_u32_u24 v{n_}, 15, v{dx}")
        E.e(f"v_sub_u32 v{n_}, v{sl}, v{n_}")
        E.e(f"v_lshrrev_b32 v{sl}, 1, v{n_}")
        E.e(f"v_sub_u32 v{rem}, v{rem}, v{sl}")
        E.e(f"v_and_b32 v{rem}, 7, v{rem}")
        E.e(f"v_lshl_add_u32 v{n_}, v{n_}, 1, v{dx}")
        dd = vDS + q
        E.e(f"s_mov_b32 s{sTmp3}, 147456")
        E.e(f"v_mul_lo_u32 v{dd}, v{r}, s{sTmp3}")
        E.e(f"v_mul_u32_u24 v{tt}, 384, v{n_}")
        E.e(f"v_add_u32 v{dd}, v{dd}, v{tt}")
        E.e(f"v_lshl_add_u32 v{dd}, v{rem}, 4, v{dd}")
        E.e(f"v_add_u32 v{tt}, s{sTmp2}, v{n_}")
        E.e(f"v_cmp_gt_u32 vcc, 384, v{tt}")
        E.e(f"s_movk_i32 s{sTmp3}, 3360")
        E.e(f"v_cmp_gt_u32 s[48:49], s{sTmp3}, v{P}")
        E.e("s_nop 1")
        E.e("s_and_b64 vcc, vcc, s[48:49]")
        E.e(f"v_mov_b32 v{tt}, 0x40000000")
        E.e("s_nop 0")
        E.e(f"v_cndmask_b32 v{dd}, v{tt}, v{dd}, vcc")
        E.e(f"s_add_u32 m0, s{sM0w}, {XA + 1024*q}")
        E.e(f"v_add_u32 v{t0}, s{sBase}, v{dd}")
        xd[0] = E.vm(f"buffer_load_dwordx4 v{t0}, s[4:7], 0 offen lds")
    def x_base(s):
        E.e(f"s_sub_u32 s{sBase}, s{sTileRow}, 3")
        E.e(f"s_mul_i32 s{sBase}, s{sBase}, 384")
        E.e(f"s_add_u32 s{sBase}, s{sBase}, s{sC0}")
        E.e(f"s_sub_u32 s{sBase}, s{sBase}, 3")
        E.e(f"s_mul_i32 s{sBase}, s{sBase}, 384")
        if s: E.e(f"s_add_u32 s{sBase}, s{sBase}, {128*s}")
    def x_dma_guard(q, early):
        lbl = f"{name}_xb{'e' if early else 'l'}{q}{state.get('tag', '')}"
        E.e(f"s_cmp_gt_i32 s100, {q}")
        E.e(f"s_cbranch_scc{0 if early else 1} {lbl}")
        x_dma(1, q, XB, tmp=(X + 16 if early else None), skippable=True)
        E.label(lbl)
    def x_dma(s, q, loc, tmp=None, skippable=False):
        tv = (t0 if (q & 1) == 0 else t1) if tmp is None else tmp + (q & 1)
        E.e(f"s_add_u32 m0, s{sM0w}, {loc + 1024*q}")
        E.e(f"v_add_u32 v{tv}, s{sBase}, v{vDS+q}")
        xd[s] = E.vm(f"buffer_load_dwordx4 v{tv}, s[4:7], 0 offen{xflag} lds", skippable=skippable)
    dw_loads()
    x_base(1)
    for q in range(7): x_dma(1, q, XB)
    pst = None
    if inprep:
        E.wait(v=pld)
        for d in range(4): E.e(f"v_lshl_or_b32 v{68+d}, v{PW+2*d+1}, 16, v{PW+2*d}")
        E.e(f"s_mul_i32 s{sTmp}, s51, 24576")
        E.e(f"s_lshl_b32 s{sTmp2}, s52, 10")
        E.e(f"s_add_u32 s{sTmp}, s{sTmp}, s{sTmp2}")
        pst = E.vm(f"buffer_store_dwordx4 v[68:71], v{vL16}, s[88:91], s{sTmp} offen sc1")
    E.e(f"s_mul_i32 s{sTmp}, s{sW}, 53")
    E.e(f"v_add_u32 v{a}, s{sTmp}, v{vL}")
    E.e(f"v_mul_u32_u24 v{b}, 2185, v{a}")
    E.e(f"v_lshrrev_b32 v{b}, 16, v{b}")
    E.e(f"v_mul_u32_u24 v{c}, 30, v{b}")
    E.e(f"v_sub_u32 v{c}, v{a}, v{c}")
    E.e(f"s_mov_b32 s{sTmp3}, 147456")
    E.e(f"v_mul_lo_u32 v{d_}, v{b}, s{sTmp3}")
    E.e(f"v_mul_u32_u24 v{e_}, 384, v{c}")
    E.e(f"v_add_u32 v{d_}, v{d_}, v{e_}")
    E.e(f"s_sub_u32 s{sTmp2}, s{sC0}, 3")
    E.e(f"v_add_u32 v{e_}, s{sTmp2}, v{c}")
    E.e(f"v_cmp_gt_u32 vcc, 384, v{e_}")
    E.e(f"s_movk_i32 s{sTmp3}, 420")
    E.e(f"v_cmp_gt_u32 s[48:49], s{sTmp3}, v{a}")
    E.e("s_nop 1")
    E.e("s_and_b64 vcc, vcc, s[48:49]")
    E.e(f"v_cmp_gt_u32 s[48:49], 53, v{vL}")
    E.e("s_nop 1")
    E.e("s_and_b64 vcc, vcc, s[48:49]")
    E.e(f"v_mov_b32 v{e_}, 0x40000000")
    E.e("s_nop 0")
    E.e(f"v_cndmask_b32 v0, v{e_}, v{d_}, vcc")
    pf0 = None
    if pf and pfstart:
        x_base(2)
        E.e(f"v_add_u32 v{t0}, s{sBase}, v0")
        pf0 = E.vm(f"buffer_load_dword v{RAW2+7 if not stamp else 72}, v{t0}, s[4:7], 0 offen")
    E.e(f"v_lshrrev_b32 v{a}, 1, v{vN}")
    E.e(f"v_add_u32 v{a}, s{sW}, v{a}")
    E.e(f"v_and_b32 v{a}, 7, v{a}")
    E.e(f"v_lshlrev_b32 v{a}, 4, v{a}")
    E.e(f"v_lshl_add_u32 v{a}, v{vN}, 7, v{a}")
    E.e(f"v_mul_u32_u24 v{b}, 3840, v{vG}")
    E.e(f"v_add_u32 v{vXa}, v{a}, v{b}")
    E.e(f"v_add_u32 v{b}, 12, v{vG}")
    E.e(f"v_min_u32 v{b}, 13, v{b}")
    E.e(f"v_mul_u32_u24 v{b}, 3840, v{b}")
    E.e(f"v_add_u32 v{vXa3}, v{a}, v{b}")
    E.e(f"v_lshrrev_b32 v{a}, 1, v{vN}")
    E.e(f"v_and_b32 v{b}, 1, v{vN}")
    E.e(f"v_sub_u32 v{a}, v{vG}, v{a}")
    E.e(f"s_mul_i32 s{sTmp}, s{sW}, 1920")
    E.e(f"s_add_u32 s{sTmp}, s{sTmp}, {T1LOC}")
    for f in range(4):
        E.e(f"v_add_u32 v{c}, {4*f}, v{a}")
        E.e(f"v_lshl_add_u32 v{d_}, v{c}, 1, v{b}")
        E.e(f"v_cmp_gt_u32 vcc, 7, v{c}")
        E.e(f"v_mov_b32 v{e_}, 14")
        E.e("s_nop 0")
        E.e(f"v_cndmask_b32 v{d_}, v{e_}, v{d_}, vcc")
        E.e(f"v_lshlrev_b32 v{d_}, 4, v{d_}")
        E.e(f"v_add_u32 v{vT+f}, s{sTmp}, v{d_}")
    E.e(f"v_mul_u32_u24 v{a}, 12, v{vG}")
    E.e(f"v_add_u32 v{a}, v{a}, v{vN}")
    E.e(f"v_lshrrev_b32 v{b}, 4, v{a}")
    E.e(f"v_and_b32 v{a}, 15, v{a}")
    E.e(f"v_lshlrev_b32 v{a}, 4, v{a}")
    E.e(f"v_lshl_add_u32 v{a}, v{b}, 10, v{a}")
    E.e(f"s_mul_i32 s{sTmp}, s{sHb}, 3072")
    E.e(f"s_lshl_b32 s{sTmp2}, s{sPair}, 8")
    E.e(f"s_add_u32 s{sTmp}, s{sTmp}, s{sTmp2}")
    E.e(f"s_add_u32 s{sTmp}, s{sTmp}, {HLOC}")
    E.e(f"v_add_u32 v{vHw}, s{sTmp}, v{a}")
    E.e(f"v_cmp_gt_u32 s[60:61], 12, v{vN}")
    E.e(f"s_mul_i32 s{sTmp}, s{sHb}, 6144")
    E.e(f"v_add_u32 v{vA0}, s{sTmp}, v{vL16}")
    E.e(f"v_add_u32 v{vA2}, {2*SLOT}, v{vA0}")
    E.e(f"s_mul_i32 s{sTmp}, s{sPair}, 3072")
    E.e(f"s_add_u32 s{sTmp}, s{sTmp}, {GBUF}")
    E.e(f"v_add_u32 v{vGr}, s{sTmp}, v{vL16}")
    E.e(f"s_lshl_b32 s{sTmp2}, s{sHb}, 3")
    E.e(f"v_add_u32 v{vGw}, s{sTmp2}, v{vGr}")
    E.e(f"v_add_u32 v{vDo}, s{sDw}, v{vL16}")
    E.e(f"s_lshr_b32 s{sTmp}, s{sPair}, 1")
    E.e(f"s_add_u32 s46, s{sR0}, s{sTmp}")
    E.e(f"s_and_b32 s{sTmp}, s{sPair}, 1")
    E.e(f"s_add_u32 s47, s{sC0}, s{sTmp}")
    E.e(f"s_mul_i32 s{sTmp3}, s{sHb}, 192")
    for nt in range(3):
        E.e(f"v_add_u32 v{a}, {16*nt}, v{vN}")
        E.e(f"v_mul_u32_u24 v{b}, 43, v{a}")
        E.e(f"v_lshrrev_b32 v{b}, 9, v{b}")
        E.e(f"v_mul_u32_u24 v{c}, 12, v{b}")
        E.e(f"v_sub_u32 v{c}, v{a}, v{c}")
        E.e(f"v_lshl_add_u32 v{b}, v{b}, 1, s46")
        E.e(f"v_lshl_add_u32 v{c}, v{c}, 1, s47")
        E.e(f"v_mul_u32_u24 v{b}, 384, v{b}")
        E.e(f"v_add_u32 v{b}, v{b}, v{c}")
        E.e(f"v_mul_u32_u24 v{b}, 384, v{b}")
        E.e(f"v_lshl_add_u32 v{b}, v{vG}, 4, v{b}")
        E.e(f"v_add_u32 v{vPx+nt}, s{sTmp3}, v{b}")
    E.e(f"v_lshrrev_b32 v{a}, 2, v{vN}")
    E.e(f"v_and_b32 v{b}, 3, v{vN}")
    E.e(f"v_and_b32 v{c}, 1, v{b}")
    E.e(f"v_lshlrev_b32 v{c}, 4, v{c}")
    E.e(f"v_mov_b32 v{d_}, 0x3f80")
    E.e(f"v_lshlrev_b32 v{d_}, v{c}, v{d_}")
    E.e(f"v_cmp_eq_u32 vcc, v{a}, v{vG}")
    E.e(f"v_mov_b32 v{c}, 0")
    E.e("s_nop 0")
    E.e(f"v_cndmask_b32 v{d_}, v{c}, v{d_}, vcc")
    E.e(f"v_cmp_gt_u32 vcc, 2, v{b}")
    E.e("s_nop 1")
    E.e(f"v_cndmask_b32 v{ID+2}, v{c}, v{d_}, vcc")
    E.e(f"v_cndmask_b32 v{ID+3}, v{d_}, v{c}, vcc")
    for i in (0, 1, 4, 5): E.e(f"v_mov_b32 v{ID+i}, 0")
    E.wait(v=dwl[2])
    t_write(RAW0, T0LOC, (44, 48))
    t_write(RAW1, T1LOC, (52, 56))
    if tdma:
        E.e(f"s_add_u32 s64, s42, {WS_T}")
        E.e("s_addc_u32 s65, s43, 0")
        E.e("s_and_b32 s65, s65, 0xffff")
        E.e(f"s_mov_b32 s66, {3*16384}")
        E.e("s_mov_b32 s67, 0x00020000")
        lbl = f"{name}_notp"
        E.e("s_cmp_lg_u32 s2, 72")
        E.e(f"s_cbranch_scc1 {lbl}")
        u0, u1 = 76, 80
        raw = RAW2
        E.e(f"v_lshl_or_b32 v{u0+0}, v{raw+1}, 16, v{raw+0}")
        E.e(f"v_lshl_or_b32 v{u0+1}, v{raw+3}, 16, v{raw+2}")
        E.e(f"v_lshl_or_b32 v{u0+2}, v{raw+5}, 16, v{raw+4}")
        E.e(f"v_mov_b32 v{u0+3}, v{raw+6}")
        E.e(f"v_lshlrev_b32 v{u1+0}, 16, v{raw+0}")
        E.e(f"v_lshl_or_b32 v{u1+1}, v{raw+2}, 16, v{raw+1}")
        E.e(f"v_lshl_or_b32 v{u1+2}, v{raw+4}, 16, v{raw+3}")
        E.e(f"v_lshl_or_b32 v{u1+3}, v{raw+6}, 16, v{raw+5}")
        E.e(f"v_mul_u32_u24 v{t0}, 15, v{vL16}")
        E.e(f"s_lshl_b32 s{sTmp}, s{sW}, 5")
        E.e(f"v_add_u32 v{t0}, s{sTmp}, v{t0}")
        E.e(f"s_cmp_eq_u32 s{sW}, 7")
        E.e(f"s_cselect_b32 s{sTmp}, 0, 16")
        E.e(f"v_add_u32 v{t1}, s{sTmp}, v{t0}")
        for cb, (q0, q1) in enumerate(((44, 48), (52, 56), (u0, u1))):
            E.e(f"s_mov_b32 s{sTmp}, {cb*16384}")
            E.vm(f"buffer_store_dwordx4 v[{q0}:{q0+3}], v{t0}, s[64:67], s{sTmp} offen sc1", skippable=True)
            E.vm(f"buffer_store_dwordx4 v[{q1}:{q1+3}], v{t1}, s[64:67], s{sTmp} offen sc1", skippable=True)
        E.label(lbl)
    if wfill:
        E.e(f"s_mul_i32 s{sTmp}, s{sPair}, 3072")
        E.e(f"s_cmp_eq_u32 s{sHb}, 0")
        E.e(f"s_cselect_b32 s78, {2*SLOT}, 0")
        E.e(f"s_cselect_b32 s79, {23*SLOT}, 0")
        E.e(f"s_add_u32 s78, s78, s{sTmp}")
        E.e(f"s_add_u32 s79, s79, s{sTmp}")
    E.e(f"s_mul_i32 s100, s{sW}, 7")
    E.e("s_sub_u32 s100, 48, s100")
    E.e("s_mov_b32 s95, 12288")
    E.e(f"s_mov_b32 s{sRound}, 0")
    E.e(f"s_mov_b32 s{sRowP}, 0")
    E.e(f"s_mov_b32 s{sRowC}, 0")
    E.wait(v=xd[0] if not (stamp and pf0) else max(xd[0], pf0))
    E.wait_all_lds(force=True)
    E.e("s_barrier")
    if pf2:
        x_base(2)
        E.e(f"v_add_u32 v{t0}, s{sBase}, v0")
        E.vm(f"buffer_load_dword v{CT[3]}, v{t0}, s[4:7], 0 offen")
    extra = E.nv - xd[1]
    E.nv -= extra; E.dv = min(E.dv, E.nv)
    st("prologue")

    dma = {}; rd = {}; gi = {}; resid = {}
    RL, RN = 3, 3
    def out_store(q):
        u, nt = divmod(q, 3); o = Oreg(2*u, nt)
        if sttest == "lin":
            E.e(f"s_mul_i32 s97, s2, 221184")
            E.e(f"s_mul_i32 s98, s{sRound}, 73728")
            E.e(f"s_add_u32 s97, s97, s98")
            E.e(f"s_mul_i32 s98, s{sW}, 9216")
            E.e(f"s_add_u32 s97, s97, s98")
            E.e(f"s_add_u32 s97, s97, {q*1024}")
            E.vm(f"buffer_store_dwordx4 v[{o}:{o+3}], v{vL16}, s[20:23], s97 offen{stflag}")
            return
        if sttest == "none":
            E.vm(f"buffer_store_dwordx4 v[{o}:{o+3}], v{vPx+nt}, s[84:87], s{sRowP} offen offset:{u*64}{stflag}")
            return
        E.vm(f"buffer_store_dwordx4 v[{o}:{o+3}], v{vPx+nt}, s[20:23], s{sRowP} offen offset:{u*64}{stflag}")

    def conv_step(s, side=(), spc=None):
        side = list(side)
        spc = spc or sp
        loc = XB if s == 1 else XA
        toff = 0 if s == 1 else T0LOC - T1LOC
        E.c(f"==== conv step {s}")
        E.e(f"v_add_u32 v{t0}, {loc}, v{vXa}")
        E.e(f"v_add_u32 v{t1}, {loc}, v{vXa3}")
        def rd_eo(f):
            e4, o4 = EOq[2*(f & 1)], EOq[2*(f & 1)+1]
            adr = t1 if f == 3 else t0
            off = 0 if f == 3 else f*15360
            E.ds(f"ds_read_b128 v[{e4}:{e4+3}], v{adr} offset:{off}")
            return E.ds(f"ds_read_b128 v[{o4}:{o4+3}], v{adr} offset:{off+1920}")
        TR = (Tq + [CT[2], CT[3]])[:tring]
        def rd_t(idx):
            f, c_ = divmod(idx, 8); r = TR[idx % tring]
            return E.ds(f"ds_read_b128 v[{r}:{r+3}], v{vT+f} offset:{toff + c_*240}")
        eo = {0: rd_eo(0)}; tt = {}
        for i in range(tring - 1): tt[i] = rd_t(i)
        eo[1] = rd_eo(1)
        def mf(f, c_):
            idx = f*8 + c_
            E.wait(l=tt[idx])
            acc = ACC[8*s + c_]
            E.e(mfma(acc, TR[idx % tring], Bq[c_], None if f == 0 else acc))
            if idx + tring - 1 < 32: tt[idx + tring - 1] = rd_t(idx + tring - 1)
            if side and c_ != 6 and idx % spc == 0: side.pop(0)()
        for f in range(4):
            e4, o4 = EOq[2*(f & 1)], EOq[2*(f & 1)+1]
            if cprio: E.e(f"s_setprio {3-f}")
            E.wait(l=eo[f])
            for cp in range(4):
                E.e(f"v_perm_b32 v{Bq[2*cp]}, v{o4+cp}, v{e4+cp}, s{sSelLo}")
                E.e(f"v_perm_b32 v{Bq[2*cp+1]}, v{o4+cp}, v{e4+cp}, s{sSelHi}")
            if f + 2 < 4: eo[f+2] = rd_eo(f+2)
            for c_ in range(8):
                bb = Bq[c_]
                for dd in (1, 2, 3):
                    E.e(f"v_mov_b32_dpp v{bb+dd}, v{bb} row_shl:{dd} row_mask:0xf bank_mask:0xf bound_ctrl:1")
                if c_ > 0: mf(f, c_-1)
            E.e("s_nop 1")
            mf(f, 7)
        while side: side.pop(0)()

    def poll():
        if not inprep: return
        lp = f"{name}_poll"
        E.e(f"s_cmp_lg_u32 s{sRound}, 0")
        E.e(f"s_cbranch_scc1 {lp}_done")
        E.e(f"s_cmp_lg_u32 s{sW}, 0")
        E.e(f"s_cbranch_scc1 {lp}_bar")
        E.e(f"s_mov_b32 s{sTmp2}, 0")
        E.e(f"v_mov_b32 v{t0}, 0")
        E.label(f"{lp}")
        E.e(f"buffer_load_dword v{t1}, v{t0}, s[80:83], 0 offen sc1")
        E.e("s_waitcnt vmcnt(0)")
        E.e(f"v_readfirstlane_b32 s{sTmp}, v{t1}")
        E.e(f"s_add_u32 s{sTmp2}, s{sTmp2}, 1")
        E.e(f"s_cmp_ge_u32 s{sTmp2}, 0x40000")
        E.e(f"s_cbranch_scc1 {lp}_acq")
        E.e(f"s_cmp_lt_u32 s{sTmp}, {nprod + (1 if tdma else 0)}")
        E.e(f"s_cbranch_scc1 {lp}")
        E.label(f"{lp}_acq")
        if inv:
            E.e("buffer_inv sc1")
            E.e("s_waitcnt vmcnt(0)")
        E.label(f"{lp}_bar")
        E.e("s_barrier")
        if wpf:
            E.e(f"s_lshr_b32 s{sTmp}, s2, 3")
            E.e(f"s_and_b32 s{sTmp}, s{sTmp}, 31")
            E.e(f"s_lshl_b32 s{sTmp}, s{sTmp}, 3")
            E.e(f"s_add_u32 s{sTmp}, s{sTmp}, s{sW}")
            E.e(f"s_mul_i32 s{sTmp}, s{sTmp}, {18*128}")
            E.e(f"v_lshlrev_b32 v{t0}, 3, v{vL16}")
            E.e(f"v_cmp_gt_u32 vcc, {18*128}, v{t0}")
            E.e(f"v_mov_b32 v{t1}, 0x40000000")
            E.e("s_nop 0")
            E.e(f"v_cndmask_b32 v{t0}, v{t1}, v{t0}, vcc")
            E.e(f"buffer_load_dword v{RAW2}, v{t0}, s[8:11], s{sTmp} offen")
        E.label(f"{lp}_done")

    def stats_part(sp_, wl=None):
        ST = CT[0]; ST2 = CT[1]
        E.e("s_nop 7")
        for ch in range(8*sp_, 8*sp_ + 8):
            for h in (0, 2):
                x_ = f"v[{ACC[ch]+h}:{ACC[ch]+h+1}]"
                if ch == 0:
                    E.e(f"v_pk_mul_f32 v[{ST2+h}:{ST2+h+1}], {x_}, {x_}")
                    continue
                s0 = f"v[{ACC[0]+h}:{ACC[0]+h+1}]" if ch == 1 else f"v[{ST+h}:{ST+h+1}]"
                E.e(f"v_pk_add_f32 v[{ST+h}:{ST+h+1}], {s0}, {x_}")
                E.e(f"v_pk_fma_f32 v[{ST2+h}:{ST2+h+1}], {x_}, {x_}, v[{ST2+h}:{ST2+h+1}]")
            if wl and ch % 2 == 0: issue_w(*wl.pop(0))

    def layernorm():
        E.c("==== layernorm")
        ST = CT[0]; ST2 = CT[1]; RHO = CT[2]; BETA = CT[3]
        wl = []
        if wlate:
            poll()
            wl = [(J, i) for J in (-1, 0, 1) for i in range(3)] if not wfill else [("fill", i) for i in range(3)]
        if pkln and stsplit:
            stats_part(2, wl)
        elif pkln:
            E.e("s_nop 7")
            for h in (0, 2):
                E.e(f"v_pk_add_f32 v[{ST+h}:{ST+h+1}], v[{ACC[0]+h}:{ACC[0]+h+1}], v[{ACC[1]+h}:{ACC[1]+h+1}]")
                E.e(f"v_pk_mul_f32 v[{ST2+h}:{ST2+h+1}], v[{ACC[0]+h}:{ACC[0]+h+1}], v[{ACC[0]+h}:{ACC[0]+h+1}]")
            for ch in range(1, 24):
                for h in (0, 2):
                    x_ = f"v[{ACC[ch]+h}:{ACC[ch]+h+1}]"
                    if ch > 1: E.e(f"v_pk_add_f32 v[{ST+h}:{ST+h+1}], v[{ST+h}:{ST+h+1}], {x_}")
                    E.e(f"v_pk_fma_f32 v[{ST2+h}:{ST2+h+1}], {x_}, {x_}, v[{ST2+h}:{ST2+h+1}]")
                if wl and ch % 2 == 0: issue_w(*wl.pop(0))
        else:
            for r in range(4):
                E.e(f"v_mov_b32 v{ST+r}, v{ACC[0]+r}")
                E.e(f"v_mul_f32 v{ST2+r}, v{ACC[0]+r}, v{ACC[0]+r}")
            for ch in range(1, 24):
                for r in range(4):
                    x_ = ACC[ch] + r
                    E.e(f"v_add_f32 v{ST+r}, v{ST+r}, v{x_}")
                    E.e(f"v_fmac_f32 v{ST2+r}, v{x_}, v{x_}")
        while wl: issue_w(*wl.pop(0))
        if halfw:
            E.e(f"v_add_u32 v{t0}, 12288, v{vL16}")
            E.e(f"s_lshl_b32 s{sTmp}, s{sW}, 10")
            E.e(f"v_add_u32 v{t1}, s{sTmp}, v{t0}")
            E.ds(f"ds_write_b128 v{t1}, v[{ST}:{ST+3}]")
            E.ds(f"ds_write_b128 v{t1}, v[{ST2}:{ST2+3}] offset:49152")
            sstride, soff = 1024, 49152
        else:
            E.e(f"v_add_u32 v{t0}, {STLOC}, v{vL16}")
            E.e(f"s_lshl_b32 s{sTmp}, s{sW}, 11")
            E.e(f"v_add_u32 v{t1}, s{sTmp}, v{t0}")
            E.wait_all_lds(force=True)
            if fine: st("ln stats")
            E.e("s_barrier")
            if fine: st("BA")
            E.ds(f"ds_write_b128 v{t1}, v[{ST}:{ST+3}]")
            E.ds(f"ds_write_b128 v{t1}, v[{ST2}:{ST2+3}] offset:1024")
            sstride, soff = 2048, 1024
        E.wait_all_lds(force=True)
        E.e("s_barrier")
        if fine: st("BB")
        RB = Bq + EOq + Tq
        for w in range(8):
            E.ds(f"ds_read_b128 v[{RB[2*w]}:{RB[2*w]+3}], v{t0} offset:{sstride*w}")
            E.ds(f"ds_read_b128 v[{RB[2*w+1]}:{RB[2*w+1]+3}], v{t0} offset:{sstride*w+soff}")
        base_id = E.nl - 16
        for w in range(1, 8):
            E.wait(l=base_id + 2*w + 2)
            for h in (0, 2):
                for k, dst in enumerate((ST, ST2)):
                    src = RB[2*w + k]
                    s0 = RB[k] if w == 1 else dst
                    E.e(f"v_pk_add_f32 v[{dst+h}:{dst+h+1}], v[{s0+h}:{s0+h+1}], v[{src+h}:{src+h+1}]")
        E.e(f"v_mov_b32 v{RHO}, {f2u(1.0/192):#x}")
        E.e(f"v_mov_b32 v{RHO+1}, {f2u(1.0/192):#x}")
        E.e(f"v_mov_b32 v{RHO+2}, {f2u(1e-5):#x}")
        for h in (0, 2):
            E.e(f"v_pk_mul_f32 v[{ST+h}:{ST+h+1}], v[{ST+h}:{ST+h+1}], v[{RHO}:{RHO+1}]")
            E.e(f"v_pk_mul_f32 v[{ST2+h}:{ST2+h+1}], v[{ST2+h}:{ST2+h+1}], v[{RHO}:{RHO+1}]")
        for h in (0, 2):
            E.e(f"v_pk_fma_f32 v[{ST2+h}:{ST2+h+1}], v[{ST+h}:{ST+h+1}], v[{ST+h}:{ST+h+1}], v[{ST2+h}:{ST2+h+1}] neg_lo:[1,0,0] neg_hi:[1,0,0]")
        for r in range(4): E.e(f"v_max_f32 v{ST2+r}, 0, v{ST2+r}")
        for r in range(4): E.e(f"v_add_f32 v{ST2+r}, v{RHO+2}, v{ST2+r}")
        for r in range(4): E.e(f"v_rsq_f32 v{RHO+r}, v{ST2+r}")
        E.e("s_nop 0")
        for r in range(4): E.e(f"v_mul_f32 v{RHO+r}, s{sS}, v{RHO+r}")
        for h in (0, 2):
            E.e(f"v_pk_mul_f32 v[{BETA+h}:{BETA+h+1}], v[{ST+h}:{ST+h+1}], v[{RHO+h}:{RHO+h+1}]")
        if fine: st("ln rho")
        E.e(f"v_add_u32 v{t0}, 32768, v{vHw}")
        E.e("s_mov_b64 s[62:63], exec")
        E.e("s_mov_b64 exec, s[60:61]")
        ta, tb = EOq[0], EOq[0] + 1
        for cg in range(3):
            if pkln and (normil or cg == 0):
                for ch in (range(8*cg, 8*cg + 8) if normil else range(24)):
                    for h in (0, 2):
                        x_ = f"v[{ACC[ch]+h}:{ACC[ch]+h+1}]"
                        E.e(f"v_pk_fma_f32 {x_}, {x_}, v[{RHO+h}:{RHO+h+1}], v[{BETA+h}:{BETA+h+1}] neg_lo:[0,0,1] neg_hi:[0,0,1]")
            for r in range(4):
                o = Bq[(cg*4 + r) & 7]
                for cp in range(4):
                    a0 = ACC[8*cg + 2*cp] + r; a1 = ACC[8*cg + 2*cp + 1] + r
                    if pkln:
                        E.e(f"v_cvt_pk_bf16_f32 v{o+cp}, v{a0}, v{a1}")
                    else:
                        E.e(f"v_fma_f32 v{ta}, v{a0}, v{RHO+r}, -v{BETA+r}")
                        E.e(f"v_fma_f32 v{tb}, v{a1}, v{RHO+r}, -v{BETA+r}")
                        E.e(f"v_cvt_pk_bf16_f32 v{o+cp}, v{ta}, v{tb}")
                off = r*18432 + cg*6144
                adr = vHw
                if off >= 32768: adr, off = t0, off - 32768
                E.ds(f"ds_write_b128 v{adr}, v[{o}:{o+3}] offset:{off}")
        E.e("s_mov_b64 exec, s[62:63]")

    wuid = [0]
    def issue_w(J, i):
        if J == "fill":
            if i == 0: E.e("s_mov_b32 m0, s78")
            if i == 0: E.e("s_nop 0")
            dma[-1] = dma[0] = E.vm(f"buffer_load_dwordx4 v{vL16}, s[8:11], s79 offen offset:{i*1024} lds")
            return
        j = J % 24; slot = (J % NS)*SLOT
        if xbearly and J == 24: slot = 2*SLOT - 12288
        skip = None
        if halfw and J in (-1, 0): skip = 1
        if halfw and J in (23, 24): skip = 0
        if skip is not None:
            lbl = f"{name}_ws{J % 100}_{i}".replace("-", "m")
            E.e(f"s_cmp_eq_u32 s{sHb}, {skip}")
            E.e(f"s_cbranch_scc1 {lbl}")
        if m0once and J >= 2:
            if i == 0:
                E.e(f"s_add_u32 m0, s{sDw}, {slot}")
                E.e(f"s_mov_b32 s94, {j*SLOT}")
            dma[J] = E.vm(f"buffer_load_dwordx4 v{vDo}, s[8:11], s94 offen offset:{i*1024} lds", skippable=skip is not None)
        else:
            E.e(f"s_add_u32 m0, s{sDw}, {slot + i*1024}")
            E.e(f"s_mov_b32 s{sSo}, {j*SLOT + i*1024}")
            dma[J] = E.vm(f"buffer_load_dwordx4 v{vDo}, s[8:11], s{sSo} offen lds", skippable=skip is not None)
        if skip is not None: E.label(lbl)
    def a_read(J, f):
        slot = J % NS
        base, off = (vA2, (slot-2)*SLOT) if slot >= 2 else (vA0, slot*SLOT)
        o = off + (f*1024 if f < 6 else 12288 + (f-6)*1024)
        if xbearly and J == 24: base, o = vA2, (f-6)*1024
        r = AR + 4*(((J+1)*12 + f) & 3)
        rd[(J, f)] = E.ds(f"ds_read_b128 v[{r}:{r+3}], v{base} offset:{o}")
    def gelu_half(c_, p, hf2):
        nt, hf = divmod(p, 2)
        uA = S + 12*(c_ & 1) + 4*nt + 2*hf; uB = uA + 1
        ta = TT + 2*(p & 1); tb = ta + 1
        gd = GT + 2*(nt & 1) + hf
        if f16:
            if hf2 == 0:
                return [f"v_cvt_pk_f16_f32 v{ta}, v{uA}, v{uB}",
                        f"v_pk_fma_f16 v{tb}, v{ta}, v{ta}, s{sAh}",
                        f"v_pk_mul_f16 v{tb}, v{tb}, v{ta} neg_lo:[1,0] neg_hi:[1,0]",
                        f"v_exp_f16_sdwa v{ta}, v{tb} dst_sel:WORD_0 dst_unused:UNUSED_PAD src0_sel:WORD_0",
                        f"v_exp_f16_sdwa v{ta}, v{tb} dst_sel:WORD_1 dst_unused:UNUSED_PRESERVE src0_sel:WORD_1"]
            return [f"v_pk_fma_f16 v{ta}, v{ta}, s{sSh}, s{sSh}",
                    f"v_rcp_f16_sdwa v{tb}, v{ta} dst_sel:WORD_0 dst_unused:UNUSED_PAD src0_sel:WORD_0",
                    f"v_rcp_f16_sdwa v{tb}, v{ta} dst_sel:WORD_1 dst_unused:UNUSED_PRESERVE src0_sel:WORD_1",
                    f"v_fma_mix_f32 v{ta}, v{uA}, v{tb}, 0 op_sel_hi:[0,1,0]",
                    f"v_fma_mix_f32 v{tb}, v{uB}, v{tb}, 0 op_sel:[0,1,0] op_sel_hi:[0,1,0]",
                    f"v_cvt_pk_bf16_f32 v{gd}, v{ta}, v{tb}"]
        if hf2 == 0:
            return [f"v_fma_f32 v{ta}, -v{uA}, v{uA}, s{sNegA}", f"v_fma_f32 v{tb}, -v{uB}, v{uB}, s{sNegA}",
                    f"v_mul_f32 v{ta}, v{ta}, v{uA}", f"v_mul_f32 v{tb}, v{tb}, v{uB}",
                    f"v_exp_f32 v{ta}, v{ta}", f"v_exp_f32 v{tb}, v{tb}"]
        return [f"v_fma_f32 v{ta}, v{ta}, s{sS}, s{sS}", f"v_fma_f32 v{tb}, v{tb}, s{sS}, s{sS}",
                f"v_rcp_f32 v{ta}, v{ta}", f"v_rcp_f32 v{tb}, v{tb}",
                f"v_mul_f32 v{ta}, v{uA}, v{ta}", f"v_mul_f32 v{tb}, v{uB}, v{tb}",
                f"v_cvt_pk_bf16_f32 v{gd}, v{ta}, v{tb}"]

    def stage(J, final=False):
        g1 = 0 <= J + 1 <= 23; g2 = 0 <= J - 1 <= 23
        last = J == 24
        E.c(f"---- stage {J}")
        def needs_frag(JJ, f): return (0 <= JJ + 1 <= 23) if f < 6 else (0 <= JJ - 1 <= 23)
        for g in range(12):
            gg = (g - 8) % 12
            c_ = (J + 1) if g >= 8 else J
            p, hf2 = divmod(gg, 2)
            dog = 0 <= c_ <= 23
            ops = gelu_half(c_, p, hf2) if dog else []
            if f16 and ops: segs = [ops[0:2], ops[2:3], ops[3:]] if hf2 == 1 else [ops[0:2], ops[2:4], ops[4:]]
            else: segs = [ops[0:2], ops[2:4], ops[4:]]
            ar = AR + 4*(((J+1)*12 + g) & 3)
            domf = g1 if g < 6 else g2
            if psched and g in psched and g != 9 and not last: E.e(f"s_setprio {psched[g]}")
            if J == -1 and g == 8: E.e("s_nop 7")
            if domf:
                need = rd[(J, g)]
                if wait2 and g % 2 == 0 and (J, g+1) in rd and needs_frag(J, g+1): need = max(need, rd[(J, g+1)])
                if g == 6: need = max(need, gi[2])
                if J == -1 and g < 6: need = max(need, xrd[3*g+2])
                E.wait(l=need)
            for nt in range(3):
                if domf:
                    if g < 6:
                        dd = S + 12*((J+1) & 1) + 4*nt
                        E.e(mfma(dd, ar, X + (g*3+nt)*4, None if g == 0 else dd))
                    else:
                        nn = (2 - nt) if (snake and g % 2 == 1) else nt
                        o = Oreg(g-6, nn)
                        E.e(mfma(o, ar, GI + 4*nn, None if J == 1 else o))
                elif f16 and ops and nt > 0: E.e("s_nop 0")
                if nt == 0:
                    if g == 9 and not final:
                        if not last and (J + 1) <= 24 and (J+1) in dma: E.wait(v=dma[J+1])
                        E.wait_all_lds(force=True)
                        E.e("s_barrier")
                        if psched and 9 in psched and not last: E.e(f"s_setprio {psched[9]}")
                        if last:
                            if tdma: prep_next_c(1)
                            if not xbearly: x_base(1)
                    if g + D < 12:
                        if needs_frag(J, g + D) and (J, g + D) not in rd: a_read(J, g + D)
                    elif not last:
                        f2 = g + D - 12
                        if drain2 and J == 22: d_read(12 + f2)
                        elif needs_frag(J+1, f2): a_read(J+1, f2)
                    if g < 3 and g2:
                        gi[g] = E.ds(f"ds_read_b128 v[{GI+4*g}:{GI+4*g+3}], v{vGr} offset:{((J-1) & 1)*12288 + g*1024}")
                for o_ in segs[nt]: E.e(o_)
            if dog and hf2 == 1 and (p & 1) == 1:
                nt = p >> 1; gd = GT + 2*(nt & 1)
                E.ds(f"ds_write_b64 v{vGw}, v[{gd}:{gd+1}] offset:{(c_ & 1)*12288 + nt*1024}")
            if final:
                if g in (9, 11):
                    u = (g - 9)//2
                    for nt in range(3):
                        o = Oreg(2*u, nt)
                        for dd in range(4): E.e(f"v_cvt_pk_bf16_f32 v{o+dd}, v{o+2*dd}, v{o+2*dd+1}")
                        E.vm(f"buffer_store_dwordx4 v[{o}:{o+3}], v{vPx+nt}, s[20:23], s{sRowC} offen offset:{u*64}{stflag}")
                continue
            if last:
                if g >= 9 and not xbearly:
                    for q in {9: (0, 1, 2), 10: (3, 4), 11: (5, 6)}[g]: x_dma(1, q, XB)
                if g == 9 and xbearly:
                    if not tdma: prep_next_c(1)
                    lbl = f"{name}_xblate"
                    E.e(f"s_cmp_lt_u32 s{sW}, 6")
                    E.e(f"s_cbranch_scc1 {lbl}")
                    for q in range(7): x_dma_guard(q, False)
                    E.label(lbl)
                if g == 11 and not tdma and not xbearly: prep_next_c(1)
                continue
            if wfill and J == -1 and g in (0, 2, 4): issue_w(1, g // 2)
            for i, gq in enumerate(wsite):
                if g == gq:
                    JJ = J + NS if gq >= 9 else J + NS - 1
                    if 2 <= JJ <= 24: issue_w(JJ, i)
            if g == xsite and 3 <= J < 10:
                if J == 3: x_base(0)
                x_dma(0, J - 3, XA)
            if g == rsite and 2 <= J < 11:
                q = J - 2; u, nt = divmod(q, 3); r = RS + 4*(q % RN)
                resid[q] = E.vm(f"buffer_load_dwordx4 v[{r}:{r+3}], v{vPx+nt}, s[16:19], s{sRowC} offen offset:{u*64}{rflag}")
            if g == rsite - 1 and 2 + RL <= J < 11 + RL:
                q = J - 2 - RL; u, nt = divmod(q, 3)
                E.wait(v=resid[q])
                for p2 in range(2):
                    o = Oreg(2*u + p2, nt)
                    E.e(mfma(o, ID + (2 if p2 == 0 else 0), RS + 4*(q % RN), o))
            if xbearly and J == 23 and g <= 6:
                if g == 0: x_base(1)
                x_dma_guard(g, True)
            if pf and g == xsite and J in pf:
                sp = 1 + pf.index(J)
                x_base(sp)
                E.e(f"v_add_u32 v{t0}, s{sBase}, v0")
                E.vm(f"buffer_load_dword v{RAW2}, v{t0}, s[4:7], 0 offen")
            if not tdma and J == 19 and 1 <= g <= 7: dw_load1(2, g - 1, first=(g == 1))
            if not tdma and J == 22 and g >= 6: dw_load1(0, g - 6, first=(g == 6))
            if not tdma and J == 23 and g <= 7:
                if g == 0: dw_load1(0, 6)
                else: dw_load1(1, g - 1)
            if J == 0 and g == 6:
                E.e(f"s_add_u32 s{sTileRow}, s{sTileRow}, {RSTEP}")
                E.e(f"s_cmp_eq_u32 s{sRound}, {NROUND-1}")
                E.e(f"s_cselect_b32 s6, 0, s6")
                E.e(f"s_mov_b32 s22, {XBYTES}")

    drd = {}
    def d_read(p):
        r = AR + 4*(p & 3)
        if p < 18: base, off = vA2, 12288 + (p - 12)*1024
        elif xbearly: base, off = vA2, (p - 18)*1024
        else: base, off = vA0, 12288 + (p - 18)*1024
        drd[p] = E.ds(f"ds_read_b128 v[{r}:{r+3}], v{base} offset:{off}")
    def g_read(chunk):
        for nt in range(3):
            gi[nt] = E.ds(f"ds_read_b128 v[{GI+4*nt}:{GI+4*nt+3}], v{vGr} offset:{(chunk & 1)*12288 + nt*1024}")
    def gemm2_group(i, p, segs, after_first=None):
        ar = AR + 4*(p & 3)
        for nt in range(3):
            o = Oreg(i, nt)
            E.e(mfma(o, ar, GI + 4*nt, o))
            if nt == 0 and after_first: after_first()
            for o_ in segs[nt]: E.e(o_)
    def drainA():
        E.c("---- stage 23")
        for a_ in range(8):
            p_, hf2 = divmod(a_ + 4, 2)
            ops = gelu_half(23, p_, hf2)
            if f16: segs = [ops[0:2], ops[2:3], ops[3:]] if hf2 == 1 else [ops[0:2], ops[2:4], ops[4:]]
            else: segs = [ops[0:2], ops[2:4], ops[4:]]
            if psched and a_ in psched: E.e(f"s_setprio {psched[a_]}")
            if a_ == 0: g_read(22)
            if 1 <= a_ <= 6:
                i = a_ - 1
                E.wait(l=max(drd[12 + i], gi[2]))
                def af(i=i):
                    if i < 3: d_read(15 + i)
                gemm2_group(i, 12 + i, segs, af)
            else:
                for k in range(3):
                    if f16 and k > 0: E.e("s_nop 0")
                    for o_ in segs[k]: E.e(o_)
            if hf2 == 1 and (p_ & 1) == 1:
                nt = p_ >> 1; gd = GT + 2*(nt & 1)
                E.ds(f"ds_write_b64 v{vGw}, v[{gd}:{gd+1}] offset:{12288 + nt*1024}")
            if xbearly and a_ <= 6:
                if a_ == 0: x_base(1)
                x_dma_guard(a_, True)
            if not tdma:
                if a_ == 0: dw_load1(0, 6)
                else: dw_load1(1, a_ - 1)
        E.wait(v=dma[24])
        E.wait_all_lds(force=True)
        E.e("s_barrier")
        g_read(23)
        for p in (18, 19, 20): d_read(p)
    def drainB(final):
        E.c("---- stage 24")
        none = [[], [], []]
        for i in range(6):
            E.wait(l=max(drd[18 + i], gi[2]))
            def af(i=i):
                if i < 3: d_read(21 + i)
                if i == 3 and not final:
                    E.wait_all_lds(force=True)
                    E.e("s_barrier")
                    if tdma: prep_next_c(1)
                    if xbearly:
                        if not tdma: prep_next_c(1)
                        lbl = f"{name}_xblate"
                        E.e(f"s_cmp_lt_u32 s{sW}, 6")
                        E.e(f"s_cbranch_scc1 {lbl}")
                        for q in range(7): x_dma_guard(q, False)
                        E.label(lbl)
                    else:
                        x_base(1)
                        for q in range(7): x_dma(1, q, XB)
                        if not tdma: prep_next_c(1)
            gemm2_group(i, 18 + i, none, af)
            if final and i in (3, 5):
                u = (i - 3)//2
                for nt in range(3):
                    o = Oreg(2*u, nt)
                    for dd in range(4): E.e(f"v_cvt_pk_bf16_f32 v{o+dd}, v{o+2*dd}, v{o+2*dd+1}")
                    E.vm(f"buffer_store_dwordx4 v[{o}:{o+3}], v{vPx+nt}, s[20:23], s{sRowC} offen offset:{u*64}{stflag}")

    def t_dma(cb, loc, i, skippable=False):
        if i == 0:
            E.e(f"s_lshl_b32 s{sTmp}, s{sW}, 11")
            E.e(f"s_add_u32 m0, s{sTmp}, {loc}")
            E.e(f"s_add_u32 s99, s{sTmp}, {cb*16384}")
        return E.vm(f"buffer_load_dwordx4 v{vL16}, s[64:67], s99 offen offset:{i*1024} lds", skippable=skippable)

    def prep_next_c(part):
        if part == 0:
            x_base(1)
            for q in range(7): x_dma(1, q, XB)
        elif tdma:
            for i in range(2): tdm["t0"] = t_dma(0, T0LOC, i)
            for i in range(2): tdm["t0"] = t_dma(1, T1LOC, i)
        else:
            E.wait(v=dwl[1])
            t_write(RAW0, T0LOC, (S, S+4))
            t_write(RAW1, T1LOC, (S+8, S+12))

    xrd = {}; tdm = {}
    def round_body():
        conv_step(0, [lambda q=q: out_store(q) for q in range(3) if q >= stearly])
        if pkln and stsplit: stats_part(0)
        if fine: st("c0 compute")
        E.wait(v=xd[1]); E.wait_all_lds(force=True); E.e("s_barrier")
        if fine: st("B0")
        DT = CT[4]
        def signal():
            lbl = f"{name}_nosig"
            E.e(f"s_cmp_lg_u32 s{sRound}, 0")
            E.e(f"s_cbranch_scc1 {lbl}")
            E.e(f"s_cmp_eq_u32 s{sW}, 0")
            E.e(f"s_cselect_b32 s86, s86, 0")
            E.e(f"v_mov_b32 v{DT+2}, 0")
            E.e(f"v_mov_b32 v{DT+3}, 1")
            E.e("s_mov_b64 s[62:63], exec")
            E.e("s_mov_b64 exec, 1")
            E.vm(f"buffer_atomic_add v{DT+3}, v{DT+2}, s[84:87], 0 offen sc1", skippable=True)
            E.e("s_mov_b64 exec, s[62:63]")
            E.label(lbl)
        side = []
        if inprep: side.append(signal)
        x_base(2)
        side += [lambda q=q: x_dma(2, q, XA, tmp=DT) for q in range(7)]
        if tdma:
            lbl = f"{name}_t2l"
            E.e(f"s_cmp_lg_u32 s{sRound}, 0")
            E.e(f"s_cbranch_scc1 {lbl}")
            nl, dl = E.nl, E.dl
            t_write(RAW2, T0LOC, (CT[2], CT[3]), DT+2, DT+3)
            E.e("s_waitcnt lgkmcnt(0)")
            E.nl, E.dl = nl, dl
            E.label(lbl)
            def t2dma():
                l2 = f"{name}_t2d"
                E.e(f"s_cmp_eq_u32 s{sRound}, 0")
                E.e(f"s_cbranch_scc1 {l2}")
                for i in range(2): tdm["t2"] = t_dma(2, T0LOC, i, skippable=True)
                E.label(l2)
            side.insert(1 if inprep else 0, t2dma)
        else:
            side += [lambda: t_write(RAW2, T0LOC, (CT[2], CT[3]), DT+2, DT+3)]
        side += [lambda q=q: out_store(q) for q in range(3, 6) if q >= stearly]
        if not mst: st("conv0", dyn=True)
        conv_step(1, side, sp1)
        if pkln and stsplit: stats_part(1)
        if fine: st("c1 compute")
        E.wait(v=max(xd[2], tdm.get("t2", 0))); E.wait_all_lds(force=True); E.e("s_barrier")
        if fine: st("B1")
        side = []
        if not wlate:
            poll()
            side = [lambda J=J, i=i: issue_w(J, i) for J in (-1, 0, 1) for i in range(3)]
        side += [lambda q=q: out_store(q) for q in range(6, 9) if q >= stearly]
        if not mst: st("conv1", dyn=True)
        conv_step(2, side)
        if not mst: st("conv2", dyn=True)
        layernorm()
        if fine: st("ln hwrite")
        E.wait(v=dma[0 if wfill else 1]); E.wait_all_lds(force=True); E.e("s_barrier")
        if fine: st("BD")
        E.e(f"s_mul_i32 s{sTmp}, s{sPair}, 18432")
        E.e(f"s_add_u32 s{sTmp}, s{sTmp}, {HLOC}")
        E.e(f"v_add_u32 v{t0}, s{sTmp}, v{vL16}")
        for f in range(D): a_read(-1, f)
        for fi in range(18):
            xrd[fi] = E.ds(f"ds_read_b128 v[{X+4*fi}:{X+4*fi+3}], v{t0} offset:{fi*1024}")
        st("ln", dyn=True)
        for J in range(-1, 25):
            if J == 23 and drain2:
                drainA()
                if fine: st("stage 23")
                continue
            if J == 24 and fintail:
                E.e(f"s_cmp_eq_u32 s{sRound}, {NROUND-1}")
                E.e(f"s_cbranch_scc1 {name}_final")
                snap = (E.nl, E.dl, E.nv, E.dv, dict(rd), dict(gi), set(E.skip), dict(drd))
                main = E.L; E.L = []
                if drain2: drainB(True)
                else: stage(24, final=True)
                E.e("s_nop 7")
                for nt in range(3):
                    o = Oreg(4, nt)
                    for dd in range(4): E.e(f"v_cvt_pk_bf16_f32 v{o+dd}, v{o+2*dd}, v{o+2*dd+1}")
                    E.vm(f"buffer_store_dwordx4 v[{o}:{o+3}], v{vPx+nt}, s[20:23], s{sRowC} offen offset:128{stflag}")
                state["final"] = E.L; E.L = main
                E.nl, E.dl, E.nv, E.dv = snap[:4]
                rd.clear(); rd.update(snap[4]); gi.clear(); gi.update(snap[5]); E.skip = snap[6]; drd.clear(); drd.update(snap[7])
            if J == 24 and drain2:
                drainB(False)
                continue
            stage(J)
            if fine and J in (-1, 0, 1, 2, 12, 22, 23): st(f"stage {J}")
            if mst and J in (1, 5, 10, 15, 20): st(f"S{J}", dyn=True)
        if fine: st("stage 24")
        E.e("s_setprio 0")
        E.e("s_nop 7")
        E.e(f"s_mov_b32 s{sRowP}, s{sRowC}")
        for q in range(9):
            u, nt = divmod(q, 3); o = Oreg(2*u, nt)
            for dd in range(4): E.e(f"v_cvt_pk_bf16_f32 v{o+dd}, v{o+2*dd}, v{o+2*dd+1}")
            if q < stearly: out_store(q)
        E.e(f"s_add_u32 s{sRowC}, s{sRowC}, {RSTEP*147456}")
        if tdma: E.wait(v=tdm["t0"])
        E.wait_all_lds(force=True)
        E.e("s_barrier")
        st("mlp", dyn=True)
        rd.clear(); gi.clear(); dma.clear(); drd.clear()
        if stearly:
            for i in range(E.nv - stearly + 1, E.nv + 1): E.skip.add(i)

    nst = len(stamps)
    E.L.append(".p2align 6")
    E.label(f"{name}_L")
    b0 = len(E.L)
    round_body()
    body = list(E.L[b0:])
    E.e(f"s_add_u32 s{sRound}, s{sRound}, 1")
    E.e(f"s_cmp_lt_u32 s{sRound}, {NROUND}")
    E.e(f"s_cbranch_scc1 {name}_L")
    if not stamp:
        save = len(E.L); sv = (E.nl, E.dl, E.nv, E.dv)
        round_body()
        b2 = E.L[save:]
        if b2 != body:
            for x1, x2 in zip(body, b2):
                if x1 != x2: print("DIFF", x1, "|", x2); break
        assert b2 == body, "not steady"
        del E.L[save:]
    if fintail:
        E.label(f"{name}_final")
        E.L += state["final"]
        if stamp:
            i = stamps.index("mlp r2") if "mlp r2" in stamps else None
            if i is not None:
                E.e("s_memtime s[96:97]"); E.e("s_waitcnt lgkmcnt(0)"); E.e(f"v_writelane_b32 v{STAMP}, s96, {i}")
                E.e("s_memrealtime s[96:97]"); E.e("s_waitcnt lgkmcnt(0)"); E.e(f"v_writelane_b32 v{STAMP}, s96, {32+i}")
    else:
        for q in range(stearly, 9): out_store(q)
    if stamp:
        E.e("s_waitcnt vmcnt(0)")
        st("done")
        E.e(f"s_add_u32 s46, s42, {240<<20}")
        E.e(f"s_addc_u32 s47, s43, 0")
        srd(E, 48, 46, 47, 1 << 20)
        E.e(f"s_lshl_b32 s{sTmp}, s2, 3")
        E.e(f"s_add_u32 s{sTmp}, s{sTmp}, s{sW}")
        E.e(f"s_lshl_b32 s{sTmp}, s{sTmp}, 8")
        E.e(f"v_lshrrev_b32 v{t0}, 2, v{vL16}")
        E.e(f"buffer_store_dword v{STAMP}, v{t0}, s[48:51], s{sTmp} offen")
        if dbgout:
            E.e(f"s_cmp_lg_u32 s2, {dbgout}")
            E.e(f"s_cbranch_scc1 {name}_end")
            E.e(f"s_cmp_lg_u32 s{sW}, 0")
            E.e(f"s_cbranch_scc1 {name}_end")
            E.e(f"v_readlane_b32 s{sTmp}, v{STAMP}, 32")
            E.e("s_nop 3")
            E.e(f"v_subrev_u32 v{t1}, s{sTmp}, v{STAMP}")
            E.e(f"v_lshrrev_b32 v{t0}, 2, v{vL16}")
            E.e(f"v_subrev_u32 v{t0}, {(32+dbgshift)*4 - 4}, v{t0}")
            E.e(f"buffer_store_dword v{t1}, v{t0}, s[80:83], 0 offen")
        global STAMPS; STAMPS = stamps
    E.label(f"{name}_end")
    E.e("s_endpgm")
    if strip:
        out = []; inm = False
        for ln in E.L:
            t = ln.strip()
            if t.startswith("; ---- stage"):
                J = int(t.split()[-1]); inm = 1 <= J <= 22
            if t.startswith("; ==== conv step"): inm = False
            if inm:
                if "bar" in strip and t.startswith("s_barrier"): continue
                if "lgkm" in strip and t.startswith("s_waitcnt lgkmcnt"): continue
                if "vmw" in strip and t.startswith("s_waitcnt vmcnt"): continue
                if "vm" in strip and t.startswith("buffer_"): continue
                if "ds" in strip and t.startswith("ds_"): continue
                if "dsw" in strip and t.startswith("ds_write"): continue
                if "prio" in strip and t.startswith("s_setprio"): continue
                if "valu" in strip and t.startswith("v_") and not t.startswith("v_mfma") and not t.startswith("v_writelane"): continue
            out.append(ln)
        E.L = out
    return header(name) + E.text() + descriptor(name, 256)

def gen_k0(name):
    E = Em()
    vL, vN, vG, vL16, t0, t1, t2 = 1, 2, 3, 4, 5, 6, 7
    sW, sTmp, sTmp2, sGw, sJ, sQ, sC2, sPb = 3, 24, 25, 50, 51, 52, 53, 58
    E.e("s_cmp_ge_u32 s2, 72")
    E.e(f"s_cbranch_scc1 {name}_end")
    E.e("s_load_dwordx4 s[40:43], s[0:1], 16")
    E.e("s_load_dwordx2 s[44:45], s[0:1], 48")
    E.e(f"v_lshrrev_b32 v{t0}, 6, v0")
    E.e(f"v_and_b32 v{vL}, 63, v0")
    E.e(f"v_readfirstlane_b32 s{sW}, v{t0}")
    E.e(f"v_and_b32 v{vN}, 15, v{vL}")
    E.e(f"v_lshrrev_b32 v{vG}, 4, v{vL}")
    E.e(f"v_lshlrev_b32 v{vL16}, 4, v{vL}")
    E.e("s_waitcnt lgkmcnt(0)")
    srd(E, 20, 44, 45, 24*24576)
    emit_prep_loads(E, name, sW, vN, vG, t0, t1, t2, sTmp, sTmp2, 8, 40)
    E.e("s_waitcnt vmcnt(0)")
    for d in range(4): E.e(f"v_lshl_or_b32 v{16+d}, v{8+2*d+1}, 16, v{8+2*d}")
    E.e(f"s_mul_i32 s{sTmp}, s51, 24576")
    E.e(f"s_lshl_b32 s{sTmp2}, s52, 10")
    E.e(f"s_add_u32 s{sTmp}, s{sTmp}, s{sTmp2}")
    E.e(f"buffer_store_dwordx4 v[16:19], v{vL16}, s[20:23], s{sTmp} offen")
    E.label(f"{name}_end")
    E.e("s_endpgm")
    return header(name) + E.text() + descriptor(name, 32)

def emit_prep_loads(E, name, sW, vN, vG, t0, t1, t2, sTmp, sTmp2, PW, wptr):
    lw2 = f"{name}_pw2"; lst = f"{name}_pst"
    sGw, sJ, sQ, sC2, sPb = 50, 51, 52, 53, 68
    E.e(f"s_lshl_b32 s{sGw}, s2, 3")
    E.e(f"s_add_u32 s{sGw}, s{sGw}, s{sW}")
    E.e(f"s_mul_i32 s{sJ}, s{sGw}, 2731")
    E.e(f"s_lshr_b32 s{sJ}, s{sJ}, 16")
    E.e(f"s_mul_i32 s{sTmp}, s{sJ}, 24")
    E.e(f"s_sub_u32 s{sQ}, s{sGw}, s{sTmp}")
    E.e(f"s_cmp_ge_u32 s{sQ}, 12")
    E.e(f"s_cbranch_scc1 {lw2}")
    srd(E, 64, wptr, wptr+1, 192*768*2)
    E.e(f"s_add_u32 s{sC2}, s{sJ}, 1")
    E.e(f"s_cmp_eq_u32 s{sC2}, 24")
    E.e(f"s_cselect_b32 s{sC2}, 0, s{sC2}")
    E.e(f"s_cmp_ge_u32 s{sQ}, 6")
    E.e(f"s_cselect_b32 s{sTmp}, 1, 0")
    E.e(f"s_mul_i32 s{sTmp2}, s{sTmp}, 6")
    E.e(f"s_sub_u32 s{sTmp2}, s{sQ}, s{sTmp2}")
    E.e(f"s_mul_i32 s{sTmp2}, s{sTmp2}, 49152")
    E.e(f"s_lshl_b32 s{sTmp}, s{sTmp}, 5")
    E.e(f"s_add_u32 s{sTmp2}, s{sTmp2}, s{sTmp}")
    E.e(f"s_lshl_b32 s{sTmp}, s{sC2}, 6")
    E.e(f"s_add_u32 s{sPb}, s{sTmp2}, s{sTmp}")
    E.e(f"v_mul_u32_u24 v{t0}, 12288, v{vG}")
    E.e(f"v_lshl_add_u32 v{t0}, v{vN}, 1, v{t0}")
    E.e("s_mov_b32 s69, 1536")
    E.e("s_mov_b32 s70, 1536")
    E.e(f"s_branch {lst}")
    E.label(lw2)
    srd(E, 64, wptr+2, wptr+3, 192*768*2)
    E.e(f"s_add_u32 s{sC2}, s{sJ}, 23")
    E.e(f"s_cmp_ge_u32 s{sC2}, 24")
    E.e(f"s_cselect_b32 s{sTmp}, 24, 0")
    E.e(f"s_sub_u32 s{sC2}, s{sC2}, s{sTmp}")
    E.e(f"s_sub_u32 s{sTmp}, s{sQ}, 12")
    E.e(f"s_lshr_b32 s{sTmp2}, s{sTmp}, 1")
    E.e(f"s_lshl_b32 s{sTmp2}, s{sTmp2}, 6")
    E.e(f"s_and_b32 s{sTmp}, s{sTmp}, 1")
    E.e(f"s_lshl_b32 s{sTmp}, s{sTmp}, 3")
    E.e(f"s_add_u32 s{sTmp2}, s{sTmp2}, s{sTmp}")
    E.e(f"s_mul_i32 s{sTmp}, s{sC2}, 12288")
    E.e(f"s_add_u32 s{sPb}, s{sTmp2}, s{sTmp}")
    E.e(f"v_lshrrev_b32 v{t1}, 2, v{vN}")
    E.e(f"v_and_b32 v{t2}, 3, v{vN}")
    E.e(f"v_lshl_add_u32 v{t1}, v{t1}, 3, v{t2}")
    E.e(f"v_mul_u32_u24 v{t0}, 1536, v{vG}")
    E.e(f"v_lshl_add_u32 v{t0}, v{t1}, 1, v{t0}")
    E.e("s_mov_b32 s69, 384")
    E.e(f"s_mov_b32 s70, {6144 - 3*384}")
    E.label(lst)
    E.e(f"s_cmp_lt_u32 s{sGw}, 576")
    E.e("s_cselect_b32 s66, s66, 0")
    last = None
    for e in range(8):
        last = E.vm(f"buffer_load_ushort v{PW+e}, v{t0}, s[64:67], s{sPb} offen")
        if e < 7: E.e(f"s_add_u32 s{sPb}, s{sPb}, s{70 if e == 3 else 69}")
    return last

if __name__ == "__main__":
    print(gen_f1("f1_kernel"))
```
